```python
import torch

def _softmax(x, axis=-1):
    return torch.softmax(x, dim=axis)

def _gelu(x):
    return torch.nn.functional.gelu(x, approximate='tanh')

def _silu(x):
    return torch.nn.functional.silu(x)

def _sigmoid(x):
    return torch.sigmoid(x)

def _layernorm(x, axis=-1, eps=1e-05):
    m = x.mean(dim=axis, keepdim=True)
    v = x.var(dim=axis, keepdim=True, unbiased=False)
    return (x - m) / torch.sqrt(v + eps)

def _scatter_add(tgt, idx, src, axis=0):
    return tgt.clone().index_add_(axis, idx, src)

def _segment_sum(src, seg, n):
    out = torch.zeros((n,) + src.shape[1:], dtype=src.dtype)
    return out.index_add_(0, seg, src)

def _pad(x, pw):
    flat = tuple((v for pair in reversed(pw) for v in pair))
    return torch.nn.functional.pad(x, flat)
kernel_name = 'adaLN_cond__compressed_kv_cla__glu_gated_geglu__decode'

def setup_inputs():

    _w = lambda a: (lambda t: t.to(torch.bfloat16) if t.is_floating_point() else t)(torch.as_tensor(a))

    def _A_setup():
        B, H, Sq, Sk, D, M = (2, 32, 1, 8192, 128, 512)
        Dc = 4 * D
        return {'x': _w((lambda *s: torch.randn(*s, dtype=torch.bfloat16) * 0.05)(B, Sq, M)), 'c_kv': _w((lambda *s: torch.randn(*s, dtype=torch.bfloat16) * 3.2)(B, Sk, Dc)), 'w_q': _w((lambda *s: torch.randn(*s, dtype=torch.bfloat16) * 0.8)(M, H, D) * M ** (-0.5)), 'w_uk': _w((lambda *s: torch.randn(*s, dtype=torch.bfloat16) * 0.8)(Dc, H, D) * Dc ** (-0.5)), 'w_uv': _w((lambda *s: torch.randn(*s, dtype=torch.bfloat16) * 3.2)(Dc, H, D) * Dc ** (-0.5)), 'w_o': _w((lambda *s: torch.randn(*s, dtype=torch.bfloat16) * 3.2)(H, D, M) * (H * D) ** (-0.5))}
    _A_in = _A_setup()

    def _B_setup():
        B, S, Dm, Df = (2, 1, 512, 1792)
        return {'x': _w((lambda *s: torch.randn(*s, dtype=torch.bfloat16) * 0.05)(B, S, Dm)), 'w_gate': _w((lambda *s: torch.randn(*s, dtype=torch.bfloat16) * 3.2)(Dm, Df) * Dm ** (-0.5)), 'w_up': _w((lambda *s: torch.randn(*s, dtype=torch.bfloat16) * 3.2)(Dm, Df) * Dm ** (-0.5)), 'w_down': _w((lambda *s: torch.randn(*s, dtype=torch.bfloat16) * 3.2)(Df, Dm) * Df ** (-0.5))}
    _B_in = _B_setup()
    return {'A_x': _A_in['x'], 'A_c_kv': _A_in['c_kv'], 'A_w_q': _A_in['w_q'], 'A_w_uk': _A_in['w_uk'], 'A_w_uv': _A_in['w_uv'], 'A_w_o': _A_in['w_o'], 'B_x': _B_in['x'], 'B_w_gate': _B_in['w_gate'], 'B_w_up': _B_in['w_up'], 'B_w_down': _B_in['w_down'], 'c': _w((lambda *s: torch.randn(*s, dtype=torch.bfloat16) * 0.1)(2, 512) * 8.0), 'w_mod': _w((lambda *s: torch.randn(*s, dtype=torch.bfloat16) * 0.1)(512, 6 * 512) * 512 ** (-0.5) * 8.0)}

def reference(A_x, A_c_kv, A_w_q, A_w_uk, A_w_uv, A_w_o, B_x, B_w_gate, B_w_up, B_w_down, c, w_mod):

    def _A_ref(x, c_kv, w_q, w_uk, w_uv, w_o):
        B, Sq, M = (x.shape[0], x.shape[1], x.shape[2])
        Sk = c_kv.shape[1]
        H, D = (w_q.shape[1], w_q.shape[2])
        q = torch.einsum('bqm,mhd->bhqd', x, w_q)
        k = torch.einsum('bkc,chd->bhkd', c_kv, w_uk)
        v = torch.einsum('bkc,chd->bhkd', c_kv, w_uv)
        scores = torch.einsum('bhqd,bhkd->bhqk', q, k) * D ** (-0.5)
        off = Sk - Sq
        qi = torch.arange(Sq)[:, None]
        kj = torch.arange(Sk)[None, :]
        cmask = kj <= qi + off
        scores = torch.where(cmask[None, None], scores, -1000000000.0)
        p = _softmax(scores, axis=-1)
        ctx = torch.einsum('bhqk,bhkd->bhqd', p, v)
        return torch.einsum('bhqd,hdm->bqm', ctx, w_o)

    def _B_ref(x, w_gate, w_up, w_down):
        g = torch.einsum('bsd,df->bsf', x, w_gate)
        u = torch.einsum('bsd,df->bsf', x, w_up)
        h = _gelu(g) * u
        return torch.einsum('bsf,fd->bsd', h, w_down)
    x = A_x
    mod = (_silu(c) @ w_mod).reshape(c.shape[0], 6, 1, -1)
    sa, ca, ga, sb, cb, gb = (mod[:, 0].clone(), mod[:, 1].clone(), mod[:, 2].clone(), mod[:, 3].clone(), mod[:, 4].clone(), mod[:, 5].clone())
    h = _layernorm(x, axis=-1) * (1 + ca) + sa
    x = x + ga * _A_ref(h, A_c_kv, A_w_q, A_w_uk, A_w_uv, A_w_o)
    h = _layernorm(x, axis=-1) * (1 + cb) + sb
    x = x + gb * _B_ref(h, B_w_gate, B_w_up, B_w_down)
    return x
```

```python
import re
TRANS = ('v_exp_f32','v_log_f32','v_rcp_f32','v_rsq_f32','v_sqrt_f32','v_sin_f32','v_cos_f32')
def regs_of(tok):
    tok = tok.strip()
    tok = tok.lstrip('-')
    m = re.match(r'^abs\((.*)\)$', tok)
    if m: tok = m.group(1)
    m = re.match(r'^\|(.*)\|$', tok)
    if m: tok = m.group(1)
    m = re.match(r'^([vsa])(\d+)$', tok)
    if m: return [(m.group(1), int(m.group(2)))]
    m = re.match(r'^([vsa])\[(\d+):(\d+)\]$', tok)
    if m: return [(m.group(1), i) for i in range(int(m.group(2)), int(m.group(3)) + 1)]
    if tok == 'vcc': return [('s', 106), ('s', 107)]
    if tok == 'vcc_lo': return [('s', 106)]
    if tok == 'vcc_hi': return [('s', 107)]
    if tok == 'exec': return [('s', 126), ('s', 127)]
    if tok == 'm0': return [('s', 124)]
    return []

class Emitter:
    def __init__(self):
        self.lines = []
        self.n = 0
        self.valu_w = {}
        self.trans_w = {}
        self.mfma_w = {}
        self.mfma_c = {}
        self.st_data = {}
        self.sgpr_valu_w = {}
        self.m0_w = -100
        self.dot_w = {}
        self.vm = []
        self.lg = []
        self.nops = 0
        self.maxv = 0
    def comment(self, s): self.lines.append('  ; ' + s)
    def _nop(self, k):
        while k > 0:
            c = min(k, 16)
            self.lines.append(f'  s_nop {c-1}')
            self.n += c; k -= c; self.nops += c
    def _need(self, idx, req):
        return req - (self.n - idx - 1)
    def flush(self):
        need = 0
        for (idx, p, d) in self.mfma_w.values(): need = max(need, self._need(idx, 12 if p == 8 else 8))
        for idx in self.valu_w.values(): need = max(need, self._need(idx, 2))
        for idx in self.dot_w.values(): need = max(need, self._need(idx, 3))
        for idx in self.sgpr_valu_w.values(): need = max(need, self._need(idx, 5))
        for idx in self.st_data.values(): need = max(need, self._need(idx, 2))
        need = max(need, self._need(self.m0_w, 1))
        self._nop(need)
    def label(self, name, flush=True):
        if flush: self.flush()
        self.lines.append(name + ':')
    def I(self, text, tag=None):
        text = text.strip()
        mn = text.split()[0]
        rest = text[len(mn):].strip()
        ops = [o.strip() for o in rest.split(',')] if rest else []
        toks = []
        for o in ops:
            t = o.split()[0] if o.split() else ''
            toks.append(t)
        is_dpp = ('_dpp' in mn) or ('quad_perm' in text) or ('row_' in text)
        if 'quad_perm:[' in text or 'op_sel' in text:
            base = re.split(r'\s(?:quad_perm|op_sel|row_|bitop3|neg_)', ' ' + rest)[0]
            toks = [o.strip().split()[0] for o in base.split(',') if o.strip()]
        reads, writes = [], []
        kind = 'other'
        need = 0
        if mn.startswith('v_mfma'):
            kind = 'mfma'
            passes = 8 if '32x32' in mn else 4
            d = regs_of(toks[0]); a = regs_of(toks[1]); b = regs_of(toks[2]); c = regs_of(toks[3])
            for r in a + b + c:
                if r in self.valu_w: need = max(need, self._need(self.valu_w[r], 2))
                if r in self.dot_w: need = max(need, self._need(self.dot_w[r], 3))
            for r in a + b:
                if r in self.mfma_w:
                    idx, p, dd = self.mfma_w[r]; need = max(need, self._need(idx, 12 if p == 8 else 8))
            for r in c:
                if r in self.mfma_w:
                    idx, p, dd = self.mfma_w[r]
                    if tuple(c) == dd and p == passes: pass
                    else: need = max(need, self._need(idx, 10 if p == 8 else 6))
            if tuple(c) != tuple(d):
                for r in d:
                    if r in self.mfma_w:
                        idx, p, dd = self.mfma_w[r]; need = max(need, self._need(idx, 12 if p == 8 else 8))
            self._nop(need)
            for r in d: self.mfma_w[r] = (self.n, passes, tuple(d)); self.valu_w.pop(r, None)
            for r in c: self.mfma_c[r] = (self.n, passes)
            allr = d + a + b + c
        elif mn.startswith('v_'):
            kind = 'valu'
            dst = regs_of(toks[0]); srcs = []
            k = 1
            if mn.startswith(('v_add_co', 'v_sub_co', 'v_addc_co', 'v_subb_co')):
                dst += regs_of(toks[1]); k = 2
            for t in toks[k:]: srcs += regs_of(t)
            if mn.startswith(('v_fmac', 'v_dot2c', 'v_permlane')) or is_dpp: srcs += regs_of(toks[0])
            if mn.startswith('v_permlane'): dst += regs_of(toks[1])
            if mn.startswith('v_cndmask') and len(toks) == 3: srcs += regs_of('vcc')
            if mn.startswith('v_writelane'): srcs += regs_of(toks[0])
            for r in srcs:
                if r[0] in 'va':
                    if r in self.valu_w:
                        req = 0
                        if is_dpp or mn.startswith('v_permlane'): req = 2
                        elif mn.startswith(('v_readlane', 'v_readfirstlane')): req = 1
                        need = max(need, self._need(self.valu_w[r], req))
                    if r in self.trans_w and mn.split('_e')[0] not in TRANS: need = max(need, self._need(self.trans_w[r], 1))
                    if r in self.dot_w:
                        same_c = mn.startswith('v_dot2_f32') and regs_of(toks[3]) == [r] and r not in regs_of(toks[1]) + regs_of(toks[2])
                        if not same_c: need = max(need, self._need(self.dot_w[r], 3))
                    if r in self.mfma_w:
                        idx, p, dd = self.mfma_w[r]; need = max(need, self._need(idx, 12 if p == 8 else 8))
                else:
                    if r in self.sgpr_valu_w:
                        req = 4 if mn.startswith(('v_readlane', 'v_writelane')) else 2
                        need = max(need, self._need(self.sgpr_valu_w[r], req))
            for r in dst:
                if r[0] in 'va':
                    if r in self.mfma_w:
                        idx, p, dd = self.mfma_w[r]; need = max(need, self._need(idx, 12 if p == 8 else 8))
                    if r in self.mfma_c:
                        idx, p = self.mfma_c[r]; need = max(need, self._need(idx, 7 if p == 8 else 3))
                    if r in self.st_data: need = max(need, self._need(self.st_data[r], 2))
            self._nop(need)
            for r in dst:
                if r[0] in 'va':
                    self.valu_w[r] = self.n; self.mfma_w.pop(r, None)
                    if mn in TRANS: self.trans_w[r] = self.n
                    else: self.trans_w.pop(r, None)
                    if mn.startswith('v_dot'): self.dot_w[r] = self.n
                    else: self.dot_w.pop(r, None)
                else: self.sgpr_valu_w[r] = self.n
            allr = dst + srcs
        elif mn.startswith(('global_', 'ds_', 'buffer_')):
            kind = 'mem'
            isload = ('load' in mn and 'lds' not in mn) or mn.startswith(('ds_read', 'ds_bpermute', 'ds_swizzle', 'ds_permute'))
            dst = regs_of(toks[0]) if isload else []
            srcs = []
            for t in (toks[1:] if isload else toks): srcs += regs_of(t)
            for r in srcs + dst:
                if r[0] in 'va':
                    if r in self.dot_w: need = max(need, self._need(self.dot_w[r], 3))
                    if r in self.mfma_w:
                        idx, p, dd = self.mfma_w[r]; need = max(need, self._need(idx, 12 if p == 8 else 8))
                elif r in self.sgpr_valu_w: need = max(need, self._need(self.sgpr_valu_w[r], 5))
            for r in dst:
                if r in self.st_data: need = max(need, self._need(self.st_data[r], 1))
                if r in self.mfma_c:
                    idx, p = self.mfma_c[r]; need = max(need, self._need(idx, 7 if p == 8 else 3))
            if 'lds' in mn: need = max(need, self._need(self.m0_w, 1))
            self._nop(need)
            if 'store' in mn and ('x4' in mn or 'x3' in mn):
                for r in regs_of(toks[1]): self.st_data[r] = self.n
            for r in dst:
                self.valu_w.pop(r, None); self.mfma_w.pop(r, None); self.trans_w.pop(r, None)
            if mn.startswith('ds_'): self.lg.append(tag)
            else: self.vm.append(tag)
            allr = dst + srcs
        else:
            allr = []
            if toks and toks[0] == 'm0': self.m0_w = self.n
            if toks:
                for r in regs_of(toks[0]):
                    if r[0] == 's': self.sgpr_valu_w.pop(r, None) if not mn.startswith(('s_cmp', 's_cbranch', 's_bitcmp')) else None
            if mn == 's_nop':
                self.lines.append('  ' + text); self.n += int(toks[0]) + 1; return
        for r in allr:
            if r[0] == 'v': self.maxv = max(self.maxv, r[1])
        self.lines.append('  ' + text)
        self.n += 1
    def wait_vm(self, tag=None):
        if tag is None: n = 0
        else:
            idxs = [i for i, t in enumerate(self.vm) if t == tag]
            if not idxs: return
            n = len(self.vm) - 1 - idxs[-1]
        assert n <= 63
        self.I(f's_waitcnt vmcnt({n})')
        self.vm = self.vm[len(self.vm) - n:] if n else []
    def wait_lg(self, tag=None):
        if tag is None: n = 0
        else:
            idxs = [i for i, t in enumerate(self.lg) if t == tag]
            if not idxs: return
            n = len(self.lg) - 1 - idxs[-1]
        if n > 15: n = 15
        self.I(f's_waitcnt lgkmcnt({n})')
        self.lg = self.lg[len(self.lg) - n:] if n else []
    def barrier(self):
        self.wait_lg()
        self.I('s_barrier')
    def branch(self, op, target, flush=True):
        if flush: self.flush()
        self.I(f'{op} {target}')
    def text(self): return '\n'.join(self.lines) + '\n'
```

```python
import sys, math, struct
sys.path.insert(0, 'work')
from emit import Emitter
NAME = 'adaLN_cond__compressed_kv_cla__glu_gated_geglu__decode'
def f32(x): return '0x%08x' % struct.unpack('<I', struct.pack('<f', x))[0]

WS_MODP, WS_HQ, WS_H2, WS_ST, WS_H4, WS_H5, WS_H6, WS_MODQ, WS_H3, WS_DBG = 0x0, 0x10000, 0x20000, 0x30000, 0x38000, 0x48000, 0x50000, 0x58000, 0x100000, 0x600000
WS_HU2, WS_HU4, WS_HU5 = 0x68000, 0x6C000, 0x70000
CLR_BYTES = 0x54000
K = 1024
L_WQ, L_WUK = 0, 32*K
L_S = 128*K
L_HV = L_S
L_CKV, L_QABS = 0, 128*K
L_MT, L_SC, L_RED1 = 128*K, 0, 2*K
L_XCH, L_MAX, L_SUM, L_P = 0, 16*K, 17*K, 24*K
L_WUV = 32*K
L_EST, L_EROW = L_S, L_S + 1*K
L_WO, L_WG, L_WU, L_WDN = 0, 0, 64*K, 0
L_FRED, L_XST, L_H2V, L_GRED, L_X1 = L_S, L_S+16*K, L_S+17*K, L_S+20*K, L_S+22*K
LDS_BYTES = 160*K
SPIN = 60000

P_X, P_CKV, P_WQ, P_WUK, P_WUV, P_WO, P_WG, P_WU, P_WD, P_C, P_WMOD, P_OUT, P_DBG, P_WS = 8, 10, 12, 14, 16, 18, 22, 24, 26, 28, 30, 32, 34, 36
def sp(p): return f's[{p}:{p+1}]'
def vr(a, n): return f'v[{a}:{a+n-1}]' if n > 1 else f'v{a}'
DPPM = 'row_mask:0xf bank_mask:0xf'

class Gen:
    def __init__(self, cfg):
        self.cfg = cfg
        self.e = Emitter(); self.I = self.e.I
        self.uid = 0
        self.spol = 'nt' if cfg.get('small_nt', 0) else ''
    def lab(self, s): self.uid += 1; return f'L_{s}_{self.uid}'
    def stamp(self, k):
        if not self.cfg.get('stamps'): return
        self.e.wait_lg()
        self.I(f's_memrealtime s[{64+2*k}:{65+2*k}]'); self.I('s_waitcnt lgkmcnt(0)')
    def base(self, dst, ptr, terms, const=0):
        I = self.I
        first = True
        for (s, m) in terms:
            t = 's6' if first else 's7'
            I(f's_mul_i32 {t}, s{s}, {m}')
            if not first: I('s_add_u32 s6, s6, s7')
            first = False
        if first: I(f's_mov_b32 s6, {const}')
        elif const: I(f's_add_u32 s6, s6, {const}')
        I(f's_add_u32 s{dst}, s{ptr}, s6'); I(f's_addc_u32 s{dst+1}, s{ptr+1}, 0')
    def sval(self, dst, terms, const=0):
        I = self.I
        first = True
        for (s, m) in terms:
            t = dst if first else 's7'
            I(f's_mul_i32 {t}, s{s}, {m}')
            if not first: I(f's_add_u32 {dst}, {dst}, s7')
            first = False
        if first: I(f's_mov_b32 {dst}, {const}')
        elif const: I(f's_add_u32 {dst}, {dst}, {const}')
    def sleep(self, n):
        while n > 0:
            k = min(n, 127); self.I(f's_sleep {k}'); n -= k
    def maxtree(self, regs, t):
        I = self.I
        regs = list(regs)
        if len(regs) == 1: return regs[0]
        if len(regs) == 2: I(f'v_max_u32 v{t}, v{regs[0]}, v{regs[1]}'); return t
        I(f'v_max3_u32 v{t}, v{regs[0]}, v{regs[1]}, v{regs[2]}'); k = 3
        while k < len(regs):
            if k + 1 < len(regs): I(f'v_max3_u32 v{t}, v{t}, v{regs[k]}, v{regs[k+1]}'); k += 2
            else: I(f'v_max_u32 v{t}, v{t}, v{regs[k]}'); k += 1
        return t
    def poll(self, name, loads, regs, pre, loop_sleep=2, t=8):
        e, I = self.e, self.I
        L, D = self.lab(name), self.lab(name + 'd')
        I(f's_mov_b32 s54, {SPIN}')
        self.sleep(pre)
        e.label(L, flush=True)
        for ld in loads: I(ld)
        e.wait_vm()
        r = self.maxtree(regs, t)
        I(f'v_cmp_eq_u32 vcc, -1, v{r}')
        I(f's_cbranch_vccz {D}')
        I(f's_sleep {loop_sleep}')
        I('s_sub_u32 s54, s54, 1')
        I(f's_cbranch_scc0 {L}')
        e.label(D, flush=False)
    def flag_ld(self, which, dst, tag=None):
        if which == 0: self.I('v_and_b32 v8, 7, v1'); self.I('v_lshlrev_b32 v8, 2, v8')
        else: self.I('v_mov_b32 v8, 128')
        self.I(f'global_load_dword v{dst}, v8, {sp(P_DBG)} sc1', tag=tag)
    def flagcheck_issue(self, which, dst): self.flag_ld(which, dst, 'flag')
    def flagcheck_finish(self, which, dst):
        e, I = self.e, self.I
        L, D = self.lab('fl'), self.lab('fld')
        I(f's_mov_b32 s54, {SPIN}'); I('s_mov_b32 s63, 0x01010101')
        e.wait_vm('flag')
        e.label(L, flush=True)
        I(f'v_cmp_ne_u32 vcc, s63, v{dst}')
        I(f's_cbranch_vccz {D}')
        I('s_sleep 6')
        saved = list(e.vm)
        self.flag_ld(which, dst)
        I('s_waitcnt vmcnt(0)')
        I('s_sub_u32 s54, s54, 1')
        I(f's_cbranch_scc0 {L}')
        e.label(D, flush=False)
        e.vm = saved
    def ror_reduce(self, regs, steps, op='add'):
        for s in steps:
            for r in regs: self.I(f'v_{op}_f32_dpp v{r}, v{r}, v{r} row_ror:{s} {DPPM}')
    def cross(self, which, r, t, op='add'):
        I = self.I
        I(f'v_mov_b32 v{t}, v{r}'); I(f'v_permlane{which}_swap_b32 v{r}, v{t}'); I(f'v_{op}_f32 v{r}, v{r}, v{t}')
    def exec_mask(self, pair): self.I(f's_mov_b64 exec, s[{pair}:{pair+1}]')
    def exec_all(self): self.I('s_mov_b64 exec, -1')

    def dma_128(self, sbase, pitch, ninstr, lds_terms, lds_const, tag, vt=11):
        I = self.I
        I(f'v_lshlrev_b32 v{vt}, 1, v3'); I('v_and_b32 v9, 7, v1'); I(f'v_xor_b32 v{vt}, v{vt}, v9'); I(f'v_lshlrev_b32 v{vt}, 4, v{vt}')
        I('v_lshrrev_b32 v9, 3, v1'); I(f's_mov_b32 s6, {pitch}'); I('v_mul_lo_u32 v9, v9, s6'); I(f'v_add_u32 v{vt}, v{vt}, v9')
        self.sval('s53', lds_terms, lds_const)
        for q in range(ninstr):
            I(f's_add_u32 m0, s53, {q*1024}')
            I(f'global_load_lds_dwordx4 v{vt}, s[{sbase}:{sbase+1}] nt', tag=tag)
            if q < ninstr - 1: I(f'v_add_u32 v{vt}, {8*pitch}, v{vt}')
    def tr_base_128(self, dst, lds_terms, lds_const):
        I = self.I
        I('v_lshrrev_b32 v9, 2, v2'); I('v_lshl_add_u32 v9, v3, 2, v9')
        I(f'v_bfe_u32 v{dst}, v9, 1, 2'); I(f'v_lshlrev_b32 v{dst}, 5, v{dst}'); I(f'v_lshl_add_u32 v{dst}, v9, 7, v{dst}')
        I('v_and_b32 v9, 3, v2'); I(f'v_lshl_add_u32 v{dst}, v9, 3, v{dst}')
        self.sval('s6', lds_terms, lds_const); I(f'v_add_u32 v{dst}, s6, v{dst}')
    def dma_256(self, sbase, pitch, lds_const, tag, swz, vt=11):
        I = self.I
        I(f's_mov_b32 s6, {pitch}'); I('v_mul_lo_u32 v9, v3, s6')
        if swz == '32': I(f'v_lshlrev_b32 v{vt}, 1, v3')
        else: I(f'v_mov_b32 v{vt}, v3')
        I(f'v_xor_b32 v{vt}, v{vt}, v2'); I(f'v_lshl_add_u32 v{vt}, v{vt}, 4, v9')
        self.sval('s53', [(3, 4096)], lds_const)
        for q in range(4):
            x = ((q & 1) << 7) if swz == '32' else (q << 6)
            if q: I(f'v_xor_b32 v{vt+1}, {x}, v{vt}'); I(f'v_add_u32 v{vt+1}, {q*4*pitch}, v{vt+1}')
            I(f's_add_u32 m0, s53, {q*1024}')
            I(f'global_load_lds_dwordx4 v{vt+1 if q else vt}, s[{sbase}:{sbase+1}] nt', tag=tag)
    def tr_base_256(self, dst, lds_const):
        I = self.I
        I('v_lshrrev_b32 v9, 2, v2'); I('v_lshl_add_u32 v9, v3, 2, v9')
        I(f'v_and_b32 v{dst}, 7, v9'); I(f'v_xor_b32 v{dst}, s3, v{dst}'); I(f'v_lshlrev_b32 v{dst}, 5, v{dst}'); I(f'v_lshl_add_u32 v{dst}, v9, 8, v{dst}')
        I('v_and_b32 v9, 3, v2'); I(f'v_lshl_add_u32 v{dst}, v9, 3, v{dst}')
        if lds_const: I(f'v_add_u32 v{dst}, {lds_const}, v{dst}')

    def build(self):
        e, I, cfg = self.e, self.I, self.cfg
        I('s_cmp_ge_u32 s2, 256'); I('s_cbranch_scc1 L_END')
        I('s_load_dwordx16 s[8:23], s[0:1], 0'); I('s_load_dwordx8 s[24:31], s[0:1], 64')
        I('s_load_dwordx4 s[32:35], s[0:1], 96'); I('s_load_dwordx2 s[36:37], s[0:1], 112')
        if cfg.get('stamps'):
            I('s_memrealtime s[64:65]')
            for k in range(66, 96): I(f's_mov_b32 s{k}, 0')
        I('s_getpc_b64 s[44:45]')
        I('v_and_b32 v1, 63, v0'); I('v_lshrrev_b32 v8, 6, v0')
        I('v_and_b32 v2, 15, v0'); I('v_readfirstlane_b32 s3, v8')
        I('v_bfe_u32 v3, v0, 4, 2'); I('v_and_b32 v4, 31, v0'); I('v_bfe_u32 v5, v0, 5, 1')
        I('v_lshlrev_b32 v6, 4, v1'); I('v_lshlrev_b32 v7, 3, v1')
        I('s_and_b32 s4, s2, 7'); I('s_lshr_b32 s5, s2, 3')
        I('s_and_b32 s44, s44, 0xffffff00')
        I(f's_cmp_lg_u32 s3, {7 if cfg.get("codepf", 1) else 99}'); I('s_cbranch_scc1 L_NOPF')
        if cfg.get('codepf', 1) == 2: I('s_cmp_lt_u32 s2, 128'); I('s_cbranch_scc1 L_NOPF'); I('s_and_b32 s5, s5, 15')
        I(f's_cmp_ge_u32 s5, CODE_KB'); I('s_cbranch_scc1 L_NOPF')
        I('s_lshl_b32 s6, s5, 10'); I('v_add_u32 v8, s6, v6')
        I('global_load_dwordx4 v[252:255], v8, s[44:45]')
        e.label('L_NOPF'); e.vm = []
        I('s_mov_b32 s48, 0x00030003'); I('s_mov_b32 s49, 0x00030003')
        I('s_mov_b32 s50, 0x00110011'); I('s_mov_b32 s51, 0x00110011')
        I('s_lshr_b32 s60, s3, 2'); I('s_and_b32 s55, s3, 3'); I('s_lshr_b32 s61, s3, 1'); I('s_and_b32 s62, s3, 1')
        I('s_bfe_u32 s6, s5, 0x20002'); I('s_lshl_b32 s40, s4, 2'); I('s_add_u32 s40, s40, s6'); I('s_and_b32 s41, s5, 3')
        I('s_waitcnt lgkmcnt(0)')
        if cfg.get('pretouch', 0):
            LP = self.lab('pt')
            I('s_cmp_lg_u32 s3, 6'); I(f's_cbranch_scc1 {LP}')
            I('v_lshlrev_b32 v8, 16, v1'); I(f'v_add_u32 v8, {0xff80}, v8')
            I(f'global_load_dword v248, v8, {sp(P_WS)}')
            I(f'v_add_u32 v8, {0x400000}, v8'); I('s_mov_b32 exec_hi, 0'); I(f'global_load_dword v249, v8, {sp(P_WS)}'); self.exec_all()
            I('v_mov_b32 v8, 0'); I(f'global_load_dword v250, v8, {sp(P_OUT)}')
            e.label(LP); e.vm = []
        I('s_and_b32 s5, s5, 15')
        I('s_and_b32 s96, s2, 127')
        I('s_cmp_lt_u32 s2, 128'); I('s_cbranch_scc1 L_ROLE_B')
        self.role_a()
        e.label('L_ROLE_B'); e.vm = []; e.lg = []
        self.role_b()
        e.label('L_FIN')
        if cfg.get('stamps'):
            self.stamp(15)
            self.base(44, P_WS, [(2, 1024), (3, 128)], WS_DBG)
            I('v_mov_b32 v8, 0'); I('s_mov_b64 exec, 1')
            for k in range(16):
                I(f'v_mov_b32 v10, s{64+2*k}'); I(f'v_mov_b32 v11, s{65+2*k}'); I(f'global_store_dwordx2 v8, v[10:11], s[44:45] offset:{8*k}')
        e.label('L_END')
        I('s_endpgm')

    def role_a(self):
        e, I, cfg = self.e, self.I, self.cfg
        def early_loads():
            LX = self.lab('xl')
            saved = list(e.vm)
            I('s_cmp_lg_u32 s3, 0'); e.branch('s_cbranch_scc1', LX)
            I('v_lshlrev_b32 v9, 5, v1')
            I(f'global_load_dwordx4 v[100:103], v9, {sp(P_X)}'); I(f'global_load_dwordx4 v[104:107], v9, {sp(P_X)} offset:16')
            I('v_lshlrev_b32 v10, 10, v5'); I('v_lshl_add_u32 v10, v4, 3, v10'); I('s_lshl_b32 s6, s41, 8'); I('v_add_u32 v10, s6, v10')
            I(f'global_load_dwordx2 v[108:109], v10, {sp(P_X)}')
            e.label(LX); e.vm = saved
            self.base(44, P_WQ, [(41, 128*8192), (3, 16*8192), (40, 256)])
            self.dma_256(44, 8192, L_WQ, 'wq', '32')
            self.base(44, P_WUK, [(41, 128*8192), (3, 16*8192), (40, 256)])
            self.dma_256(44, 8192, L_WUK, 'wuk', '16')
        self.sleep(cfg.get('a_pre', 0))
        early_loads()
        self.stamp(1)
        e.wait_vm('wq'); e.barrier()
        self.tr_base_256(12, L_WQ)
        for s in range(4):
            I(f'ds_read_b64_tr_b16 {vr(32+4*s,2)}, v12 offset:{s*8192}'); I(f'ds_read_b64_tr_b16 {vr(34+4*s,2)}, v12 offset:{s*8192+4096}')
        e.wait_vm('wuk')
        I('v_xor_b32 v12, v3, v2'); I('v_lshlrev_b32 v12, 4, v12'); I('v_lshl_add_u32 v12, v2, 8, v12'); self.sval('s6', [(3, 4096)], L_WUK); I('v_add_u32 v12, s6, v12')
        for ks in range(4):
            I(f'v_xor_b32 v13, {ks<<6}, v12'); I(f'ds_read_b128 {vr(48+4*ks,4)}, v13')
        self.stamp(2)
        I('s_mov_b32 s6, 12288'); I('v_mul_lo_u32 v9, v5, s6'); I('v_lshl_add_u32 v9, v4, 4, v9'); I('v_add_u32 v10, 24576, v9')
        self.base(44, P_WS, [(41, 512)], WS_MODP)
        I('v_lshrrev_b32 v11, 3, v4'); I('v_lshlrev_b32 v11, 6, v11'); I('v_and_b32 v12, 3, v4'); I('v_lshl_add_u32 v11, v12, 4, v11')
        I('v_bfe_u32 v12, v4, 2, 1'); I('v_lshl_add_u32 v11, v12, 3, v11'); I('v_lshl_add_u32 v11, v5, 8, v11'); I(f'v_add_u32 v11, {L_HV}, v11')
        I('v_and_b32 v12, 1, v2'); I('v_lshlrev_b32 v12, 8, v12'); I('v_lshl_add_u32 v12, v3, 4, v12'); I(f'v_add_u32 v12, {L_HV}, v12')
        I('v_lshlrev_b32 v13, 8, v2'); I('v_lshl_add_u32 v13, v3, 3, v13')
        self.base(46, P_WS, [(40, 2048), (41, 512), (3, 32)], WS_HQ)
        L = self.lab('h1s')
        L2 = self.lab('h1f')
        I('s_cmp_lg_u32 s3, 1'); e.branch('s_cbranch_scc1', L2)
        self.sleep(cfg.get('a_fb_pre', 0))
        self.flagcheck_issue(1, 16); self.flagcheck_finish(1, 16)
        e.label(L2); e.vm = []
        I('s_cmp_lg_u32 s3, 0'); e.branch('s_cbranch_scc1', L)
        self.sleep(cfg.get('a_fa_pre', 0))
        self.flagcheck_issue(0, 16)
        for k in range(8): I(f'v_mov_b32 v{20+k}, v{100+k}')
        I('v_mov_b32 v18, v108'); I('v_mov_b32 v19, v109')
        I('v_mov_b32 v28, 0x3f803f80'); I('v_mov_b32 v29, 0')
        for k in range(8): I(f'v_dot2_f32_bf16 v29, v{20+k}, v28, v29')
        self.ror_reduce([29], [8, 4, 2, 1]); self.cross(16, 29, 30)
        I(f'v_mul_f32 v29, {f32(1/512)}, v29')
        I('v_mov_b32 v30, 0')
        for k in range(8):
            I(f'v_lshlrev_b32 v31, 16, v{20+k}'); I('v_sub_f32 v31, v31, v29'); I('v_fmac_f32 v30, v31, v31')
            I(f'v_and_b32 v31, 0xffff0000, v{20+k}'); I('v_sub_f32 v31, v31, v29'); I('v_fmac_f32 v30, v31, v31')
        self.ror_reduce([30], [8, 4, 2, 1]); self.cross(16, 30, 31)
        I(f'v_mov_b32 v31, {f32(1e-5)}'); I(f'v_fmac_f32 v31, {f32(1/512)}, v30'); I('v_rsq_f32 v30, v31')
        I('v_lshlrev_b32 v20, 16, v18'); I('v_and_b32 v21, 0xffff0000, v18'); I('v_lshlrev_b32 v22, 16, v19'); I('v_and_b32 v23, 0xffff0000, v19')
        for k in range(4): I(f'v_sub_f32 v{20+k}, v{20+k}, v29')
        for k in range(4): I(f'v_mul_f32 v{20+k}, v{20+k}, v30')
        self.flagcheck_finish(0, 16)
        self.stamp(14)
        self.poll('h1', ['global_load_dwordx4 v[64:67], v9, s[44:45] sc1', 'global_load_dwordx4 v[68:71], v9, s[44:45] offset:2048 sc1',
                         'global_load_dwordx4 v[72:75], v10, s[44:45] sc1', 'global_load_dwordx4 v[76:79], v10, s[44:45] offset:2048 sc1'], range(64, 80), cfg['d_h1'], loop_sleep=cfg.get('h1_loop', 4))
        self.stamp(3)
        for k in range(4): I(f'v_add_f32 v{64+k}, v{64+k}, v{72+k}')
        for k in range(4): I(f'v_add_f32 v{68+k}, v{68+k}, v{76+k}')
        for k in range(4): I(f'v_add_f32 v{64+k}, v{64+k}, v{20+k}')
        for k in range(4): I(f'v_fmac_f32 v{64+k}, v{20+k}, v{68+k}')
        I('v_cvt_pk_bf16_f32 v64, v64, v65'); I('v_cvt_pk_bf16_f32 v65, v66, v67')
        I('ds_write_b64 v11, v[64:65]')
        e.label(L)
        e.barrier()
        for s in range(4): I(f'ds_read_b128 {vr(64+4*s,4)}, v12 offset:{s*64}', tag=f'hv{s}')
        for s in range(4):
            e.wait_lg(f'hv{s}')
            I(f'v_mfma_f32_16x16x32_bf16 v[80:83], {vr(32+4*s,4)}, {vr(64+4*s,4)}, {"0" if s == 0 else "v[80:83]"}')
        I('v_cvt_pk_bf16_f32 v80, v80, v81'); I('v_cvt_pk_bf16_f32 v81, v82, v83')
        self.exec_mask(48); I('global_store_dwordx2 v13, v[80:81], s[46:47] sc1'); self.exec_all()
        self.hu_set(WS_HU2, 96)
        self.stamp(4)
        I('v_and_b32 v9, 7, v2'); I('v_lshlrev_b32 v9, 8, v9'); I('v_lshl_add_u32 v9, v3, 4, v9')
        self.base(44, P_WS, [(40, 2048)], WS_HQ)
        I('v_lshlrev_b32 v13, 15, v2'); I('v_lshl_add_u32 v13, v3, 3, v13')
        self.base(46, P_WS, [(40, 1024), (41, 256), (3, 32)], WS_H2)
        I(f's_mov_b32 s56, {f32(128**-0.5*math.log2(math.e))}')
        if cfg.get('hq1', 1):
            Lq = self.lab('hq1')
            I(f'v_add_u32 v10, {L_HV+1024}, v6'); I(f'v_add_u32 v9, {L_HV+1024}, v9')
            I('s_cmp_lg_u32 s3, 0'); e.branch('s_cbranch_scc1', Lq)
            self.poll('hq', [f'global_load_dwordx4 {vr(64+4*k,4)}, v6, s[44:45] offset:{k*1024} sc1' for k in range(2)], range(64, 72), cfg['d_hq'], loop_sleep=cfg.get('hq_loop', 4))
            I('ds_write_b128 v10, v[64:67]'); I('ds_write_b128 v10, v[68:71] offset:1024')
            e.label(Lq); e.vm = []
            e.barrier()
            self.stamp(5)
            for ks in range(4): I(f'ds_read_b128 {vr(64+4*ks,4)}, v9 offset:{ks*64}')
            e.wait_lg()
        else:
            self.poll('hq', [f'global_load_dwordx4 {vr(64+4*ks,4)}, v9, s[44:45] offset:{ks*64} sc1' for ks in range(4)], range(64, 80), cfg['d_hq'])
            self.stamp(5)
        for ks in range(4): I(f'v_mfma_f32_16x16x32_bf16 v[80:83], {vr(48+4*ks,4)}, {vr(64+4*ks,4)}, {"0" if ks == 0 else "v[80:83]"}')
        self.ror_reduce(range(80, 84), [2, 4])
        for k in range(4): I(f'v_mul_f32 v{80+k}, s56, v{80+k}')
        I('v_cvt_pk_bf16_f32 v80, v80, v81'); I('v_cvt_pk_bf16_f32 v81, v82, v83')
        self.exec_mask(48); I('global_store_dwordx2 v13, v[80:81], s[46:47] sc1'); self.exec_all()
        self.stamp(6)
        e.barrier()
        I('s_cmp_lt_u32 s5, 8'); e.branch('s_cbranch_scc1', 'L_ROLE_F')
        I('s_lshl_b32 s43, s4, 2'); I('s_add_u32 s43, s43, s41')
        I('s_cmp_lt_u32 s5, 12'); e.branch('s_cbranch_scc1', 'L_LOAD_H')
        I('s_cmp_ge_u32 s43, 28'); e.branch('s_cbranch_scc1', 'L_FIN')
        self.sleep(cfg.get('g_pre', 0))
        for (P, Lb) in ((P_WG, L_WG), (P_WU, L_WU)):
            self.base(44, P, [(3, 64*3584), (43, 128)])
            self.dma_128(44, 3584, 8, [(3, 8192)], Lb, 'gu')
        e.wait_vm(); e.barrier()
        I('v_lshrrev_b32 v9, 2, v2'); I('v_lshl_add_u32 v9, v3, 2, v9')
        I('v_bfe_u32 v10, v9, 1, 2'); I('v_lshlrev_b32 v10, 1, v10'); I('v_xor_b32 v10, s3, v10'); I('v_lshlrev_b32 v10, 4, v10'); I('v_lshl_add_u32 v10, v9, 7, v10')
        I('v_and_b32 v9, 1, v2'); I('v_lshl_add_u32 v10, v9, 3, v10'); I('v_bfe_u32 v9, v2, 1, 1'); I('v_lshl_add_u32 v10, v9, 16, v10')
        for s in range(16):
            I(f'ds_read_b64_tr_b16 {vr(96+4*s,2)}, v10 offset:{s*4096}'); I(f'ds_read_b64_tr_b16 {vr(98+4*s,2)}, v10 offset:{s*4096+2048}')
        e.branch('s_branch', 'L_X1')
        e.label('L_LOAD_H'); e.vm = []; e.lg = []
        self.sleep(cfg.get('h_pre', 0))
        I('v_lshrrev_b32 v11, 1, v1'); I('v_lshlrev_b32 v11, 10, v11'); I('v_and_b32 v9, 1, v1'); I('v_lshl_add_u32 v11, v9, 4, v11')
        self.base(44, P_WD, [(3, 224*1024), (43, 32)])
        self.sval('s53', [(3, 7168)], L_WDN)
        for q in range(7):
            I(f's_add_u32 m0, s53, {q*1024}'); I('global_load_lds_dwordx4 v11, s[44:45] nt')
            if q < 6: I(f'v_add_u32 v11, {32*1024}, v11')
        e.wait_vm()
        I('v_add_u32 v8, s53, v7')
        for s in range(7):
            I(f'ds_read_b64_tr_b16 {vr(96+4*s,2)}, v8 offset:{s*1024}'); I(f'ds_read_b64_tr_b16 {vr(98+4*s,2)}, v8 offset:{s*1024+512}')
        e.label('L_X1'); e.vm = []; e.lg = ['x']
        self.stage_x1()
        e.label('L_ROLE_F'); e.vm = []; e.lg = []
        self.stage_f()

    def stage_f(self):
        e, I, cfg = self.e, self.I, self.cfg
        self.sleep(cfg.get('f_pre', 0))
        I('s_lshl_b32 s6, s4, 3'); I('s_add_u32 s6, s6, s5'); I('s_lshr_b32 s56, s6, 5'); I('s_and_b32 s57, s6, 31'); I('s_add_u32 s57, s57, 16')
        self.mod_tile(False, 64*K, 96*K, 98*K)
        self.base(44, P_WO, [(4, 512*1024), (3, 64*1024), (5, 128)])
        self.dma_128(44, 1024, 8, [(3, 8192)], L_WO, 'wo')
        self.tr_base_128(12, [(3, 8192)], L_WO)
        e.wait_vm()
        for t in range(4):
            I(f'v_xor_b32 v13, {t<<5}, v12')
            for s in range(2):
                I(f'ds_read_b64_tr_b16 {vr(96+8*t+4*s,2)}, v13 offset:{s*4096}'); I(f'ds_read_b64_tr_b16 {vr(98+8*t+4*s,2)}, v13 offset:{s*4096+2048}')
        self.stamp(7)
        I('v_and_b32 v9, 7, v2'); I('v_lshlrev_b32 v9, 8, v9'); I('v_lshl_add_u32 v9, v3, 4, v9')
        self.base(44, P_WS, [(4, 8192), (61, 2048), (62, 128)], WS_H4)
        I('v_and_b32 v10, 1, v2'); I('v_lshl_add_u32 v10, v3, 1, v10'); I('v_lshlrev_b32 v10, 9, v10'); I('v_lshrrev_b32 v11, 1, v2'); I('v_lshl_add_u32 v10, v11, 4, v10')
        self.sval('s6', [(3, 64)], L_FRED); I('v_add_u32 v10, s6, v10')
        I('v_lshlrev_b32 v11, 9, v3'); I('v_lshl_add_u32 v11, v2, 4, v11'); self.sval('s6', [(3, 2048)], L_FRED); I('v_add_u32 v11, s6, v11')
        I('v_and_b32 v12, 1, v3'); I('v_lshlrev_b32 v12, 11, v12'); I('v_lshrrev_b32 v13, 1, v3'); I('v_lshl_add_u32 v12, v13, 4, v12')
        self.base(46, P_WS, [(4, 4096), (5, 256), (3, 32)], WS_H5)
        I('s_mov_b32 s56, 0x00ff00ff'); I('s_mov_b32 s57, 0x00ff00ff'); I('s_mov_b32 s58, 0x00010001'); I('s_mov_b32 s59, 0x00010001')
        I('s_lshl_b32 s97, s4, 3'); I('s_add_u32 s97, s97, s5')
        self.hu_wait(WS_HU4, 96)
        self.stamp(8)
        self.poll('h4', ['global_load_dwordx4 v[64:67], v9, s[44:45] sc1', 'global_load_dwordx4 v[68:71], v9, s[44:45] offset:64 sc1'], range(64, 72), cfg['d_h4'], loop_sleep=cfg.get('h4_loop', 4))
        self.hu_set(WS_HU5, 97)
        self.stamp(9)
        for t in range(4): I(f'v_mfma_f32_16x16x32_bf16 {vr(72+4*t,4)}, {vr(96+8*t,4)}, v[64:67], 0')
        for t in range(4): I(f'v_mfma_f32_16x16x32_bf16 {vr(72+4*t,4)}, {vr(100+8*t,4)}, v[68:71], {vr(72+4*t,4)}')
        self.exec_mask(56)
        for t in range(4): I(f'ds_write_b128 v10, {vr(72+4*t,4)} offset:{t*4096}')
        self.exec_all()
        e.barrier()
        I('ds_read_b128 v[64:67], v11'); I('ds_read_b128 v[68:71], v11 offset:256'); e.wait_lg()
        for k in range(4): I(f'v_add_f32 v{64+k}, v{64+k}, v{68+k}')
        self.ror_reduce(range(64, 68), [8, 4, 2, 1])
        self.exec_mask(58); I('global_store_dwordx4 v12, v[64:67], s[46:47] sc1'); self.exec_all()
        self.stamp(10)
        e.branch('s_branch', 'L_FIN')

    def mod_tile(self, p1, lmt, lsc, lred, extra=None):
        e, I, cfg = self.e, self.I, self.cfg
        ws = WS_MODP if p1 else WS_MODQ
        if p1:
            LC = self.lab('oc')
            I('s_cmp_lg_u32 s3, 0'); e.branch('s_cbranch_scc1', LC)
            I('s_mov_b32 s6, 12288'); I('v_mul_lo_u32 v8, v3, s6'); I('v_lshl_add_u32 v8, v2, 4, v8')
            self.base(46, P_WS, [(56, 24576), (57, 256)], ws)
            I('s_mov_b32 exec_hi, 0'); I('global_store_dwordx4 v8, v[16:19], s[46:47] sc1'); self.exec_all()
            e.label(LC); e.vm = []
        I('v_and_b32 v8, 1, v3'); I('v_lshlrev_b32 v8, 10, v8'); I('v_lshl_add_u32 v8, v2, 2, v8'); self.sval('s6', [(56, 512), (3, 64)]); I('v_add_u32 v8, s6, v8')
        I(f'global_load_dword v24, v8, {sp(P_C)} {self.spol}', tag='c')
        self.base(44, P_WMOD, [(56, 256*6144), (3, 32*6144), (57, 128)])
        self.dma_128(44, 6144, 4, [(3, 4096)], lmt, 'wmod')
        e.wait_vm('c')
        if p1:
            LC2 = self.lab('of')
            saved = list(e.vm)
            I('s_cmp_lg_u32 s3, 0'); e.branch('s_cbranch_scc1', LC2)
            I('v_mov_b32 v8, s59'); I('v_mov_b32 v9, 1'); I('s_mov_b64 exec, 1')
            I(f'global_store_byte v8, v9, {sp(P_DBG)} sc1'); self.exec_all()
            e.label(LC2); e.vm = saved
        if extra and cfg.get('p1_extra', 1) == 1: extra()
        I('v_lshlrev_b32 v28, 16, v24'); I('v_and_b32 v29, 0xffff0000, v24')
        I(f's_mov_b32 s6, {f32(-math.log2(math.e))}')
        for r in (28, 29): I(f'v_mul_f32 v{r+2}, s6, v{r}')
        for r in (30, 31): I(f'v_exp_f32 v{r}, v{r}')
        for r in (30, 31): I(f'v_add_f32 v{r}, 1.0, v{r}')
        for r in (30, 31): I(f'v_rcp_f32 v{r}, v{r}')
        for r in (28, 29): I(f'v_mul_f32 v{r}, v{r}, v{r+2}')
        I('v_cvt_pk_bf16_f32 v28, v28, v29')
        self.sval('s6', [(3, 256)], lsc); I('v_lshlrev_b32 v8, 2, v1'); I('v_add_u32 v8, s6, v8'); I('ds_write_b32 v8, v28')
        I('v_and_b32 v9, 1, v2'); I('v_lshlrev_b32 v9, 6, v9'); I('v_lshl_add_u32 v9, v3, 3, v9'); I('v_add_u32 v9, s6, v9')
        e.wait_lg()
        I('ds_read2_b64 v[48:51], v9 offset0:0 offset1:4')
        self.tr_base_128(12, [(3, 4096)], lmt)
        I('v_lshlrev_b32 v14, 6, v2'); I('v_lshl_add_u32 v14, v3, 4, v14'); self.sval('s6', [(3, 512)], lred); I('v_add_u32 v14, s6, v14')
        I('v_lshrrev_b32 v15, 1, v2'); I('v_lshlrev_b32 v15, 9, v15'); I('v_and_b32 v10, 1, v2'); I('v_lshl_add_u32 v15, v10, 6, v15'); I('v_lshl_add_u32 v15, v3, 4, v15')
        self.sval('s6', [(55, 128)], lred); I('v_add_u32 v15, s6, v15')
        I('s_mov_b32 s6, 12288'); I('v_mul_lo_u32 v26, v2, s6'); I('v_lshl_add_u32 v26, v3, 4, v26')
        self.base(46, P_WS, [(56, 24576), (57, 256), (55, 64)], ws)
        e.wait_vm('wmod')
        if p1: self.stamp(13)
        if extra and cfg.get('p1_extra', 1) == 2:
            for r in (12, 14, 15): I(f'v_mov_b32 v{100+r}, v{r}')
            extra()
            for r in (12, 14, 15): I(f'v_mov_b32 v{r}, v{100+r}')
        for t in range(4):
            I(f'v_xor_b32 v13, {t<<5}, v12')
            I(f'ds_read_b64_tr_b16 {vr(56+4*t,2)}, v13', tag=f'mt{t}'); I(f'ds_read_b64_tr_b16 {vr(58+4*t,2)}, v13 offset:2048', tag=f'mt{t}')
        for t in range(4):
            e.wait_lg(f'mt{t}')
            I(f'v_mfma_f32_16x16x32_bf16 {vr(72+4*t,4)}, {vr(56+4*t,4)}, v[48:51], 0')
        self.exec_mask(48)
        for t in range(4): I(f'ds_write_b128 v14, {vr(72+4*t,4)} offset:{t*128}')
        self.exec_all()
        e.barrier()
        L = self.lab('mw')
        I('s_cmp_ge_u32 s3, 4'); e.branch('s_cbranch_scc1', L)
        I(f'ds_read_b128 v[72:75], v15'); e.wait_lg()
        self.ror_reduce(range(72, 76), [8, 4, 2])
        saved = list(e.vm)
        self.exec_mask(48); I('global_store_dwordx4 v26, v[72:75], s[46:47] sc1'); self.exec_all()
        e.label(L); e.vm = saved

    def hu_wait(self, ws, sidx, pre=0):
        e, I = self.e, self.I
        L = self.lab('hus')
        I('s_cmp_lg_u32 s3, 0'); e.branch('s_cbranch_scc1', L)
        self.base(98, P_WS, [(sidx, 128)], ws)
        I('v_mov_b32 v15, 0')
        self.poll('hu', ['global_load_dword v14, v15, s[98:99] sc1'], [14], pre, loop_sleep=self.cfg.get('hu_loop', 1))
        e.label(L)
        e.barrier()
    def hu_set(self, ws, sidx, wave=0):
        e, I = self.e, self.I
        L = self.lab('hset')
        saved = list(e.vm)
        I(f's_cmp_lg_u32 s3, {wave}'); e.branch('s_cbranch_scc1', L, flush=False)
        self.base(98, P_WS, [(sidx, 128)], ws)
        I('v_mov_b32 v251, 0'); I('s_mov_b64 exec, 1'); I('global_store_dword v251, v251, s[98:99] sc1'); self.exec_all()
        e.label(L, flush=False); e.vm = saved

    def stage_x1(self):
        e, I, cfg = self.e, self.I, self.cfg
        self.stamp(7)
        I('v_lshlrev_b32 v9, 4, v4'); I('v_lshl_add_u32 v9, v5, 3, v9'); I('v_lshrrev_b32 v10, 1, v9')
        self.base(44, P_X, [(60, 1024), (55, 256)])
        I('global_load_dword v16, v10, s[44:45]')
        self.base(44, P_WS, [(60, 12288), (55, 512)], WS_MODQ + 4096)
        I('v_add_u32 v10, 4096, v9'); I('v_add_u32 v11, 24576, v9'); I('v_add_u32 v12, 28672, v9')
        self.poll('mr', ['global_load_dwordx2 v[18:19], v9, s[44:45] sc1', 'global_load_dwordx2 v[20:21], v9, s[44:45] offset:2048 sc1', 'global_load_dwordx2 v[22:23], v10, s[44:45] sc1',
                         'global_load_dwordx2 v[26:27], v11, s[44:45] sc1', 'global_load_dwordx2 v[28:29], v11, s[44:45] offset:2048 sc1', 'global_load_dwordx2 v[30:31], v12, s[44:45] sc1'],
                  [18, 19, 20, 21, 22, 23, 26, 27, 28, 29, 30, 31], 0)
        for k in range(6): I(f'v_add_f32 v{18+k}, v{18+k}, v{26+k}')
        I('v_add_f32 v22, 1.0, v22'); I('v_add_f32 v23, 1.0, v23')
        I('v_and_b32 v17, 0xffff0000, v16'); I('v_lshlrev_b32 v16, 16, v16')
        I('v_and_b32 v10, 1, v2'); I('s_mov_b32 s6, 12288'); I('v_mul_lo_u32 v11, v10, s6'); I('v_lshl_add_u32 v11, v3, 4, v11'); I('v_add_u32 v12, 24576, v11')
        self.base(46, P_WS, [(43, 64)], WS_MODQ + 2560*4)
        self.poll('gb', ['global_load_dwordx4 v[84:87], v11, s[46:47] sc1', 'global_load_dwordx4 v[88:91], v12, s[46:47] sc1'], range(84, 92), 0)
        for k in range(4): I(f'v_add_f32 v{84+k}, v{84+k}, v{88+k}')
        I('v_lshlrev_b32 v9, 14, v5'); I('v_lshl_add_u32 v9, v4, 4, v9')
        for k in range(1, 4): I(f'v_add_u32 v{9+k}, {k*4096}, v9')
        self.base(44, P_WS, [(60, 2048), (55, 512)], WS_H5)
        I('v_lshrrev_b32 v13, 3, v4'); I('v_lshlrev_b32 v13, 6, v13'); I('v_and_b32 v26, 3, v4'); I('v_lshl_add_u32 v13, v26, 4, v13')
        I('v_bfe_u32 v26, v4, 2, 1'); I('v_lshl_add_u32 v13, v26, 3, v13'); I('v_lshl_add_u32 v13, v5, 2, v13')
        self.sval('s6', [(3, 256)], L_H2V); I('v_add_u32 v13, s6, v13')
        I('v_lshlrev_b32 v26, 4, v4'); I('v_lshl_add_u32 v26, v5, 3, v26'); self.sval('s6', [(3, 512)], L_X1); I('v_add_u32 v26, s6, v26')
        I('v_and_b32 v27, 1, v2'); I('v_lshlrev_b32 v27, 10, v27'); I('v_lshl_add_u32 v27, v3, 4, v27'); I(f'v_add_u32 v27, {L_H2V}, v27')
        self.sval('s6', [(3, 8)], L_XST); I('v_mov_b32 v24, s6'); self.sval('s6', [(60, 32)], L_XST); I('v_mov_b32 v25, s6')
        I('s_mov_b32 s6, 3584'); I('v_mul_lo_u32 v28, v2, s6'); I('v_lshl_add_u32 v28, v3, 4, v28')
        I('s_bfe_u32 s58, s3, 0x10001')
        self.base(46, P_WS, [(43, 128), (60, 64), (62, 32), (58, 8)], WS_H6)
        I('s_lshl_b32 s97, s4, 3'); I('s_add_u32 s97, s97, s5'); I('s_sub_u32 s97, s97, 8')
        self.hu_wait(WS_HU5, 97)
        self.stamp(8)
        self.poll('h5', [f'global_load_dwordx4 {vr(64+4*k,4)}, v{9+k}, s[44:45] sc1' for k in range(4)], range(64, 80), cfg['d_h5'], loop_sleep=cfg.get('h5_loop', 4))
        self.stamp(11)
        for k in range(4): I(f'v_add_f32 v{64+k}, v{64+k}, v{68+k}')
        for k in range(4): I(f'v_add_f32 v{72+k}, v{72+k}, v{76+k}')
        for k in range(4): I(f'v_add_f32 v{64+k}, v{64+k}, v{72+k}')
        I('v_permlane32_swap_b32 v64, v66'); I('v_permlane32_swap_b32 v65, v67')
        I('v_add_f32 v64, v64, v66'); I('v_add_f32 v65, v65, v67')
        I('v_fma_f32 v64, v18, v64, v16'); I('v_fma_f32 v65, v19, v65, v17')
        I('s_cmp_lt_u32 s5, 12'); e.branch('s_cbranch_scc1', 'L_ROLE_H')
        I('v_readfirstlane_b32 s56, v64')
        I('v_subrev_f32 v66, s56, v64'); I('v_subrev_f32 v67, s56, v65')
        I('v_add_f32 v68, v66, v67'); I('v_mul_f32 v69, v66, v66'); I('v_fmac_f32 v69, v67, v67')
        self.ror_reduce([68, 69], [8, 4, 2, 1])
        for w in (16, 32):
            I('v_mov_b32 v70, v68'); I('v_mov_b32 v71, v69'); I(f'v_permlane{w}_swap_b32 v68, v70'); I(f'v_permlane{w}_swap_b32 v69, v71'); I('v_add_f32 v68, v68, v70'); I('v_add_f32 v69, v69, v71')
        I(f'v_mul_f32 v70, {f32(1/128)}, v68'); I('v_fma_f32 v71, -v70, v68, v69'); I('v_add_f32 v70, s56, v70')
        I('ds_write_b64 v24, v[70:71]')
        e.barrier()
        I('ds_read_b128 v[68:71], v25'); I('ds_read_b128 v[72:75], v25 offset:16'); e.wait_lg()
        I('v_add_f32 v76, v68, v70'); I('v_add_f32 v77, v72, v74'); I('v_add_f32 v76, v76, v77'); I(f'v_mul_f32 v76, {f32(0.25)}, v76')
        I('v_add_f32 v77, v69, v71'); I('v_add_f32 v78, v73, v75'); I('v_add_f32 v77, v77, v78')
        for k in range(4): I(f'v_sub_f32 v{68+2*k}, v{68+2*k}, v76')
        I('v_mul_f32 v78, v68, v68')
        for k in range(1, 4): I(f'v_fmac_f32 v78, v{68+2*k}, v{68+2*k}')
        I(f'v_mov_b32 v79, {f32(1e-5)}'); I(f'v_fmac_f32 v79, {f32(1/512)}, v77'); I(f'v_fmac_f32 v79, {f32(128/512)}, v78'); I('v_rsq_f32 v79, v79')
        I('v_sub_f32 v64, v64, v76'); I('v_sub_f32 v65, v65, v76')
        I('v_mul_f32 v66, v79, v22'); I('v_mul_f32 v67, v79, v23')
        I('v_fma_f32 v64, v64, v66, v20'); I('v_fma_f32 v65, v65, v67, v21')
        I('v_cvt_pk_bf16_f32 v64, v64, v65'); I('ds_write_b32 v13, v64')
        e.barrier()
        for s in range(16): I(f'ds_read_b128 {vr(160+4*s,4)}, v27 offset:{s*64}', tag=f'h2{s}')
        for s in range(16):
            e.wait_lg(f'h2{s}')
            I(f'v_mfma_f32_16x16x32_bf16 {vr(72+4*(s&1),4)}, {vr(96+4*s,4)}, {vr(160+4*s,4)}, {"0" if s < 2 else vr(72+4*(s&1),4)}')
        c1 = -2*math.sqrt(2/math.pi)*math.log2(math.e)
        I(f's_mov_b32 s6, {f32(c1*0.044715)}'); I(f'v_mov_b32 v84, {f32(c1)}')
        for k in range(4): I(f'v_add_f32 v{72+k}, v{72+k}, v{76+k}')
        for k in range(4): I(f'v_mov_b32 v{76+k}, v{72+k}')
        for k in range(4): I(f'v_permlane32_swap_b32 v{72+k}, v{76+k}')
        for k in range(4): I(f'v_mul_f32 v{80+k}, v{72+k}, v{72+k}')
        for k in range(4): I(f'v_fma_f32 v{80+k}, v{80+k}, s6, v84')
        for k in range(4): I(f'v_mul_f32 v{80+k}, v{80+k}, v{72+k}')
        for k in range(4): I(f'v_exp_f32 v{80+k}, v{80+k}')
        for k in range(4): I(f'v_add_f32 v{80+k}, 1.0, v{80+k}')
        for k in range(4): I(f'v_rcp_f32 v{80+k}, v{80+k}')
        for k in range(4): I(f'v_mul_f32 v{72+k}, v{72+k}, v{76+k}')
        for k in range(4): I(f'v_mul_f32 v{72+k}, v{72+k}, v{80+k}')
        I('v_cvt_pk_bf16_f32 v72, v72, v73'); I('v_cvt_pk_bf16_f32 v73, v74, v75')
        I('s_mov_b32 exec_lo, 0x00030003'); I('s_mov_b32 exec_hi, 0')
        I('global_store_dwordx2 v28, v[72:73], s[46:47] sc1'); self.exec_all()
        self.stamp(12)
        e.branch('s_branch', 'L_FIN')
        e.label('L_ROLE_H'); e.vm = []; e.lg = []
        I('ds_write_b64 v26, v[64:65]')
        I('v_and_b32 v10, 1, v2'); I('s_mov_b32 s6, 3584'); I('v_mul_lo_u32 v9, v10, s6'); I('v_lshl_add_u32 v9, v3, 4, v9')
        I('v_lshlrev_b32 v11, 11, v10'); I('v_lshl_add_u32 v11, v3, 4, v11'); self.sval('s6', [(43, 64)], L_X1); I('v_add_u32 v11, s6, v11')
        I('v_lshlrev_b32 v14, 10, v10'); I('v_lshl_add_u32 v14, v3, 3, v14')
        I('v_lshlrev_b32 v12, 6, v2'); I('v_lshl_add_u32 v12, v3, 4, v12'); I(f'v_add_u32 v13, {L_GRED}, v12'); I('s_lshl_b32 s6, s3, 7'); I('v_add_u32 v12, s6, v13')
        self.base(46, P_OUT, [(43, 32)])
        self.base(44, P_WS, [(3, 448)], WS_H6)
        e.barrier()
        I('ds_read_b128 v[88:91], v11')
        self.poll('h6', [f'global_load_dwordx4 {vr(128+4*s,4)}, v9, s[44:45] offset:{s*64} sc1' for s in range(7)], range(128, 156), cfg['d_h6'])
        self.stamp(12)
        for s in range(7): I(f'v_mfma_f32_16x16x32_bf16 v[72:75], {vr(96+4*s,4)}, {vr(128+4*s,4)}, {"0" if s == 0 else "v[72:75]"}')
        self.exec_mask(48); I('ds_write_b128 v12, v[72:75]'); self.exec_all()
        e.barrier()
        I('s_cmp_lg_u32 s3, 0'); e.branch('s_cbranch_scc1', 'L_FIN')
        I('ds_read_b128 v[72:75], v13'); e.wait_lg()
        self.ror_reduce(range(72, 76), [8, 4, 2])
        for k in range(4): I(f'v_fma_f32 v{72+k}, v{84+k}, v{72+k}, v{88+k}')
        I('v_cvt_pk_bf16_f32 v72, v72, v73'); I('v_cvt_pk_bf16_f32 v73, v74, v75')
        self.exec_mask(48); I('global_store_dwordx2 v14, v[72:73], s[46:47]'); self.exec_all()
        self.stamp(13)
        e.branch('s_branch', 'L_FIN')

    def role_b(self):
        e, I, cfg = self.e, self.I, self.cfg
        I('s_mov_b32 s38, s2')
        I('s_lshr_b32 s39, s38, 6'); I('s_and_b32 s42, s38, 63')
        for k in range(4): I(f'v_mov_b32 v{16+k}, -1')
        I('s_lshl_b32 s6, s55, 4'); I('v_xor_b32 v20, s6, v6')
        for k in range(1, 4): I(f'v_xor_b32 v{20+k}, {k<<6}, v20')
        LNC = self.lab('nc')
        I('s_cmp_lt_u32 s38, 32'); e.branch('s_cbranch_scc1', 'L_MOD')
        I('s_cmp_ge_u32 s38, 64'); e.branch('s_cbranch_scc1', LNC)
        I('s_sub_u32 s43, s38, 32')
        self.sleep(cfg.get('bc_pre0', 0))
        self.base(44, P_WS, [(43, 16384), (3, 2048)], WS_HQ)
        for k in range(2): I(f'global_store_dwordx4 v6, v[16:19], s[44:45] offset:{k*1024} sc1')
        e.wait_vm(); e.barrier()
        L1 = self.lab('c1')
        I('s_cmp_lg_u32 s3, 0'); e.branch('s_cbranch_scc1', L1)
        I('v_mov_b32 v8, 0'); I('v_mov_b32 v9, 1'); I('s_mov_b64 exec, 1')
        I(f'global_atomic_add v10, v8, v9, {sp(P_DBG)} offset:64 sc0 sc1')
        I('s_waitcnt vmcnt(0)'); self.exec_all()
        I('v_readfirstlane_b32 s6, v10'); I('s_nop 3'); I('s_cmp_lg_u32 s6, 31'); e.branch('s_cbranch_scc1', L1)
        I('v_mov_b32 v9, 0x01010101'); I('s_mov_b64 exec, 1')
        I(f'global_store_dword v8, v9, {sp(P_DBG)} offset:128 sc1'); self.exec_all()
        e.label(L1); e.vm = ['x']
        self.stamp(1)
        self.sleep(cfg.get('bc_pre', 0))
        e.branch('s_branch', 'L_MODDONE')
        e.label('L_MOD'); e.vm = []; e.lg = []
        I('s_mov_b32 s59, s38'); I('s_lshr_b32 s56, s59, 4'); I('s_and_b32 s57, s59, 15')
        self.mod_tile(True, L_MT, L_SC, L_RED1)
        self.stamp(12)
        e.barrier()
        self.sleep(cfg.get('bp_pre', 0))
        e.branch('s_branch', 'L_MODDONE')
        e.label(LNC)
        self.sleep(cfg.get('b_pre', 0))
        e.label('L_MODDONE'); e.vm = ['x']; e.lg = ['x']
        self.stamp(2)
        self.base(46, P_CKV, [(39, 8388608), (42, 131072), (3, 4096)])
        self.sval('s53', [(3, 4096)], L_CKV)
        WIN = cfg.get('ckv_win', 4)
        ckv_next = [0]
        def ckv_issue(upto):
            while ckv_next[0] < min(upto, 16):
                n = ckv_next[0]; ch, k = n >> 2, n & 3
                if k == 0 and ch: I('s_add_u32 s46, s46, 32768'); I('s_addc_u32 s47, s47, 0')
                I(f's_add_u32 m0, s53, {ch*32768}')
                I(f'global_load_lds_dwordx4 v{20+k}, s[46:47] offset:{k*1024} nt', tag=f'ckv{n}')
                ckv_next[0] += 1
        ckv_issue(WIN)
        I('v_and_b32 v8, 3, v4'); I('v_lshlrev_b32 v8, 2, v8'); I('v_bfe_u32 v9, v4, 2, 2'); I('v_or_b32 v8, v8, v9'); I('v_xor_b32 v8, v8, v5')
        I('v_lshlrev_b32 v8, 4, v8'); I('v_lshl_add_u32 v24, v4, 10, v8')
        I('s_lshl_b32 s6, s60, 9'); I('v_add_u32 v24, s6, v24')
        I('s_lshl_b32 s6, s55, 15'); I('v_add_u32 v25, s6, v24')
        I(f'v_add_u32 v24, {L_QABS}, v24')
        I('v_lshrrev_b32 v8, 2, v2'); I('v_lshl_add_u32 v9, v5, 2, v8'); I('v_lshl_or_b32 v8, v8, 2, v5')
        I('v_and_b32 v10, 1, v3'); I('v_lshlrev_b32 v10, 1, v10'); I('v_bfe_u32 v11, v2, 1, 1'); I('v_or_b32 v10, v10, v11')
        I('s_lshl_b32 s6, s62, 3'); I('v_or_b32 v10, s6, v10')
        I('v_xor_b32 v10, v10, v8'); I('v_lshlrev_b32 v10, 4, v10'); I('v_lshl_add_u32 v10, v9, 10, v10')
        I('v_and_b32 v11, 1, v2'); I('v_lshl_add_u32 v10, v11, 3, v10')
        I('s_lshl_b32 s6, s61, 8'); I('v_add_u32 v10, s6, v10')
        for u in range(2):
            for jh in range(2):
                r = 26 + 2*u + jh
                I(f'v_xor_b32 v{r}, {(u<<6)|(jh<<5)}, v10')
                if jh: I(f'v_add_u32 v{r}, 8192, v{r}')
        QA, PV = 32, 96
        self.base(44, P_WS, [(39, 32768), (3, 4096)], WS_H2)
        h2loads = [f'global_load_dwordx4 {vr(160+4*k,4)}, v6, s[44:45] offset:{k*1024} sc1' for k in range(4)]
        for ch in range(4):
            for k in range(4):
                e.wait_vm(f'ckv{4*ch+k}'); ckv_issue(4*ch + k + 1 + WIN)
            if ch == 2: self.flagcheck_issue(1, 17)
            e.barrier()
            L = self.lab('qa')
            I(f's_cmp_lg_u32 s55, {ch}'); e.branch('s_cbranch_scc1', L)
            for k7 in range(8):
                I(f'v_xor_b32 v{8+(k7&1)}, {k7<<5}, v25')
                I(f'ds_read_b128 {vr(QA+4*k7,4)}, v{8+(k7&1)}'); I(f'ds_read_b128 {vr(QA+4*(k7+8),4)}, v{8+(k7&1)} offset:256')
            e.label(L)
            for ks in (2*ch, 2*ch+1):
                for u in range(2):
                    for jh in range(2):
                        I(f'ds_read_b64_tr_b16 {vr(PV+32*u+4*ks+2*jh,2)}, v{26+2*u+jh} offset:{(ks&3)*16384}')
            if ch == 1:
                for r in range(26, 30): I(f'v_add_u32 v{r}, 65536, v{r}')
        self.stamp(3)
        e.vm = ['flag']; self.flagcheck_finish(1, 17)
        self.hu_wait(WS_HU2, 38)
        self.stamp(10)
        self.poll('h2', h2loads, range(160, 176), cfg['d_h2'], loop_sleep=cfg.get('h2_loop', 8))
        self.stamp(4)
        self.sval('s6', [(3, 4096)], L_QABS)
        for k in range(4): I(f'v_mov_b32 v{16+k}, -1')
        for k in range(4):
            I(f'v_add_u32 v{8+k}, s6, v{20+k}')
            I(f'ds_write_b128 v{8+k}, {vr(160+4*k,4)} offset:{k*1024}')
        e.barrier()
        def qb(ks): return 160 + 4*ks if ks < 8 else 208 + 4*(ks-8)
        for k7 in range(8):
            I(f'v_xor_b32 v{8+(k7&3)}, {k7<<5}, v24')
            I(f'ds_read_b128 {vr(qb(k7),4)}, v{8+(k7&3)}', tag=f'qb{k7}'); I(f'ds_read_b128 {vr(qb(k7+8),4)}, v{8+(k7&3)} offset:256', tag=f'qb{k7+8}')
        order = []
        for k7 in range(8): order += [k7, k7+8]
        for n, ks in enumerate(order):
            e.wait_lg(f'qb{ks}')
            I(f'v_mfma_f32_32x32x16_bf16 v[192:207], {vr(QA+4*ks,4)}, {vr(qb(ks),4)}, {"0" if n == 0 else "v[192:207]"}')
            if n == 1:
                I('v_lshrrev_b32 v12, 3, v1'); I('v_lshlrev_b32 v12, 10, v12'); I('v_and_b32 v13, 7, v1'); I('v_lshl_add_u32 v12, v13, 4, v12')
                self.base(44, P_WS, [(38, 32768), (3, 128)], WS_H3)
                for q in range(4):
                    I(f'global_store_dwordx4 v12, v[16:19], s[44:45] sc1', tag='clr')
                    if q < 3: I('v_add_u32 v12, 8192, v12')
            if n == 5:
                self.base(44, P_WUV, [(41, 128*8192), (3, 16*8192), (40, 256)])
                self.dma_256(44, 8192, L_WUV, 'wuv', '32', vt=12)
        I('s_lshl_b32 s6, s3, 11'); I('v_add_u32 v8, s6, v6'); I('s_xor_b32 s6, s6, 8192'); I('v_add_u32 v9, s6, v6')
        LA, LB = self.lab('x0'), self.lab('x1')
        I('s_cmp_eq_u32 s60, 0'); e.branch('s_cbranch_scc1', LA)
        I(f'ds_write_b128 v8, v[192:195] offset:{L_XCH}'); I(f'ds_write_b128 v8, v[196:199] offset:{L_XCH+1024}')
        for k in range(8): I(f'v_mov_b32 v{240+k}, v{200+k}')
        e.branch('s_branch', LB)
        e.label(LA)
        I(f'ds_write_b128 v8, v[200:203] offset:{L_XCH}'); I(f'ds_write_b128 v8, v[204:207] offset:{L_XCH+1024}')
        for k in range(8): I(f'v_mov_b32 v{240+k}, v{192+k}')
        e.label(LB)
        e.barrier()
        I(f'ds_read_b128 v[192:195], v9 offset:{L_XCH}'); I(f'ds_read_b128 v[196:199], v9 offset:{L_XCH+1024}')
        I('v_lshlrev_b32 v10, 5, v4'); I('s_lshl_b32 s6, s3, 2'); I('v_add_u32 v11, s6, v10')
        e.wait_lg()
        for k in range(8): I(f'v_add_f32 v{192+k}, v{192+k}, v{240+k}')
        I('v_max3_f32 v200, v192, v193, v194'); I('v_max3_f32 v201, v195, v196, v197'); I('v_max3_f32 v200, v200, v198, v199'); I('v_max_f32 v200, v200, v201')
        self.cross(32, 200, 201, 'max')
        I(f'ds_write_b32 v11, v200 offset:{L_MAX}')
        e.barrier()
        I(f'ds_read_b128 v[240:243], v10 offset:{L_MAX}'); I(f'ds_read_b128 v[244:247], v10 offset:{L_MAX+16}')
        I('s_lshl_b32 s6, s55, 1'); I('s_add_u32 s6, s6, s60'); I('s_lshl_b32 s6, s6, 10'); I('v_add_u32 v12, s6, v6')
        e.wait_lg()
        I('v_max3_f32 v200, v240, v241, v242'); I('v_max3_f32 v204, v244, v245, v246'); I('v_max3_f32 v200, v200, v243, v247'); I('v_max_f32 v200, v200, v204')
        for k in range(8): I(f'v_sub_f32 v{192+k}, v{192+k}, v200')
        for k in range(8): I(f'v_exp_f32 v{192+k}, v{192+k}')
        for k in range(4): I(f'v_cvt_pk_bf16_f32 v{204+k}, v{192+2*k}, v{193+2*k}')
        I(f'ds_write_b128 v12, v[204:207] offset:{L_P}')
        for k in range(4): I(f'v_add_f32 v{192+k}, v{192+k}, v{196+k}')
        I('v_add_f32 v192, v192, v193'); I('v_add_f32 v194, v194, v195'); I('v_add_f32 v192, v192, v194')
        self.cross(32, 192, 193)
        I(f'ds_write_b32 v11, v192 offset:{L_SUM}')
        e.wait_vm('clr')
        e.barrier()
        self.stamp(5)
        for ks in range(8): I(f'ds_read_b128 {vr(32+4*ks,4)}, v6 offset:{L_P+ks*1024}', tag=f'p{ks}')
        L = self.lab('st')
        saved_lg = list(e.lg); saved_vm = list(e.vm)
        I('s_cmp_lg_u32 s3, 7'); e.branch('s_cbranch_scc1', L)
        I(f'ds_read_b128 v[64:67], v10 offset:{L_SUM}'); I(f'ds_read_b128 v[68:71], v10 offset:{L_SUM+16}')
        I('v_lshlrev_b32 v8, 9, v4')
        self.base(44, P_WS, [(39, 16384), (42, 8)], WS_ST)
        I('s_waitcnt lgkmcnt(0)')
        for k in range(4): I(f'v_add_f32 v{64+k}, v{64+k}, v{68+k}')
        I('v_add_f32 v64, v64, v65'); I('v_add_f32 v66, v66, v67'); I('v_add_f32 v201, v64, v66')
        I('s_mov_b32 exec_hi, 0')
        I('global_store_dwordx2 v8, v[200:201], s[44:45] sc1')
        self.exec_all()
        e.label(L); e.lg = saved_lg; e.vm = saved_vm
        if cfg.get('pv_prio'):
            L = self.lab('pr')
            I('s_cmp_ge_u32 s3, 4'); e.branch('s_cbranch_scc1', L); I('s_setprio 2'); e.label(L)
        for ks in range(8):
            e.wait_lg(f'p{ks}')
            for u in range(2):
                I(f'v_mfma_f32_32x32x16_bf16 {vr(208+16*u,16)}, {vr(32+4*ks,4)}, {vr(PV+32*u+4*ks,4)}, {"0" if ks == 0 else vr(208+16*u,16)}')
        I('v_lshlrev_b32 v8, 12, v5'); I('v_lshl_add_u32 v8, v4, 2, v8')
        for q in range(1, 4): I(f'v_add_u32 v{8+q}, {q*8192}, v8')
        self.base(44, P_WS, [(38, 32768), (3, 128)], WS_H3)
        for r in range(16):
            I(f'v_cvt_pk_bf16_f32 v{64+r}, v{208+r}, v{224+r}')
            I(f'global_store_dword v{8+(r>>2)}, v{64+r}, s[44:45] offset:{(r&3)*1024} sc1')
        if cfg.get('pv_prio'): I('s_setprio 0')
        self.stamp(6)
        I('v_lshlrev_b32 v9, 3, v3')
        self.base(44, P_WS, [(60, 16384), (40, 512), (55, 128)], WS_ST)
        self.poll('st', [f'global_load_dwordx2 {vr(48+2*k,2)}, v9, s[44:45] offset:{32*k} sc1' for k in range(4)], range(48, 56), cfg['d_st'], loop_sleep=cfg.get('st_loop', 4))
        self.stamp(7)
        I('v_max3_f32 v56, v48, v50, v52'); I('v_max_f32 v56, v56, v54')
        self.cross(16, 56, 57, 'max'); self.cross(32, 56, 57, 'max')
        for k in range(4): I(f'v_sub_f32 v{48+2*k}, v{48+2*k}, v56')
        for k in range(4): I(f'v_exp_f32 v{48+2*k}, v{48+2*k}')
        I('v_mul_f32 v57, v48, v49')
        for k in range(1, 4): I(f'v_fmac_f32 v57, v{48+2*k}, v{49+2*k}')
        self.cross(16, 57, 58); self.cross(32, 57, 58)
        self.sval('s6', [(3, 8)], L_EST); I('v_mov_b32 v10, s6'); I('ds_write_b64 v10, v[56:57]')
        self.sval('s6', [(60, 32)], L_EST); I('v_mov_b32 v10, s6')
        e.barrier()
        I('ds_read_b128 v[58:61], v10'); I('ds_read_b128 v[62:65], v10 offset:16')
        self.tr_base_256(12, L_WUV)
        for s in range(4):
            ro = 64*(s >> 1) + 16*(s & 1)
            I(f'ds_read_b64_tr_b16 {vr(96+4*s,2)}, v12 offset:{ro*256}'); I(f'ds_read_b64_tr_b16 {vr(98+4*s,2)}, v12 offset:{(ro+32)*256}')
        e.wait_lg()
        I('v_max3_f32 v66, v58, v60, v62'); I('v_max_f32 v66, v66, v64')
        for k in range(4): I(f'v_sub_f32 v{58+2*k}, v{58+2*k}, v66')
        for k in range(4): I(f'v_exp_f32 v{58+2*k}, v{58+2*k}')
        I('v_mul_f32 v67, v58, v59')
        for k in range(1, 4): I(f'v_fmac_f32 v67, v{58+2*k}, v{59+2*k}')
        I('v_rcp_f32 v67, v67'); I('v_sub_f32 v66, v56, v66'); I('v_exp_f32 v66, v66'); I('v_mul_f32 v66, v66, v67')
        for k in range(4): I(f'v_mul_f32 v{48+2*k}, v{48+2*k}, v66')
        I('v_lshlrev_b32 v9, 15, v3'); I('v_lshl_add_u32 v9, v2, 4, v9')
        for k in range(1, 4): I(f'v_add_u32 v{9+k}, {k*4*32768}, v9')
        self.base(44, P_WS, [(3, 16*32768), (40, 1024), (41, 256)], WS_H3)
        I('v_lshlrev_b32 v13, 4, v2'); I('v_lshl_add_u32 v13, v3, 2, v13'); self.sval('s6', [(3, 256)], L_EROW); I('v_add_u32 v13, s6, v13')
        I('v_and_b32 v14, 7, v2'); I('v_lshlrev_b32 v14, 8, v14'); I('v_lshl_add_u32 v14, v3, 4, v14'); I(f'v_add_u32 v14, {L_EROW}, v14')
        I('v_lshlrev_b32 v15, 6, v2'); I('v_lshl_add_u32 v15, v3, 4, v15')
        self.base(46, P_WS, [(40, 2048), (41, 512), (61, 64), (62, 8)], WS_H4)
        self.poll('h3', [f'global_load_dwordx4 {vr(64+4*k,4)}, v{9+k}, s[44:45] sc1' for k in range(4)], range(64, 80), cfg['d_h3'])
        self.hu_set(WS_HU4, 38)
        self.stamp(8)
        for q in range(4):
            for k in range(4):
                I(f'v_lshlrev_b32 v{88+2*k}, 16, v{64+4*q+k}'); I(f'v_and_b32 v{89+2*k}, 0xffff0000, v{64+4*q+k}')
            for k in range(8):
                if q == 0: I(f'v_mul_f32 v{80+k}, v48, v{88+k}')
                else: I(f'v_fmac_f32 v{80+k}, v{48+2*q}, v{88+k}')
        for k in range(4): I(f'v_permlane32_swap_b32 v{80+2*k}, v{81+2*k}')
        for k in range(4): I(f'v_add_f32 v{88+k}, v{80+2*k}, v{81+2*k}')
        I('v_permlane16_swap_b32 v88, v90'); I('v_permlane16_swap_b32 v89, v91')
        I('v_add_f32 v88, v88, v90'); I('v_add_f32 v89, v89, v91')
        I('v_cvt_pk_bf16_f32 v88, v88, v89'); I('ds_write_b32 v13, v88')
        e.barrier()
        for s in range(4): I(f'ds_read_b128 {vr(64+4*s,4)}, v14 offset:{s*64}', tag=f'er{s}')
        for s in range(4):
            e.wait_lg(f'er{s}')
            I(f'v_mfma_f32_16x16x32_bf16 v[80:83], {vr(96+4*s,4)}, {vr(64+4*s,4)}, {"0" if s == 0 else "v[80:83]"}')
        for qp in ('[1,0,3,2]', '[2,3,0,1]'):
            for k in range(4): I(f'v_add_f32_dpp v{80+k}, v{80+k}, v{80+k} quad_perm:{qp} {DPPM}')
        I('v_cvt_pk_bf16_f32 v80, v80, v81'); I('v_cvt_pk_bf16_f32 v81, v82, v83')
        self.exec_mask(50); I('global_store_dwordx2 v15, v[80:81], s[46:47] sc1'); self.exec_all()
        self.stamp(9)

def generate(cfg, path):
    g = Gen(cfg); g.build()
    body = g.e.text()
    hdr = open('cdna_kernels/' + NAME + '.s.ref').read().split('; @launch')[0]
    s = hdr + f'; @launch grid=(256,1,1) block=(512,1,1) lds={LDS_BYTES}\n'
    s += f'''.amdgcn_target "amdgcn-amd-amdhsa--gfx950"
.text
.globl {NAME}_kernel
.p2align 8
.type {NAME}_kernel,@function
{NAME}_kernel:
{body}.section .rodata,"a"
.p2align 6
.amdhsa_kernel {NAME}_kernel
  .amdhsa_next_free_vgpr 256
  .amdhsa_next_free_sgpr 102
  .amdhsa_accum_offset 256
  .amdhsa_group_segment_fixed_size 0
  .amdhsa_kernarg_size 120
  .amdhsa_user_sgpr_count 2
  .amdhsa_user_sgpr_kernarg_segment_ptr 1
  .amdhsa_system_sgpr_workgroup_id_x 1
.end_amdhsa_kernel
'''
    import subprocess, re, os
    kb = 40
    for it in range(2):
        open(path, 'w').write(s.replace('CODE_KB', str(kb)))
        subprocess.check_call(['clang', '-x', 'assembler', '-target', 'amdgcn-amd-amdhsa', '-mcpu=gfx950', '-c', path, '-o', path + '.o'])
        h = subprocess.check_output(['llvm-objdump', '-h', path + '.o']).decode()
        size = int(re.search(r'\.text\s+([0-9a-f]+)', h).group(1), 16)
        kb = size >> 10
        os.remove(path + '.o')
    g.size = size
    return g

DEFAULT = dict(stamps=0, d_h1=0, d_hq=10, d_h2=30, d_st=0, d_h3=16, d_h4=12, d_h5=12, d_h6=30, pv_prio=1, b_pre=30, bc_pre=8, f_pre=40, g_pre=40, h_pre=40)
if __name__ == '__main__':
    cfg = dict(DEFAULT)
    out = 'cdna_kernels/' + NAME + '.s'
    for a in sys.argv[1:]:
        k, v = a.split('=')
        if k == 'out': out = v
        else: cfg[k] = int(v)
    g = generate(cfg, out)
    print('instrs', len(g.e.lines), 'nops', g.e.nops, 'maxv', g.e.maxv, 'size', g.size)
```

```python
import re
TRANS = ('v_exp_f32','v_log_f32','v_rcp_f32','v_rsq_f32','v_sqrt_f32','v_sin_f32','v_cos_f32')
def regs_of(tok):
    tok = tok.strip()
    tok = tok.lstrip('-')
    m = re.match(r'^abs\((.*)\)$', tok)
    if m: tok = m.group(1)
    m = re.match(r'^\|(.*)\|$', tok)
    if m: tok = m.group(1)
    m = re.match(r'^([vsa])(\d+)$', tok)
    if m: return [(m.group(1), int(m.group(2)))]
    m = re.match(r'^([vsa])\[(\d+):(\d+)\]$', tok)
    if m: return [(m.group(1), i) for i in range(int(m.group(2)), int(m.group(3)) + 1)]
    if tok == 'vcc': return [('s', 106), ('s', 107)]
    if tok == 'vcc_lo': return [('s', 106)]
    if tok == 'vcc_hi': return [('s', 107)]
    if tok == 'exec': return [('s', 126), ('s', 127)]
    if tok == 'm0': return [('s', 124)]
    return []

class Emitter:
    def __init__(self):
        self.secs = {'early': [], 'main': []}
        self.lines = self.secs['early']
        self.ncont = 0
        self.n = 0
        self.valu_w = {}
        self.trans_w = {}
        self.mfma_w = {}
        self.mfma_c = {}
        self.st_data = {}
        self.sgpr_valu_w = {}
        self.m0_w = -100
        self.dot_w = {}
        self.vm = []
        self.lg = []
        self.nops = 0
        self.maxv = 0
    def comment(self, s): self.lines.append('  ; ' + s)
    def _nop(self, k):
        while k > 0:
            c = min(k, 16)
            self.lines.append(f'  s_nop {c-1}')
            self.n += c; k -= c; self.nops += c
    def _need(self, idx, req):
        return req - (self.n - idx - 1)
    def flush(self):
        need = 0
        for (idx, p, d) in self.mfma_w.values(): need = max(need, self._need(idx, 12 if p == 8 else 8))
        for idx in self.valu_w.values(): need = max(need, self._need(idx, 2))
        for idx in self.dot_w.values(): need = max(need, self._need(idx, 3))
        for idx in self.sgpr_valu_w.values(): need = max(need, self._need(idx, 5))
        for idx in self.st_data.values(): need = max(need, self._need(idx, 2))
        need = max(need, self._need(self.m0_w, 1))
        self._nop(need)
    def label(self, name, flush=True):
        if flush: self.flush()
        self.lines.append(name + ':')
    def I(self, text, tag=None):
        text = text.strip()
        mn = text.split()[0]
        rest = text[len(mn):].strip()
        ops = [o.strip() for o in rest.split(',')] if rest else []
        toks = []
        for o in ops:
            t = o.split()[0] if o.split() else ''
            toks.append(t)
        is_dpp = ('_dpp' in mn) or ('quad_perm' in text) or ('row_' in text)
        if 'quad_perm:[' in text or 'op_sel' in text:
            base = re.split(r'\s(?:quad_perm|op_sel|row_|bitop3|neg_)', ' ' + rest)[0]
            toks = [o.strip().split()[0] for o in base.split(',') if o.strip()]
        reads, writes = [], []
        kind = 'other'
        need = 0
        if mn.startswith('v_mfma'):
            kind = 'mfma'
            passes = 8 if '32x32' in mn else 4
            d = regs_of(toks[0]); a = regs_of(toks[1]); b = regs_of(toks[2]); c = regs_of(toks[3])
            for r in a + b + c:
                if r in self.valu_w: need = max(need, self._need(self.valu_w[r], 2))
                if r in self.dot_w: need = max(need, self._need(self.dot_w[r], 3))
            for r in a + b:
                if r in self.mfma_w:
                    idx, p, dd = self.mfma_w[r]; need = max(need, self._need(idx, 12 if p == 8 else 8))
            for r in c:
                if r in self.mfma_w:
                    idx, p, dd = self.mfma_w[r]
                    if tuple(c) == dd and p == passes: pass
                    else: need = max(need, self._need(idx, 10 if p == 8 else 6))
            if tuple(c) != tuple(d):
                for r in d:
                    if r in self.mfma_w:
                        idx, p, dd = self.mfma_w[r]; need = max(need, self._need(idx, 12 if p == 8 else 8))
            self._nop(need)
            for r in d: self.mfma_w[r] = (self.n, passes, tuple(d)); self.valu_w.pop(r, None)
            for r in c: self.mfma_c[r] = (self.n, passes)
            allr = d + a + b + c
        elif mn.startswith('v_'):
            kind = 'valu'
            dst = regs_of(toks[0]); srcs = []
            k = 1
            if mn.startswith(('v_add_co', 'v_sub_co', 'v_addc_co', 'v_subb_co')):
                dst += regs_of(toks[1]); k = 2
            for t in toks[k:]: srcs += regs_of(t)
            if mn.startswith(('v_fmac', 'v_dot2c', 'v_permlane')) or is_dpp: srcs += regs_of(toks[0])
            if mn.startswith('v_permlane'): dst += regs_of(toks[1])
            if mn.startswith('v_cndmask') and len(toks) == 3: srcs += regs_of('vcc')
            if mn.startswith('v_writelane'): srcs += regs_of(toks[0])
            for r in srcs:
                if r[0] in 'va':
                    if r in self.valu_w:
                        req = 0
                        if is_dpp or mn.startswith('v_permlane'): req = 2
                        elif mn.startswith(('v_readlane', 'v_readfirstlane')): req = 1
                        need = max(need, self._need(self.valu_w[r], req))
                    if r in self.trans_w and mn.split('_e')[0] not in TRANS: need = max(need, self._need(self.trans_w[r], 1))
                    if r in self.dot_w:
                        same_c = mn.startswith('v_dot2_f32') and regs_of(toks[3]) == [r] and r not in regs_of(toks[1]) + regs_of(toks[2])
                        if not same_c: need = max(need, self._need(self.dot_w[r], 3))
                    if r in self.mfma_w:
                        idx, p, dd = self.mfma_w[r]; need = max(need, self._need(idx, 12 if p == 8 else 8))
                else:
                    if r in self.sgpr_valu_w:
                        req = 4 if mn.startswith(('v_readlane', 'v_writelane')) else 2
                        need = max(need, self._need(self.sgpr_valu_w[r], req))
            for r in dst:
                if r[0] in 'va':
                    if r in self.mfma_w:
                        idx, p, dd = self.mfma_w[r]; need = max(need, self._need(idx, 12 if p == 8 else 8))
                    if r in self.mfma_c:
                        idx, p = self.mfma_c[r]; need = max(need, self._need(idx, 7 if p == 8 else 3))
                    if r in self.st_data: need = max(need, self._need(self.st_data[r], 2))
            self._nop(need)
            for r in dst:
                if r[0] in 'va':
                    self.valu_w[r] = self.n; self.mfma_w.pop(r, None)
                    if mn in TRANS: self.trans_w[r] = self.n
                    else: self.trans_w.pop(r, None)
                    if mn.startswith('v_dot'): self.dot_w[r] = self.n
                    else: self.dot_w.pop(r, None)
                else: self.sgpr_valu_w[r] = self.n
            allr = dst + srcs
        elif mn.startswith(('global_', 'ds_', 'buffer_')):
            kind = 'mem'
            isload = ('load' in mn and 'lds' not in mn) or mn.startswith(('ds_read', 'ds_bpermute', 'ds_swizzle', 'ds_permute', 'ds_add_rtn'))
            dst = regs_of(toks[0]) if isload else []
            srcs = []
            for t in (toks[1:] if isload else toks): srcs += regs_of(t)
            for r in srcs + dst:
                if r[0] in 'va':
                    if r in self.dot_w: need = max(need, self._need(self.dot_w[r], 3))
                    if r in self.mfma_w:
                        idx, p, dd = self.mfma_w[r]; need = max(need, self._need(idx, 12 if p == 8 else 8))
                elif r in self.sgpr_valu_w: need = max(need, self._need(self.sgpr_valu_w[r], 5))
            for r in dst:
                if r in self.st_data: need = max(need, self._need(self.st_data[r], 1))
                if r in self.mfma_c:
                    idx, p = self.mfma_c[r]; need = max(need, self._need(idx, 7 if p == 8 else 3))
            if 'lds' in mn: need = max(need, self._need(self.m0_w, 1))
            self._nop(need)
            if 'store' in mn and ('x4' in mn or 'x3' in mn):
                for r in regs_of(toks[1]): self.st_data[r] = self.n
            for r in dst:
                self.valu_w.pop(r, None); self.mfma_w.pop(r, None); self.trans_w.pop(r, None)
            if mn.startswith('ds_'): self.lg.append(tag)
            else: self.vm.append(tag)
            allr = dst + srcs
        else:
            allr = []
            if toks and toks[0] == 'm0': self.m0_w = self.n
            if toks:
                for r in regs_of(toks[0]):
                    if r[0] == 's': self.sgpr_valu_w.pop(r, None) if not mn.startswith(('s_cmp', 's_cbranch', 's_bitcmp')) else None
            if mn == 's_nop':
                self.lines.append('  ' + text); self.n += int(toks[0]) + 1; return
        for r in allr:
            if r[0] == 'v': self.maxv = max(self.maxv, r[1])
        self.lines.append('  ' + text)
        self.n += 1
    def wait_vm(self, tag=None):
        if tag is None: n = 0
        else:
            idxs = [i for i, t in enumerate(self.vm) if t == tag]
            if not idxs: return
            n = len(self.vm) - 1 - idxs[-1]
        assert n <= 63
        self.I(f's_waitcnt vmcnt({n})')
        self.vm = self.vm[len(self.vm) - n:] if n else []
    def wait_lg(self, tag=None):
        if tag is None or 'SMEM' in self.lg: n = 0
        else:
            idxs = [i for i, t in enumerate(self.lg) if t == tag]
            if not idxs: return
            n = len(self.lg) - 1 - idxs[-1]
        if n > 15: n = 15
        self.I(f's_waitcnt lgkmcnt({n})')
        self.lg = self.lg[len(self.lg) - n:] if n else []
    def barrier(self):
        self.wait_lg()
        self.I('s_barrier')
    def branch(self, op, target, flush=True):
        if flush: self.flush()
        self.I(f'{op} {target}')
    def sec(self, name): self.lines = self.secs[name]
    def cont(self):
        self.ncont += 1
        self.I(f's_branch L_CONT_{self.ncont}')
        self.sec('main'); self.lines.append(f'L_CONT_{self.ncont}:')
    def text(self): return '\n'.join(self.secs['early'] + self.secs['main']) + '\n'
```

```python
import sys, math, struct
sys.path.insert(0, 'work')
from emit import Emitter
NAME = 'adaLN_cond__compressed_kv_cla__glu_gated_geglu__decode'
def f32(x): return '0x%08x' % struct.unpack('<I', struct.pack('<f', x))[0]

WS_MODP, WS_HQ, WS_H2, WS_ST, WS_H4, WS_H5, WS_H6, WS_MODQ, WS_H3, WS_DBG = 0x0, 0x10000, 0x20000, 0x30000, 0x38000, 0x48000, 0x50000, 0x58000, 0x100000, 0x600000
WS_HU2, WS_HU4, WS_HU5 = 0x68000, 0x6C000, 0x70000
WS_H7 = 0x7C000
WS_HQ2 = 0x10000
WS_FL2 = 0x98000
WS_GOC, WS_FL = 0x74000, 0x78000
CLR_BYTES = 0x54000
K = 1024
L_WQ, L_WUK = 0, 32*K
L_S = 128*K
L_HV = L_S
L_CKV, L_QABS = 0, 128*K
L_MT, L_SC, L_RED1 = 128*K, 96*K, 98*K
L_XCH, L_MAX, L_SUM, L_P = 0, 16*K, 17*K, 24*K
L_WUV = 32*K
L_EST, L_EROW, L_EST2 = L_S, L_S + 1*K, L_S + 4*K
L_WO, L_WG, L_WU, L_WDN = 0, 0, 64*K, 0
L_FRED, L_XST, L_H2V, L_GRED, L_X1 = L_S, L_S+16*K, L_S+17*K, L_S+20*K, L_S+22*K
L_OUT = L_S + 30*K
LDS_BYTES = 160*K
SPIN = 60000

P_X, P_CKV, P_WQ, P_WUK, P_WUV, P_WO, P_WG, P_WU, P_WD, P_C, P_WMOD, P_OUT, P_DBG, P_WS = 8, 10, 12, 14, 16, 18, 22, 24, 26, 28, 30, 32, 34, 36
def sp(p): return f's[{p}:{p+1}]'
def vr(a, n): return f'v[{a}:{a+n-1}]' if n > 1 else f'v{a}'
POL = ['sc1', 'sc1 nt', 'sc0 sc1', 'sc0 sc1 nt']
DPPM = 'row_mask:0xf bank_mask:0xf'

DOC = """
One persistent launch, 256 workgroups x 8 waves, stages chained through d_ws.
 B group (wg<128): adaLN shift/scale tiles or buffer reset, stream 128 keys of c_kv, absorbed QK^T, softmax, PV,
                   then per (head, latent quarter): merge of the 128 partial outputs and w_uv.
 A group (wg>=128): q = h.w_q, q_abs = q.w_uk, then w_o tiles / MLP slices (LayerNorm folded in after the matmul) / output.
Hand-offs: small buffers are reset to all-ones in this launch (flag in d_debug) and every word read is checked against it;
 the first hand-off carries a per-launch clock tag, the partial outputs are covered by a record written after they completed.
 Clock values exchanged between stages only pace the first look of a consumer (polling lines under write is slow);
 every wait is bounded and results do not depend on timing or on where a workgroup runs.
"""

class Gen:
    def __init__(self, cfg):
        self.cfg = cfg
        cfg['skip'] = {0: '', 1: 'wuk', 2: 'wq', 3: 'wuk wq', 4: 'wuv'}[cfg.get('skipk', 0)]
        self.e = Emitter(); self.I = self.e.I
        self.uid = 0
        self.spol = 'nt' if cfg.get('small_nt', 0) else ''
    def lab(self, s): self.uid += 1; return f'L_{s}_{self.uid}'
    def stamp(self, k):
        if not self.cfg.get('stamps'): return
        self.I(f's_memrealtime s[{64+2*k}:{65+2*k}]'); self.e.lg.append('SMEM')
    def base(self, dst, ptr, terms, const=0):
        I = self.I
        first = True
        for (s, m) in terms:
            t = 's6' if first else 's7'
            I(f's_mul_i32 {t}, s{s}, {m}')
            if not first: I('s_add_u32 s6, s6, s7')
            first = False
        if first: I(f's_mov_b32 s6, {const}')
        elif const: I(f's_add_u32 s6, s6, {const}')
        I(f's_add_u32 s{dst}, s{ptr}, s6'); I(f's_addc_u32 s{dst+1}, s{ptr+1}, 0')
    def sval(self, dst, terms, const=0):
        I = self.I
        first = True
        for (s, m) in terms:
            t = dst if first else 's7'
            I(f's_mul_i32 {t}, s{s}, {m}')
            if not first: I(f's_add_u32 {dst}, {dst}, s7')
            first = False
        if first: I(f's_mov_b32 {dst}, {const}')
        elif const: I(f's_add_u32 {dst}, {dst}, {const}')
    def sleep(self, n):
        while n > 0:
            k = min(n, 127); self.I(f's_sleep {k}'); n -= k
    def maxtree(self, regs, t):
        I = self.I
        regs = list(regs)
        if len(regs) == 1: return regs[0]
        if len(regs) == 2: I(f'v_max_u32 v{t}, v{regs[0]}, v{regs[1]}'); return t
        I(f'v_max3_u32 v{t}, v{regs[0]}, v{regs[1]}, v{regs[2]}'); k = 3
        while k < len(regs):
            if k + 1 < len(regs): I(f'v_max3_u32 v{t}, v{t}, v{regs[k]}, v{regs[k+1]}'); k += 2
            else: I(f'v_max_u32 v{t}, v{t}, v{regs[k]}'); k += 1
        return t
    def poll(self, name, loads, regs, pre, loop_sleep=2, t=8, onfail=None):
        e, I = self.e, self.I
        L, D = self.lab(name), self.lab(name + 'd')
        I(f's_mov_b32 s54, {SPIN}')
        self.sleep(pre)
        e.label(L, flush=True)
        for ld in loads: I(ld)
        e.wait_vm()
        r = self.maxtree(regs, t)
        I(f'v_cmp_eq_u32 vcc, -1, v{r}')
        I(f's_cbranch_vccz {D}')
        if onfail: onfail()
        I(f's_sleep {loop_sleep}')
        I('s_sub_u32 s54, s54, 1')
        I(f's_cbranch_scc0 {L}')
        e.label(D, flush=False); e.vm = []
    def flag_ld(self, which, dst, tag=None):
        if which == 0: self.I('v_and_b32 v8, 7, v1'); self.I('v_lshlrev_b32 v8, 2, v8')
        else: self.I('v_mov_b32 v8, 128')
        self.I(f'global_load_dword v{dst}, v8, {sp(P_DBG)} sc1', tag=tag)
    def flagcheck_issue(self, which, dst): self.flag_ld(which, dst, 'flag')
    def flagcheck_finish(self, which, dst):
        e, I = self.e, self.I
        L, D = self.lab('fl'), self.lab('fld')
        I(f's_mov_b32 s54, {SPIN}'); I('s_mov_b32 s63, 0x01010101')
        e.wait_vm('flag')
        e.label(L, flush=True)
        I(f'v_cmp_ne_u32 vcc, s63, v{dst}')
        I(f's_cbranch_vccz {D}')
        I('s_sleep 6')
        saved = list(e.vm)
        self.flag_ld(which, dst)
        I('s_waitcnt vmcnt(0)')
        I('s_sub_u32 s54, s54, 1')
        I(f's_cbranch_scc0 {L}')
        e.label(D, flush=False)
        e.vm = saved
    def ror_reduce(self, regs, steps, op='add'):
        for s in steps:
            for r in regs: self.I(f'v_{op}_f32_dpp v{r}, v{r}, v{r} row_ror:{s} {DPPM}')
    def cross(self, which, r, t, op='add'):
        I = self.I
        I(f'v_mov_b32 v{t}, v{r}'); I(f'v_permlane{which}_swap_b32 v{r}, v{t}'); I(f'v_{op}_f32 v{r}, v{r}, v{t}')
    def exec_mask(self, pair): self.I(f's_mov_b64 exec, s[{pair}:{pair+1}]')
    def exec_all(self): self.I('s_mov_b64 exec, -1')

    def dma_128(self, sbase, pitch, ninstr, lds_terms, lds_const, tag, vt=11, pol='nt'):
        I = self.I
        I(f'v_lshlrev_b32 v{vt}, 1, v3'); I('v_and_b32 v9, 7, v1'); I(f'v_xor_b32 v{vt}, v{vt}, v9'); I(f'v_lshlrev_b32 v{vt}, 4, v{vt}')
        I('v_lshrrev_b32 v9, 3, v1'); I(f's_mov_b32 s6, {pitch}'); I('v_mul_lo_u32 v9, v9, s6'); I(f'v_add_u32 v{vt}, v{vt}, v9')
        self.sval('s53', lds_terms, lds_const)
        if self.cfg.get('noload') and tag in ('gu', 'wo', 'ga', 'up'): ninstr = 1
        for q in range(ninstr):
            I(f's_add_u32 m0, s53, {q*1024}')
            I(f'global_load_lds_dwordx4 v{vt}, s[{sbase}:{sbase+1}] {pol}', tag=tag)
            if q < ninstr - 1: I(f'v_add_u32 v{vt}, {8*pitch}, v{vt}')
    def tr_base_128(self, dst, lds_terms, lds_const):
        I = self.I
        I('v_lshrrev_b32 v9, 2, v2'); I('v_lshl_add_u32 v9, v3, 2, v9')
        I(f'v_bfe_u32 v{dst}, v9, 1, 2'); I(f'v_lshlrev_b32 v{dst}, 5, v{dst}'); I(f'v_lshl_add_u32 v{dst}, v9, 7, v{dst}')
        I('v_and_b32 v9, 3, v2'); I(f'v_lshl_add_u32 v{dst}, v9, 3, v{dst}')
        self.sval('s6', lds_terms, lds_const); I(f'v_add_u32 v{dst}, s6, v{dst}')
    def dma_256(self, sbase, pitch, lds_const, tag, swz, vt=11, pol='nt'):
        I = self.I
        I(f's_mov_b32 s6, {pitch}'); I('v_mul_lo_u32 v9, v3, s6')
        if swz == '32': I(f'v_lshlrev_b32 v{vt}, 1, v3')
        else: I(f'v_mov_b32 v{vt}, v3')
        I(f'v_xor_b32 v{vt}, v{vt}, v2'); I(f'v_lshl_add_u32 v{vt}, v{vt}, 4, v9')
        self.sval('s53', [(3, 4096)], lds_const)
        for q in range(4 if tag not in self.cfg.get('skip', '') else 1):
            x = ((q & 1) << 7) if swz == '32' else (q << 6)
            if q: I(f'v_xor_b32 v{vt+1}, {x}, v{vt}'); I(f'v_add_u32 v{vt+1}, {q*4*pitch}, v{vt+1}')
            I(f's_add_u32 m0, s53, {q*1024}')
            I(f'global_load_lds_dwordx4 v{vt+1 if q else vt}, s[{sbase}:{sbase+1}] {pol}', tag=tag)
    def tr_base_256(self, dst, lds_const):
        I = self.I
        I('v_lshrrev_b32 v9, 2, v2'); I('v_lshl_add_u32 v9, v3, 2, v9')
        I(f'v_and_b32 v{dst}, 7, v9'); I(f'v_xor_b32 v{dst}, s3, v{dst}'); I(f'v_lshlrev_b32 v{dst}, 5, v{dst}'); I(f'v_lshl_add_u32 v{dst}, v9, 8, v{dst}')
        I('v_and_b32 v9, 3, v2'); I(f'v_lshl_add_u32 v{dst}, v9, 3, v{dst}')
        if lds_const: I(f'v_add_u32 v{dst}, {lds_const}, v{dst}')

    def build(self):
        e, I, cfg = self.e, self.I, self.cfg
        for l in DOC.strip().split('\n'): e.comment(l)
        I('s_cmp_ge_u32 s2, 256'); I('s_cbranch_scc1 L_END')
        I('s_load_dwordx16 s[8:23], s[0:1], 0'); I('s_load_dwordx8 s[24:31], s[0:1], 64')
        I('s_load_dwordx4 s[32:35], s[0:1], 96'); I('s_load_dwordx2 s[36:37], s[0:1], 112')
        if cfg.get('stamps'):
            I('s_memrealtime s[64:65]')
            for k in range(66, 96): I(f's_mov_b32 s{k}, 0')
        I('s_memrealtime s[100:101]')
        I('s_getpc_b64 s[44:45]')
        I('v_and_b32 v1, 63, v0'); I('v_lshrrev_b32 v8, 6, v0')
        I('v_and_b32 v2, 15, v0'); I('v_readfirstlane_b32 s3, v8')
        I('v_bfe_u32 v3, v0, 4, 2'); I('v_and_b32 v4, 31, v0'); I('v_bfe_u32 v5, v0, 5, 1')
        I('v_lshlrev_b32 v6, 4, v1'); I('v_lshlrev_b32 v7, 3, v1')
        I('s_and_b32 s4, s2, 7'); I('s_lshr_b32 s5, s2, 3')
        I(f'v_add_u32 v253, {L_OUT}, v6')
        I('s_and_b32 s44, s44, 0xffffff00')
        I('s_sub_u32 s6, s5, 12'); I('s_cmp_ge_u32 s6, 4'); I('s_cbranch_scc1 L_NOPF')
        I('s_sub_u32 s7, s3, 2'); I('s_cmp_ge_u32 s7, 6'); I('s_cbranch_scc1 L_NOPF')
        I('s_mul_i32 s6, s6, 6'); I('s_add_u32 s6, s6, s7'); I('s_add_u32 s6, s6, 1')
        I(f's_cmp_ge_u32 s6, CODE_KB'); I('s_cbranch_scc1 L_NOPF')
        I('s_lshl_b32 s6, s6, 10'); I('v_add_u32 v8, s6, v6')
        I('global_load_dwordx4 v[240:243], v8, s[44:45]')
        e.label('L_NOPF'); e.vm = []
        I('s_mov_b32 s48, 0x00030003'); I('s_mov_b32 s49, 0x00030003')
        I('s_mov_b32 s50, 0x00110011'); I('s_mov_b32 s51, 0x00110011')
        I('s_lshr_b32 s60, s3, 2'); I('s_and_b32 s55, s3, 3'); I('s_lshr_b32 s61, s3, 1'); I('s_and_b32 s62, s3, 1')
        I('s_bfe_u32 s6, s5, 0x20002'); I('s_lshl_b32 s40, s4, 2'); I('s_add_u32 s40, s40, s6'); I('s_and_b32 s41, s5, 3')
        I('s_waitcnt lgkmcnt(0)')
        if cfg.get('p1st'): self.stamp(7)
        if cfg.get('pretouch', 0):
            LP = self.lab('pt')
            I('s_cmp_lg_u32 s3, 6'); I(f's_cbranch_scc1 {LP}')
            I('v_lshlrev_b32 v8, 16, v1'); I(f'v_add_u32 v8, {0xff80}, v8')
            I(f'global_load_dword v248, v8, {sp(P_WS)}')
            I(f'v_add_u32 v8, {0x400000}, v8'); I('s_mov_b32 exec_hi, 0'); I(f'global_load_dword v249, v8, {sp(P_WS)}'); self.exec_all()
            I('v_mov_b32 v8, 0'); I(f'global_load_dword v250, v8, {sp(P_OUT)}')
            e.label(LP); e.vm = []
        LE = self.lab('ep')
        I(f's_cmp_lg_u32 s2, {cfg.get("ep_wg", 64)}'); I(f's_cbranch_scc1 {LE}'); I('s_cmp_lg_u32 s3, 0'); I(f's_cbranch_scc1 {LE}')
        I('s_or_b32 s100, s100, 1'); I('v_mov_b32 v10, s100'); I('v_mov_b32 v11, s101'); I('v_mov_b32 v8, 0'); I('s_mov_b64 exec, 1')
        I(f'global_store_dwordx2 v8, v[10:11], {sp(P_DBG)} sc1'); self.exec_all()
        e.label(LE); e.vm = []
        I('s_and_b32 s5, s5, 15')
        I('s_and_b32 s96, s2, 127')
        if cfg.get('p1a', 0):
            I('s_cmp_lt_u32 s2, 128'); I('s_cbranch_scc1 L_ROLE_B')
            self.role_a()
            e.sec('early')
            e.label('L_ROLE_B'); e.vm = []; e.lg = ['SMEM']
            self.role_b()
        else:
            I('s_cmp_ge_u32 s2, 128'); I('s_cbranch_scc1 L_ROLE_A')
            self.role_b()
            e.branch('s_branch', 'L_FIN')
            e.sec('early')
            e.label('L_ROLE_A'); e.vm = []; e.lg = ['SMEM']
            self.role_a()
        e.label('L_FIN')
        if cfg.get('stamps'):
            self.stamp(15); I('s_waitcnt lgkmcnt(0)')
            if cfg.get('ldump', 1):
                e.label('L_LD')
                I('s_sleep 8'); I('s_memrealtime s[100:101]'); I('s_waitcnt lgkmcnt(0)'); I('s_sub_u32 s6, s100, s64'); I('s_cmp_lt_u32 s6, 2000'); I('s_cbranch_scc1 L_LD')
            self.base(44, P_WS, [(2, 1024), (3, 128)], WS_DBG)
            I('v_mov_b32 v8, 0'); I('s_mov_b64 exec, 1')
            for k in range(16):
                I(f'v_mov_b32 v10, s{64+2*k}'); I(f'v_mov_b32 v11, s{65+2*k}'); I(f'global_store_dwordx2 v8, v[10:11], s[44:45] offset:{8*k}')
        if cfg.get('dbgst'):
            I('s_cmp_lg_u32 s3, 0'); e.branch('s_cbranch_scc1', 'L_END')
            for (wg, items) in ((128+64, [(8, 15), (9, 6)]), (64, [(10, 3), (11, 4), (12, 6), (13, 9)]), (128, [(14, 10)]), (128+96, [(15, 12)])):
                Ld = self.lab('dg')
                I(f's_cmp_lg_u32 s2, {wg}'); e.branch('s_cbranch_scc1', Ld)
                I('s_mov_b64 exec, 1'); I('v_mov_b32 v8, 0')
                for (word, k) in items:
                    I(f's_sub_u32 s6, s{64+2*k}, s64'); I('v_mov_b32 v10, s6'); I(f'global_store_dword v8, v10, {sp(P_DBG)} offset:{4*word}')
                e.label(Ld)
        e.label('L_END')
        I('s_endpgm')

    def role_a(self):
        e, I, cfg = self.e, self.I, self.cfg
        self.sleep(cfg.get('a_pre', 0))
        L_HV2, L_QV = 128*K, 130*K
        P1A = cfg.get('p1a', 0)
        LWQ = self.lab('wqd')
        if P1A == 3: I('s_mov_b32 s97, 0')
        if P1A:
            LNP, LNC2 = self.lab('np1'), self.lab('nc2')
            I('s_cmp_ge_u32 s96, 64'); e.branch('s_cbranch_scc1', LNP)
            I('s_lshr_b32 s56, s5, 2'); I('s_bfe_u32 s6, s5, 0x10001'); I('s_lshl_b32 s6, s6, 3'); I('s_add_u32 s6, s6, s4'); I('s_lshl_b32 s6, s6, 1'); I('s_and_b32 s57, s5, 1'); I('s_add_u32 s57, s57, s6')
            def mid():
                Lm = self.lab('mid'); saved = list(e.vm)
                I('s_mov_b32 s52, s53')
                I('s_cmp_lt_u32 s3, 2'); e.branch('s_cbranch_scc1', Lm)
                self.base(44, P_WQ, [(41, 128*8192), (3, 16*8192), (40, 256)])
                self.dma_256(44, 8192, L_WQ, 'wq', '32')
                e.label(Lm); e.vm = saved
                I('s_mov_b32 s53, s52')
            if P1A == 3:
                I('s_lshr_b32 s56, s96, 4'); I('s_and_b32 s57, s96, 15')
                LX = self.lab('xl')
                I('s_cmp_lg_u32 s3, 0'); e.branch('s_cbranch_scc1', LX)
                I('v_lshlrev_b32 v9, 5, v1')
                I(f'global_load_dwordx4 v[64:67], v9, {sp(P_X)}'); I(f'global_load_dwordx4 v[68:71], v9, {sp(P_X)} offset:16')
                I('v_lshlrev_b32 v10, 10, v5'); I('v_lshl_add_u32 v10, v4, 3, v10'); I('s_lshl_b32 s6, s41, 8'); I('v_add_u32 v10, s6, v10')
                I(f'global_load_dwordx2 v[18:19], v10, {sp(P_X)}')
                e.label(LX); e.vm = []
                def mid3():
                    LX = self.lab('xl'); saved = list(e.vm)
                    self.base(44, P_WQ, [(41, 128*8192), (3, 16*8192), (40, 256)])
                    I('s_barrier')
                    self.dma_256(44, 8192, L_WQ, 'wq', '32')
                self.p1_tile(64*K, 98*K, mid=mid3)
                self.stamp(12)
                I(f's_cmp_lt_u32 s3, {2 if cfg.get("p1full", 0) else 4}'); I('s_cselect_b32 s97, 1, 0')
                e.branch('s_branch', LWQ)
            else:
                self.mod_tile(True, 64*K, 96*K, 98*K, early=True, mid=mid if P1A == 2 else None)
                self.stamp(12)
                if P1A == 2: I('s_cmp_ge_u32 s3, 2'); e.branch('s_cbranch_scc1', LWQ)
                e.branch('s_branch', LNC2)
            e.sec('early')
            e.label(LNP); e.vm = []; e.lg = ['SMEM']
            I('s_cmp_ge_u32 s96, 96'); e.branch('s_cbranch_scc1', LNC2)
            I('s_sub_u32 s43, s96, 64')
            for k in range(4): I(f'v_mov_b32 v{44+k}, -1')
            self.base(44, P_WS, [(43, 16384), (3, 2048)], WS_H2)
            for k in range(2): I(f'global_store_dwordx4 v6, v[44:47], s[44:45] offset:{k*1024} sc1')
            self.base(44, P_WS, [(43, 2048), (3, 256)], WS_HQ2)
            I('s_mov_b64 exec, 0xffff'); I('global_store_dwordx4 v6, v[44:47], s[44:45] sc1'); self.exec_all()
            e.label(LNC2); e.vm = []; e.lg = ['SMEM']
        LX = self.lab('xl')
        I('s_cmp_lg_u32 s3, 0'); e.branch('s_cbranch_scc1', LX)
        I('v_lshlrev_b32 v9, 5, v1')
        I(f'global_load_dwordx4 v[64:67], v9, {sp(P_X)}'); I(f'global_load_dwordx4 v[68:71], v9, {sp(P_X)} offset:16')
        I('v_lshlrev_b32 v10, 10, v5'); I('v_lshl_add_u32 v10, v4, 3, v10'); I('s_lshl_b32 s6, s41, 8'); I('v_add_u32 v10, s6, v10')
        I(f'global_load_dwordx2 v[18:19], v10, {sp(P_X)}')
        e.label(LX); e.vm = []
        self.base(44, P_WQ, [(41, 128*8192), (3, 16*8192), (40, 256)])
        self.dma_256(44, 8192, L_WQ, 'wq', '32')
        self.stamp(1)
        e.cont()
        e.label(LWQ)
        if cfg.get('pt', 0) & 8:
            Lp = self.lab('pt'); saved = list(e.vm)
            I('s_cmp_lg_u32 s3, 6'); e.branch('s_cbranch_scc1', Lp, flush=False)
            I('v_and_b32 v9, 7, v1'); I('v_lshlrev_b32 v9, 16, v9'); I('v_add_u32 v9, 0xf080, v9'); I(f'global_load_dword v250, v9, {sp(P_WS)} sc1')
            I('v_mov_b32 v9, 64'); I(f'global_load_dword v251, v9, {sp(P_DBG)} sc1')
            e.label(Lp, flush=False); e.vm = saved
        if P1A:
            L1 = self.lab('c1'); saved = list(e.vm)
            I('s_sub_u32 s6, s96, 64'); I('s_cmp_ge_u32 s6, 32'); e.branch('s_cbranch_scc1', L1)
            I('s_waitcnt vmcnt(4)'); I('s_barrier')
            I('s_cmp_lg_u32 s3, 7'); e.branch('s_cbranch_scc1', L1)
            I('v_mov_b32 v8, 0'); I('v_mov_b32 v9, 1'); I('s_mov_b64 exec, 1')
            I(f'global_atomic_add v10, v8, v9, {sp(P_DBG)} offset:192 sc0 sc1')
            I('s_waitcnt vmcnt(0)'); self.exec_all()
            I('v_readfirstlane_b32 s6, v10'); I('s_nop 3'); I('s_cmp_lg_u32 s6, 31'); e.branch('s_cbranch_scc1', L1)
            I('v_mov_b32 v9, 0x01010101'); I('s_mov_b64 exec, 1')
            I(f'global_store_dword v8, v9, {sp(P_DBG)} offset:128 sc1'); self.exec_all()
            e.label(L1); e.vm = saved
        if cfg.get('h3sent') == 4:
            self.sleep(cfg.get('clr_pre', 0))
            for k in range(4): I(f'v_mov_b32 v{240+k}, -1')
            self.base(46, P_WS, [(96, 32768), (3, 4096)], WS_H3)
            for q in range(4): I(f'global_store_dwordx4 v6, v[240:243], s[46:47] offset:{q*1024} {POL[cfg.get("clrpol", 0)]}', tag='clr')
        self.base(44, P_WUK, [(41, 128*8192), (3, 16*8192), (40, 256)])
        WL = cfg.get('wuk_late', 1)
        if not WL: self.dma_256(44, 8192, L_WUK, 'wuk', '16')
        P1Q = cfg.get('p1q', 0)
        if P1Q:
            I('v_lshlrev_b32 v24, 12, v5'); I('v_lshl_add_u32 v24, v4, 4, v24'); I('v_add_u32 v25, 8192, v24'); I('v_add_u32 v128, 16384, v24'); I('v_add_u32 v129, 24576, v24')
        else:
            I('s_mov_b32 s6, 12288'); I('v_mul_lo_u32 v24, v5, s6'); I('v_lshl_add_u32 v24, v4, 4, v24'); I('v_add_u32 v25, 24576, v24')
        self.base(58, P_WS, [(41, 512)], WS_MODP)
        I('v_lshrrev_b32 v26, 3, v4'); I('v_lshlrev_b32 v26, 6, v26'); I('v_and_b32 v12, 3, v4'); I('v_lshl_add_u32 v26, v12, 4, v26')
        I('v_bfe_u32 v12, v4, 2, 1'); I('v_lshl_add_u32 v26, v12, 3, v26'); I('v_mul_u32_u24 v12, 320, v5'); I('v_add_u32 v26, v26, v12'); I(f'v_add_u32 v26, {L_HV2}, v26')
        I('v_and_b32 v12, 1, v2'); I('v_mul_u32_u24 v27, 320, v12'); I('v_lshl_add_u32 v27, v3, 4, v27'); I(f'v_add_u32 v27, {L_HV2}, v27')
        I('v_lshlrev_b32 v30, 8, v2'); I('v_lshl_add_u32 v30, v3, 3, v30'); self.sval('s6', [(3, 32)], L_OUT); I('v_add_u32 v30, s6, v30')
        I('v_lshlrev_b32 v40, 15, v3'); I('v_lshl_add_u32 v40, v2, 4, v40')
        I('v_mul_u32_u24 v28, 272, v3'); I('v_lshl_add_u32 v28, v2, 4, v28'); I(f'v_add_u32 v28, {L_QV}, v28')
        I('v_and_b32 v12, 7, v2'); I('v_mul_u32_u24 v29, 272, v12'); I('v_lshl_add_u32 v29, v3, 4, v29'); I(f'v_add_u32 v29, {L_QV}, v29')
        I(f's_mov_b32 s56, {f32(128**-0.5*math.log2(math.e))}'); I('v_mov_b32 v31, 0')
        self.base(46, P_WS, [(40, 2048), (41, 512)], WS_HQ2)
        self.tr_base_256(41, L_WQ)
        if P1A == 3:
            Lw = self.lab('wqw')
            I('s_waitcnt vmcnt(1)'); I('s_cmp_eq_u32 s97, 1'); I(f's_cbranch_scc1 {Lw}'); e.wait_vm('wq'); e.label(Lw, flush=False)
        else: e.wait_vm('wq')
        if WL == 2: self.dma_256(44, 8192, L_WUK, 'wuk', '16')
        e.barrier()
        for s4 in range(4):
            I(f'ds_read_b64_tr_b16 {vr(96+4*s4,2)}, v41 offset:{s4*8192}'); I(f'ds_read_b64_tr_b16 {vr(98+4*s4,2)}, v41 offset:{s4*8192+4096}')
        LL = self.lab('ln')
        I('s_cmp_lg_u32 s3, 0'); e.branch('s_cbranch_scc1', LL)
        I('v_mov_b32 v20, 0x3f803f80'); I('v_mov_b32 v14, 0')
        for k in range(8): I(f'v_dot2_f32_bf16 v14, v{64+k}, v20, v14')
        self.ror_reduce([14], [8, 4, 2, 1]); self.cross(16, 14, 21)
        I(f'v_mul_f32 v14, {f32(1/512)}, v14'); I('v_mov_b32 v15, 0')
        for k in range(8):
            I(f'v_lshlrev_b32 v21, 16, v{64+k}'); I('v_sub_f32 v21, v21, v14'); I('v_fmac_f32 v15, v21, v21')
            I(f'v_and_b32 v21, 0xffff0000, v{64+k}'); I('v_sub_f32 v21, v21, v14'); I('v_fmac_f32 v15, v21, v21')
        self.ror_reduce([15], [8, 4, 2, 1]); self.cross(16, 15, 21)
        I(f'v_mov_b32 v21, {f32(1e-5)}'); I(f'v_fmac_f32 v21, {f32(1/512)}, v15'); I('v_rsq_f32 v15, v21')
        I('v_lshlrev_b32 v20, 16, v18'); I('v_and_b32 v21, 0xffff0000, v18'); I('v_lshlrev_b32 v22, 16, v19'); I('v_and_b32 v23, 0xffff0000, v19')
        for k in range(4): I(f'v_sub_f32 v{20+k}, v{20+k}, v14')
        for k in range(4): I(f'v_mul_f32 v{20+k}, v{20+k}, v15')
        e.label(LL)
        def wuk_frags():
            I('v_xor_b32 v12, v3, v2'); I('v_lshlrev_b32 v12, 4, v12'); I('v_lshl_add_u32 v12, v2, 8, v12'); self.sval('s6', [(3, 4096)], L_WUK); I('v_add_u32 v12, s6, v12')
            for ks in range(4):
                I(f'v_xor_b32 v13, {ks<<6}, v12'); I(f'ds_read_b128 {vr(48+4*ks,4)}, v13')
        if not WL: e.wait_vm('wuk'); wuk_frags()
        self.stamp(2)
        L2, L = self.lab('fb'), self.lab('h1s')
        Lh, Dk, LW, L0, Lc = self.lab('h1l'), self.lab('h1ok'), self.lab('h1w'), self.lab('h10'), self.lab('h1c')
        h1l = [f'global_load_dwordx2 v[42:43], v31, {sp(P_DBG)} sc1',
               'global_load_dwordx4 v[72:75], v24, s[58:59] sc1', 'global_load_dwordx4 v[76:79], v24, s[58:59] offset:2048 sc1',
               'global_load_dwordx4 v[80:83], v25, s[58:59] sc1', 'global_load_dwordx4 v[84:87], v25, s[58:59] offset:2048 sc1']
        if P1Q:
            h1l += ['global_load_dwordx4 v[112:115], v128, s[58:59] sc1', 'global_load_dwordx4 v[116:119], v128, s[58:59] offset:2048 sc1',
                    'global_load_dwordx4 v[120:123], v129, s[58:59] sc1', 'global_load_dwordx4 v[124:127], v129, s[58:59] offset:2048 sc1']
        I(f's_mov_b32 s54, {SPIN}'); I('s_mov_b32 s57, s100'); I('s_cmp_eq_u32 s3, 0'); I('s_cselect_b32 s7, 0, 8'); I(f's_add_u32 s7, s7, {cfg.get("t_h1", 200)}')
        e.label(LW)
        I('s_memrealtime s[100:101]'); I('s_waitcnt lgkmcnt(0)'); I('s_sub_u32 s6, s100, s57'); I('s_cmp_lt_u32 s6, s7'); I(f's_cbranch_scc1 {LW}')
        I('s_cmp_lg_u32 s3, 0'); e.branch('s_cbranch_scc1', L0)
        for ld in h1l: I(ld.replace(' sc1', '') if cfg.get('h1plain', 0) else ld)
        e.label(L0); e.vm = []
        I('s_cmp_lg_u32 s3, 1'); e.branch('s_cbranch_scc1', L2)
        self.flagcheck_issue(1, 16)
        e.label(L2); e.vm = []
        if WL == 1: self.dma_256(44, 8192, L_WUK, 'wuk', '16')
        L2 = self.lab('fb2')
        I('s_cmp_lg_u32 s3, 1'); e.branch('s_cbranch_scc1', L2)
        e.vm = ['flag'] + e.vm
        self.flagcheck_finish(1, 16)
        e.label(L2)
        I('s_cmp_lg_u32 s3, 0'); e.branch('s_cbranch_scc1', L)
        I(f's_waitcnt vmcnt({4 if WL == 1 else 0})')
        e.branch('s_branch', Lc)
        e.label(Lh)
        for ld in h1l: I(ld)
        I('s_waitcnt vmcnt(0)')
        e.label(Lc)
        I('v_not_b32 v8, v42'); I('v_and_b32 v8, 1, v8')
        for b4 in (72, 76, 80, 84) + ((112, 116, 120, 124) if P1Q else ()):
            I(f'v_xor_b32 v9, v{b4+2}, v42'); I(f'v_xor_b32 v10, v{b4+3}, v43'); I('v_or3_b32 v8, v8, v9, v10')
        I('v_cmp_ne_u32 vcc, 0, v8'); I(f's_cbranch_vccz {Dk}')
        self.stamp(5)
        I(f's_sleep {cfg.get("h1_loop", 4)}'); I('s_sub_u32 s54, s54, 1'); I(f's_cbranch_scc0 {Lh}')
        e.label(Dk, flush=False); e.vm = []
        self.stamp(3)
        I('v_mov_b32 v8, 0x00003f80'); I('v_mov_b32 v9, 0x3f800000')
        for k in range(4):
            I(f'v_dot2_f32_bf16 v{88+k}, v{72+(k>>1)}, v{8+(k&1)}, v{20+k}'); I(f'v_dot2_f32_bf16 v{92+k}, v{76+(k>>1)}, v{8+(k&1)}, 0')
        for b0 in (80,) + ((112, 120) if P1Q else ()):
            for k in range(4):
                I(f'v_dot2_f32_bf16 v{88+k}, v{b0+(k>>1)}, v{8+(k&1)}, v{88+k}'); I(f'v_dot2_f32_bf16 v{92+k}, v{b0+4+(k>>1)}, v{8+(k&1)}, v{92+k}')
        for k in range(4): I(f'v_fmac_f32 v{88+k}, v{20+k}, v{92+k}')
        I('v_cvt_pk_bf16_f32 v88, v88, v89'); I('v_cvt_pk_bf16_f32 v89, v90, v91')
        I('ds_write_b64 v26, v[88:89]')
        e.label(L); e.vm = []
        e.barrier()
        for s4 in range(4): I(f'ds_read_b128 {vr(64+4*s4,4)}, v27 offset:{s4*64}', tag=f'hv{s4}')
        I('s_mov_b64 s[38:39], 0')
        NOGO = cfg.get('spec_vm', 0) == 2
        if cfg.get('go_q', 0) == 0 and not NOGO: self.go_arrive()
        for s4 in range(4):
            e.wait_lg(f'hv{s4}')
            I(f'v_mfma_f32_16x16x32_bf16 v[80:83], {vr(96+4*s4,4)}, {vr(64+4*s4,4)}, {"0" if s4 == 0 else "v[80:83]"}')
        I('v_cvt_pk_bf16_f32 v80, v80, v81'); I('v_cvt_pk_bf16_f32 v81, v82, v83')
        self.exec_mask(48); I('ds_write_b64 v30, v[80:81]'); self.exec_all()
        LOCQ = cfg.get('loc', 0) & 4
        self.pub_lds(L_OUT, 6, 46, rd=132, pol='' if LOCQ else 'sc1')
        self.stamp(4)
        if LOCQ: I('s_mov_b64 s[52:53], s[46:47]')
        def hq_again():
            I('s_mov_b32 exec_hi, 0'); I('global_store_dwordx4 v6, v[132:135], s[52:53] sc1'); self.exec_all()
        def hq_fail():
            Lf = self.lab('hqf')
            I(f's_cmp_lg_u32 s54, {SPIN - cfg.get("loc_k", 4)}'); I(f's_cbranch_scc1 {Lf}'); hq_again(); e.label(Lf, flush=False)
        if cfg.get('go_q', 0) == 1 and not NOGO: self.go_arrive()
        self.base(44, P_WS, [(40, 2048)], WS_HQ2)
        self.base(46, P_WS, [(40, 1024), (41, 256)], WS_H2)
        Lg = self.lab('gw7')
        I('s_cmp_eq_u32 s3, 0'); e.branch('s_cbranch_scc1', Lg); I('s_waitcnt vmcnt(0)')
        if not NOGO: self.go_finish()
        if WL == 1: wuk_frags()
        e.label(Lg)
        if WL == 2: wuk_frags()
        Lq = self.lab('hq1')
        I('s_cmp_lg_u32 s3, 0'); e.branch('s_cbranch_scc1', Lq)
        self.poll('hq', [f'global_load_dwordx4 {vr(64+4*k,4)}, v6, s[44:45] offset:{k*1024} sc1' for k in range(2)], range(64, 72), cfg.get('d_hq', 8), loop_sleep=cfg.get('hq_loop', 2), onfail=hq_fail if LOCQ else None)
        I('ds_write_b128 v28, v[64:67]'); I(f'ds_write_b128 v28, v[68:71] offset:{4*272}')
        if WL == 1: wuk_frags()
        self.stamp(14)
        e.label(Lq); e.vm = []
        e.barrier()
        for ks in range(4): I(f'ds_read_b128 {vr(64+4*ks,4)}, v29 offset:{ks*64}', tag=f'qv{ks}')
        if cfg.get('h3sent') == 4:
            Lc = self.lab('ac')
            I('s_cmp_lg_u32 s3, 7'); e.branch('s_cbranch_scc1', Lc, flush=False)
            self.base(98, P_WS, [(96, 16)], WS_FL2)
            I('v_lshlrev_b32 v8, 11, v1'); I('s_and_b32 s6, s57, 0xfffffffe'); I('v_mov_b32 v9, s6')
            I('s_mov_b64 exec, 0xff'); I('global_store_dword v8, v9, s[98:99] sc1'); self.exec_all()
            e.label(Lc, flush=False); e.vm = []
        for ks in range(4):
            e.wait_lg(f'qv{ks}')
            I(f'v_mfma_f32_16x16x32_bf16 v[80:83], {vr(48+4*ks,4)}, {vr(64+4*ks,4)}, {"0" if ks == 0 else "v[80:83]"}')
        self.ror_reduce(range(80, 84), [2, 4])
        for k in range(4): I(f'v_mul_f32 v{80+k}, s56, v{80+k}')
        I('v_cvt_pk_bf16_f32 v80, v80, v81'); I('v_cvt_pk_bf16_f32 v81, v82, v83')
        self.exec_mask(48); I('ds_write_b64 v30, v[80:81]'); self.exec_all()
        self.pub_lds(L_OUT, 40, 46)
        self.stamp(6)
        if LOCQ:
            Lf = self.lab('hqa')
            I('s_cmp_lg_u32 s3, 0'); I(f's_cbranch_scc1 {Lf}'); self.sleep(cfg.get('loc_dq', 8)); hq_again(); e.label(Lf, flush=False)
        e.barrier()
        if cfg.get('h3sent') == 3:
            Lc, Lc1, Lc2 = self.lab('ac'), self.lab('ac1'), self.lab('ac2')
            I('s_cmp_ge_u32 s5, 12'); e.branch('s_cbranch_scc1', Lc)
            self.sleep(cfg.get('clr_pre', 0))
            for k in range(4): I(f'v_mov_b32 v{240+k}, -1')
            self.base(46, P_WS, [(96, 32768), (3, 4096)], WS_H3)
            for q in range(4): I(f'global_store_dwordx4 v6, v[240:243], s[46:47] offset:{q*1024} {POL[cfg.get("clrpol", 0)]}')
            I('s_cmp_lt_u32 s5, 8'); e.branch('s_cbranch_scc1', Lc1)
            I(f's_add_u32 s46, s46, {32*32768}'); I('s_addc_u32 s47, s47, 0')
            for q in range(4): I(f'global_store_dwordx4 v6, v[240:243], s[46:47] offset:{q*1024} {POL[cfg.get("clrpol", 0)]}')
            e.label(Lc1)
            self.base(46, P_WS, [(96, 16)], WS_FL2)
            I('v_and_b32 v8, 7, v1'); I('v_lshlrev_b32 v8, 11, v8'); I('v_lshrrev_b32 v9, 3, v1'); I('v_lshl_add_u32 v8, v9, 9, v8')
            I('s_mov_b32 s7, 0xff'); I('s_cmp_lt_u32 s5, 8'); I('s_cselect_b32 s7, s7, 0xffff')
            I('s_memrealtime s[100:101]')
            e.wait_vm(); e.barrier()
            I('s_cmp_lg_u32 s3, 7'); e.branch('s_cbranch_scc1', Lc)
            I('s_and_b32 s100, s100, 0xfffffffe'); I('v_mov_b32 v9, s100')
            I('s_mov_b32 exec_lo, s7'); I('s_mov_b32 exec_hi, 0'); I('global_store_dword v8, v9, s[46:47] sc1'); self.exec_all()
            e.label(Lc); e.vm = ['x']
            if cfg.get('fine'): self.stamp(11)
        I('s_cmp_lt_u32 s5, 8'); e.branch('s_cbranch_scc1', 'L_ROLE_F')
        I('s_lshl_b32 s43, s4, 2'); I('s_add_u32 s43, s43, s41')
        I('s_cmp_lt_u32 s5, 12'); e.branch('s_cbranch_scc1', 'L_LOAD_H')
        I('s_cmp_ge_u32 s43, 28'); e.branch('s_cbranch_scc1', 'L_FIN')
        if 'g_pre3' in cfg:
            Lg3 = self.lab('g3')
            self.sleep(cfg['g_pre3'])
            I('s_cmp_eq_u32 s41, 3'); I(f's_cbranch_scc1 {Lg3}')
            self.sleep(cfg['g_pre'] - cfg['g_pre3'])
            e.label(Lg3)
        else: self.sleep(cfg.get('g_pre', 0))
        if cfg.get('g2', 0) == 3:
            self.stage_g4()
            e.label('L_LOAD_H'); e.vm = []; e.lg = ['SMEM']
            self.stage_fin()
            e.label('L_ROLE_F'); e.vm = []; e.lg = ['SMEM']
            self.stage_f()
            return
        for (P, Lb) in ((P_WG, L_WG), (P_WU, L_WU)):
            self.base(44, P, [(3, 64*3584), (43, 128)])
            self.dma_128(44, 3584, 8, [(3, 8192)], Lb, 'gu')
            if cfg.get('gseq', 1) and P == P_WG: I('s_waitcnt vmcnt(2)')
        self.base(44, P_WD, [(43, 64*1024), (3, 128)])
        I('v_lshlrev_b32 v12, 1, v3'); I('v_and_b32 v9, 7, v1'); I('v_xor_b32 v12, v12, v9'); I('v_lshlrev_b32 v12, 4, v12'); I('v_lshrrev_b32 v9, 3, v1'); I('v_lshl_add_u32 v12, v9, 10, v12')
        for q in range(1 if cfg.get('noload') else 8):
            I(f'global_load_dwordx4 {vr(160+4*q,4)}, v12, s[44:45] nt')
            if q < 7: I('v_add_u32 v12, 8192, v12')
        GS = cfg.get('gside', 0)
        if cfg.get('g2', 0) == 2:
            I('s_waitcnt vmcnt(8)'); self.x1_side(True)
            I('v_lshrrev_b32 v9, 2, v2'); I('v_lshl_add_u32 v9, v3, 2, v9')
            I('v_bfe_u32 v10, v9, 1, 2'); I('v_lshlrev_b32 v10, 5, v10'); I('v_lshl_add_u32 v10, v9, 7, v10')
            I('v_and_b32 v9, 1, v2'); I('v_lshl_add_u32 v10, v9, 3, v10'); I('v_bfe_u32 v9, v2, 1, 1'); I('v_lshl_add_u32 v10, v9, 16, v10')
            I('s_lshl_b32 s6, s3, 13'); I('v_add_u32 v10, s6, v10')
            for t in range(8):
                I(f'v_xor_b32 v{8+(t&1)}, {t<<4}, v10')
                for s2 in range(2):
                    I(f'ds_read_b64_tr_b16 {vr(96+8*t+4*s2,2)}, v{8+(t&1)} offset:{s2*4096}'); I(f'ds_read_b64_tr_b16 {vr(98+8*t+4*s2,2)}, v{8+(t&1)} offset:{s2*4096+2048}')
            e.wait_lg()
        elif GS:
            I('s_waitcnt vmcnt(8)'); self.x1_side(True); I('s_barrier')
        else:
            e.wait_vm(); e.barrier()
        if cfg.get('g2', 0) != 2:
            I('v_lshrrev_b32 v9, 2, v2'); I('v_lshl_add_u32 v9, v3, 2, v9')
            I('v_bfe_u32 v10, v9, 1, 2'); I('v_lshlrev_b32 v10, 1, v10'); I('v_xor_b32 v10, s3, v10'); I('v_lshlrev_b32 v10, 4, v10'); I('v_lshl_add_u32 v10, v9, 7, v10')
            I('v_and_b32 v9, 1, v2'); I('v_lshl_add_u32 v10, v9, 3, v10'); I('v_bfe_u32 v9, v2, 1, 1'); I('v_lshl_add_u32 v10, v9, 16, v10')
            for s in range(16):
                I(f'ds_read_b64_tr_b16 {vr(96+4*s,2)}, v10 offset:{s*4096}'); I(f'ds_read_b64_tr_b16 {vr(98+4*s,2)}, v10 offset:{s*4096+2048}')
            e.barrier()
        if GS: I('s_waitcnt vmcnt(7)')
        I('s_lshl_b32 s6, s3, 13'); I('v_add_u32 v13, s6, v6')
        for q in range(8): I(f'ds_write_b128 v13, {vr(160+4*q,4)} offset:{q*1024}')
        self.tr_base_128(12, [(3, 8192)], 0)
        e.wait_lg()
        for t in range(4):
            I(f'v_xor_b32 v13, {t<<5}, v12')
            for s2 in range(2):
                I(f'ds_read_b64_tr_b16 {vr(32+8*t+4*s2,2)}, v13 offset:{s2*4096}'); I(f'ds_read_b64_tr_b16 {vr(34+8*t+4*s2,2)}, v13 offset:{s2*4096+2048}')
        self.stage_x1()
        e.label('L_LOAD_H'); e.vm = []; e.lg = ['SMEM']
        self.stage_fin()
        e.label('L_ROLE_F'); e.vm = []; e.lg = ['SMEM']
        self.stage_f()

    def stage_f(self):
        e, I, cfg = self.e, self.I, self.cfg
        if 'f_pre3' in cfg:
            Lf3 = self.lab('f3')
            self.sleep(cfg['f_pre3'])
            I('s_cmp_eq_u32 s5, 3'); I(f's_cbranch_scc1 {Lf3}')
            self.sleep(cfg['f_pre'] - cfg['f_pre3'])
            e.label(Lf3)
        else: self.sleep(cfg.get('f_pre', 0))
        I('s_lshl_b32 s6, s4, 3'); I('s_add_u32 s6, s6, s5'); I('s_lshr_b32 s56, s6, 5'); I('s_and_b32 s57, s6, 31'); I('s_add_u32 s57, s57, 16')
        def wo_dma():
            self.base(44, P_WO, [(4, 512*1024), (3, 64*1024), (5, 128)])
            self.dma_128(44, 1024, 8, [(3, 8192)], L_WO, 'wo')
        self.mod_tile(False, 64*K, 96*K, 98*K, mid2=wo_dma if cfg.get('wo_early', 0) else None)
        if not cfg.get('wo_early', 0): wo_dma()
        self.tr_base_128(12, [(3, 8192)], L_WO)
        e.wait_vm()
        for t in range(4):
            I(f'v_xor_b32 v13, {t<<5}, v12')
            for s in range(2):
                I(f'ds_read_b64_tr_b16 {vr(96+8*t+4*s,2)}, v13 offset:{s*4096}'); I(f'ds_read_b64_tr_b16 {vr(98+8*t+4*s,2)}, v13 offset:{s*4096+2048}')
        self.stamp(7)
        if cfg.get('h4dma', 0):
            I('v_lshrrev_b32 v10, 3, v1'); I('v_xor_b32 v9, v10, v1'); I('v_and_b32 v9, 7, v9'); I('v_lshlrev_b32 v9, 4, v9'); I('v_lshl_add_u32 v9, v10, 8, v9')
            I('v_and_b32 v10, 7, v2'); I('v_xor_b32 v16, v10, v3'); I('v_lshlrev_b32 v16, 4, v16'); I('v_lshl_add_u32 v16, v10, 7, v16')
            self.sval('s6', [(3, 1024)], 112*K); I('s_mov_b32 m0, s6'); I('v_add_u32 v16, s6, v16'); I('v_xor_b32 v17, 64, v16')
        else:
            I('v_and_b32 v9, 7, v2'); I('v_lshlrev_b32 v9, 8, v9'); I('v_lshl_add_u32 v9, v3, 4, v9')
        self.base(44, P_WS, [(4, 8192), (61, 2048), (62, 128)], WS_H4)
        I('v_and_b32 v10, 1, v2'); I('v_lshl_add_u32 v10, v3, 1, v10'); I('v_lshlrev_b32 v10, 9, v10')
        if cfg.get('cmp', 0) & 2:
            I('v_bfe_u32 v11, v2, 1, 2'); I('v_lshl_add_u32 v10, v11, 4, v10'); I('v_lshrrev_b32 v11, 3, v2'); I('v_lshl_add_u32 v10, v11, 13, v10')
        else:
            I('v_lshrrev_b32 v11, 1, v2'); I('v_lshl_add_u32 v10, v11, 4, v10')
        self.sval('s6', [(3, 64)], L_FRED); I('v_add_u32 v10, s6, v10')
        I('v_lshlrev_b32 v11, 9, v3'); I('v_lshl_add_u32 v11, v2, 4, v11'); self.sval('s6', [(3, 2048)], L_FRED); I('v_add_u32 v11, s6, v11')
        G2 = cfg.get('g2', 0)
        if G2:
            I('v_and_b32 v12, 1, v3'); I('v_lshlrev_b32 v12, 7, v12'); I('v_lshrrev_b32 v13, 1, v3'); I('v_lshl_add_u32 v12, v13, 3, v12'); self.sval('s6', [(3, 16)], L_OUT); I('v_add_u32 v12, s6, v12')
            I('v_lshrrev_b32 v13, 3, v2'); I('v_lshlrev_b32 v13, 10, v13'); I('v_and_b32 v14, 7, v2'); I('v_lshl_add_u32 v13, v14, 4, v13')
            self.base(46, P_WS, [(4, 2048), (5, 128)], WS_H5)
        elif cfg.get('publds', 1):
            I('v_and_b32 v12, 1, v3'); I('v_lshlrev_b32 v12, 8, v12'); I('v_lshrrev_b32 v13, 1, v3'); I('v_lshl_add_u32 v12, v13, 4, v12'); self.sval('s6', [(3, 32)], L_OUT); I('v_add_u32 v12, s6, v12')
            I('v_lshlrev_b32 v13, 11, v3'); I('v_lshl_add_u32 v13, v2, 4, v13')
            self.base(46, P_WS, [(4, 4096), (5, 256)], WS_H5)
        else:
            I('v_and_b32 v12, 1, v3'); I('v_lshlrev_b32 v12, 11, v12'); I('v_lshrrev_b32 v13, 1, v3'); I('v_lshl_add_u32 v12, v13, 4, v12')
            self.base(46, P_WS, [(4, 4096), (5, 256), (3, 32)], WS_H5)
        I('s_mov_b32 s56, 0x00ff00ff'); I('s_mov_b32 s57, 0x00ff00ff'); I('s_mov_b32 s58, 0x00010001'); I('s_mov_b32 s59, 0x00010001')
        I('s_lshl_b32 s97, s4, 3'); I('s_add_u32 s97, s97, s5')
        HS = cfg.get('hsplit', 0) and not cfg.get('hu5_early', 0)
        if HS: self.hu_prep(WS_HU5, 97, 38)
        if cfg.get('hu4m', 0) == 2: self.hu_wait_w(WS_HU4, [(4, 128)], 16, cfg['t_h4'])
        elif cfg.get('hu4m', 0): self.hu_wait_multi(WS_HU4, [(4, 128)], 15, 10, cfg['t_h4'], fwd=(WS_HU5, 97) if cfg.get('hu5_early', 0) == 2 else None)
        else: self.hu_wait(WS_HU4, 96, cfg['t_h4'])
        self.stamp(8)
        if cfg.get('hu5_early', 0) == 1: self.hu_set(WS_HU5, 97, wave=cfg.get('hu5_wave', 0))
        if cfg.get('h4dma', 0):
            Lp, Dp = self.lab('h4'), self.lab('h4d')
            I(f's_mov_b32 s54, {SPIN}')
            e.label(Lp)
            I('global_load_lds_dwordx4 v9, s[44:45] sc1'); e.wait_vm()
            I('ds_read_b128 v[64:67], v16'); I('ds_read_b128 v[68:71], v17'); e.wait_lg()
            r_ = self.maxtree(range(64, 72), 8)
            I(f'v_cmp_eq_u32 vcc, -1, v{r_}'); I(f's_cbranch_vccz {Dp}')
            I(f's_sleep {cfg.get("h4_loop", 4)}'); I('s_sub_u32 s54, s54, 1'); I(f's_cbranch_scc0 {Lp}')
            e.label(Dp, flush=False)
        else:
            self.poll('h4', ['global_load_dwordx4 v[64:67], v9, s[44:45] sc1', 'global_load_dwordx4 v[68:71], v9, s[44:45] offset:64 sc1'], range(64, 72), 0, loop_sleep=cfg.get('h4_loop', 4))
        if cfg.get('hu5m', 0) == 3: self.hu_set_w(WS_HU5, 97)
        elif HS: self.hu_clock()
        elif not cfg.get('hu5_early', 0): self.hu_set(WS_HU5, 97)
        self.stamp(9)
        for t in range(4): I(f'v_mfma_f32_16x16x32_bf16 {vr(72+4*t,4)}, {vr(96+8*t,4)}, v[64:67], 0')
        for t in range(4): I(f'v_mfma_f32_16x16x32_bf16 {vr(72+4*t,4)}, {vr(100+8*t,4)}, v[68:71], {vr(72+4*t,4)}')
        if HS: n0 = e.n; self.hu_store(38); e.n = n0 + 2
        if cfg.get('cmp', 0) & 2:
            I('s_not_b64 exec, s[56:57]')
            for k in range(4): I(f'v_mov_b64 {vr(72+2*k,2)}, {vr(80+2*k,2)}')
            self.exec_all()
            for t in range(2): I(f'ds_write_b128 v10, {vr(72+4*t,4)} offset:{t*4096}')
        else:
            self.exec_mask(56)
            for t in range(4): I(f'ds_write_b128 v10, {vr(72+4*t,4)} offset:{t*4096}')
            self.exec_all()
        e.barrier()
        I('ds_read_b128 v[64:67], v11'); I('ds_read_b128 v[68:71], v11 offset:256'); e.wait_lg()
        for k in range(4): I(f'v_add_f32 v{64+k}, v{64+k}, v{68+k}')
        self.ror_reduce(range(64, 68), [8, 4, 2, 1])
        if G2:
            I('v_cvt_pk_bf16_f32 v64, v64, v65'); I('v_cvt_pk_bf16_f32 v65, v66, v67')
            self.exec_mask(58); I('ds_write_b64 v12, v[64:65]'); self.exec_all()
            self.pub_lds(L_OUT, 13, 46, rd=68, lanes=16)
        elif cfg.get('publds', 1):
            self.exec_mask(58); I('ds_write_b128 v12, v[64:67]'); self.exec_all()
            self.pub_lds(L_OUT, 13, 46, rd=68)
        else:
            self.exec_mask(58); I('global_store_dwordx4 v12, v[64:67], s[46:47] sc1'); self.exec_all()
        self.stamp(10)
        e.branch('s_branch', 'L_FIN')

    def mod_tile(self, p1, lmt, lsc, lred, extra=None, early=False, after=None, mid=None, mid2=None):
        e, I, cfg = self.e, self.I, self.cfg
        ws = WS_MODP if p1 else WS_MODQ
        I('v_and_b32 v8, 1, v3'); I('v_lshlrev_b32 v8, 10, v8'); I('v_lshl_add_u32 v8, v2, 2, v8'); self.sval('s6', [(56, 512), (3, 64)]); I('v_add_u32 v8, s6, v8')
        I(f'global_load_dword v24, v8, {sp(P_C)} {self.spol}', tag='c')
        NT = 2 if p1 else 4
        if p1:
            self.base(44, P_WMOD, [(56, 256*6144), (3, 32*6144), (57, 64)])
            I('v_lshrrev_b32 v11, 2, v1'); I('v_mul_u32_u24 v11, 6144, v11'); I('v_and_b32 v9, 3, v1'); I('v_lshl_add_u32 v11, v9, 4, v11')
            self.sval('s53', [(3, 2048)], lmt)
            I('s_mov_b32 m0, s53'); I(f'v_add_u32 v12, {16*6144}, v11'); I('global_load_lds_dwordx4 v11, s[44:45] nt', tag='wmod')
            I('s_add_u32 m0, s53, 1024'); I('global_load_lds_dwordx4 v12, s[44:45] nt', tag='wmod')
        else:
            self.base(44, P_WMOD, [(56, 256*6144), (3, 32*6144), (57, 128)])
            self.dma_128(44, 6144, 4, [(3, 4096)], lmt, 'wmod')
        def wait2(tag):
            if not mid: e.wait_vm(tag); return
            idxs = [i for i, t in enumerate(e.vm) if t == tag]; n = len(e.vm) - 1 - idxs[-1]
            Lw = self.lab('w2')
            I(f's_waitcnt vmcnt({n+4})'); I('s_cmp_ge_u32 s3, 2'); I(f's_cbranch_scc1 {Lw}'); e.wait_vm(tag); e.label(Lw, flush=False)
        if mid: mid()
        if mid2: mid2()
        if early: e.cont()
        if p1 and cfg.get('p1st'): self.stamp(14)
        wait2('c')
        if p1 and cfg.get('p1st'): self.stamp(11)
        if extra: extra()
        I('v_lshlrev_b32 v28, 16, v24'); I('v_and_b32 v29, 0xffff0000, v24')
        I(f's_mov_b32 s6, {f32(-math.log2(math.e))}')
        for r in (28, 29): I(f'v_mul_f32 v{r+2}, s6, v{r}')
        for r in (30, 31): I(f'v_exp_f32 v{r}, v{r}')
        for r in (30, 31): I(f'v_add_f32 v{r}, 1.0, v{r}')
        for r in (30, 31): I(f'v_rcp_f32 v{r}, v{r}')
        for r in (28, 29): I(f'v_mul_f32 v{r}, v{r}, v{r+2}')
        I('v_cvt_pk_bf16_f32 v28, v28, v29')
        self.sval('s6', [(3, 256)], lsc); I('v_lshlrev_b32 v8, 2, v1'); I('v_add_u32 v8, s6, v8'); I('ds_write_b32 v8, v28')
        I('v_and_b32 v9, 1, v2'); I('v_lshlrev_b32 v9, 6, v9'); I('v_lshl_add_u32 v9, v3, 3, v9'); I('v_add_u32 v9, s6, v9')
        e.wait_lg()
        I('ds_read2_b64 v[48:51], v9 offset0:0 offset1:4')
        if p1:
            I('v_lshrrev_b32 v9, 2, v1'); I('v_lshlrev_b32 v12, 6, v9'); I('v_and_b32 v9, 3, v2'); I('v_lshl_add_u32 v12, v9, 3, v12'); I('v_add_u32 v12, s53, v12')
        else: self.tr_base_128(12, [(3, 4096)], lmt)
        I('v_lshlrev_b32 v14, 6, v2'); I('v_lshl_add_u32 v14, v3, 4, v14'); self.sval('s6', [(3, 512)], lred); I('v_add_u32 v14, s6, v14')
        I('v_lshrrev_b32 v15, 1, v2'); I('v_lshlrev_b32 v15, 9, v15'); I('v_and_b32 v10, 1, v2'); I('v_lshl_add_u32 v15, v10, 6, v15'); I('v_lshl_add_u32 v15, v3, 4, v15')
        self.sval('s6', [(55, 128)], lred); I('v_add_u32 v15, s6, v15')
        I('s_mov_b32 s6, 12288'); I('v_mul_lo_u32 v26, v2, s6'); I('v_lshl_add_u32 v26, v3, 4, v26')
        self.base(46, P_WS, [(56, 24576), (57, 128 if p1 else 256), (55, 64)], ws)
        if p1:
            self.sleep(cfg.get('ep_pre', 0))
            I('v_mov_b32 v27, 0')
            if mid:
                Lw = self.lab('w3')
                I('s_cmp_lt_u32 s3, 2'); I(f's_cbranch_scc1 {Lw}'); I('s_waitcnt vmcnt(4)'); I(f's_branch {Lw}x')
                e.label(Lw, flush=False)
            I(f'global_load_dwordx2 v[90:91], v27, {sp(P_DBG)} sc1', tag='ep')
        e.wait_vm('wmod')
        if mid: e.label(Lw + 'x', flush=False)
        if p1:
            self.stamp(13)
        nafter = after() if after else 0
        for t in range(NT):
            I(f'v_xor_b32 v13, {t<<5}, v12')
            I(f'ds_read_b64_tr_b16 {vr(56+4*t,2)}, v13', tag=f'mt{t}'); I(f'ds_read_b64_tr_b16 {vr(58+4*t,2)}, v13 offset:{1024 if p1 else 2048}', tag=f'mt{t}')
        for t in range(NT):
            e.wait_lg(f'mt{t}')
            I(f'v_mfma_f32_16x16x32_bf16 {vr(72+4*t,4)}, {vr(56+4*t,4)}, v[48:51], 0')
        self.exec_mask(48)
        for t in range(NT): I(f'ds_write_b128 v14, {vr(72+4*t,4)} offset:{t*128}')
        self.exec_all()
        e.barrier()
        L = self.lab('mw')
        I(f's_cmp_ge_u32 s3, {NT}'); e.branch('s_cbranch_scc1', L)
        I(f'ds_read_b128 v[72:75], v15'); e.wait_lg()
        self.ror_reduce(range(72, 76), [8, 4, 2])
        saved = list(e.vm)
        if p1:
            I('v_cvt_pk_bf16_f32 v88, v72, v73'); I('v_cvt_pk_bf16_f32 v89, v74, v75')
            Le, De = self.lab('epl'), self.lab('epd')
            I(f's_mov_b32 s54, {SPIN}'); I(f's_waitcnt vmcnt({nafter})')
            e.label(Le, flush=False)
            I('v_cmp_eq_u32 vcc, 0, v90'); I(f's_cbranch_vccz {De}'); I('s_sleep 2')
            I(f'global_load_dwordx2 v[90:91], v27, {sp(P_DBG)} sc1'); I('s_waitcnt vmcnt(0)'); I('s_sub_u32 s54, s54, 1'); I(f's_cbranch_scc0 {Le}')
            e.label(De, flush=False)
            self.exec_mask(48); I('global_store_dwordx4 v26, v[88:91], s[46:47] sc1'); self.exec_all()
        else:
            self.exec_mask(48); I('global_store_dwordx4 v26, v[72:75], s[46:47] sc1'); self.exec_all()
        e.label(L); e.vm = saved

    def p1_tile(self, lmt, lred, after=None, mid=None):
        e, I, cfg = self.e, self.I, self.cfg
        I('v_and_b32 v8, 1, v2'); I('v_lshlrev_b32 v8, 10, v8'); I('v_lshl_add_u32 v8, v3, 3, v8'); self.sval('s6', [(56, 256), (3, 32)]); I('v_add_u32 v8, s6, v8')
        I(f'global_load_dwordx2 v[24:25], v8, {sp(P_C)}', tag='c')
        self.base(44, P_WMOD, [(56, 128*6144), (3, 16*6144), (57, 128)])
        if cfg.get('p1bar', 0): I('s_barrier')
        self.dma_128(44, 6144, 2, [(3, 2048)], lmt, 'wmod')
        if mid: mid()
        e.cont()
        if cfg.get('pt', 0) & 4:
            Lp = self.lab('pt'); saved = list(e.vm)
            I('s_cmp_lg_u32 s3, 7'); e.branch('s_cbranch_scc1', Lp, flush=False)
            I('v_mov_b32 v9, 0xf000'); I(f'global_store_dword v9, v9, {sp(P_WS)}')
            e.label(Lp, flush=False); e.vm = saved
        if cfg.get('p1st'): self.stamp(14)
        self.tr_base_128(12, [(3, 2048)], lmt)
        I('v_lshlrev_b32 v14, 6, v2'); I('v_lshl_add_u32 v14, v3, 4, v14'); self.sval('s6', [(3, 512)], lred); I('v_add_u32 v14, s6, v14')
        I('v_lshrrev_b32 v15, 1, v2'); I('v_lshlrev_b32 v15, 9, v15'); I('v_and_b32 v10, 1, v2'); I('v_lshl_add_u32 v15, v10, 6, v15'); I('v_lshl_add_u32 v15, v3, 4, v15')
        FULL = cfg.get('p1full', 0)
        self.sval('s6', [(55, 256 if FULL else 128)], lred); I('v_add_u32 v15, s6, v15')
        if FULL:
            I('v_lshlrev_b32 v26, 12, v10'); I('v_bfe_u32 v10, v2, 1, 1'); I('v_lshl_add_u32 v26, v10, 6, v26'); I('v_lshl_add_u32 v26, v3, 4, v26')
            I('v_cmp_eq_u32 s[58:59], 1, v10')
            self.base(46, P_WS, [(56, 8192), (57, 256), (55, 128)], WS_MODP)
        else:
            I('v_lshlrev_b32 v26, 12, v10'); I('v_lshl_add_u32 v26, v3, 4, v26')
            self.base(46, P_WS, [(56, 8192), (57, 256), (55, 64)], WS_MODP)
        I('v_mov_b32 v27, 0')
        e.wait_vm('c')
        if cfg.get('p1st'): self.stamp(11)
        I('v_lshlrev_b32 v28, 16, v24'); I('v_and_b32 v29, 0xffff0000, v24'); I('v_lshlrev_b32 v30, 16, v25'); I('v_and_b32 v31, 0xffff0000, v25')
        I(f's_mov_b32 s6, {f32(-math.log2(math.e))}')
        for r in range(4): I(f'v_mul_f32 v{48+r}, s6, v{28+r}')
        for r in range(4): I(f'v_exp_f32 v{48+r}, v{48+r}')
        for r in range(4): I(f'v_add_f32 v{48+r}, 1.0, v{48+r}')
        for r in range(4): I(f'v_rcp_f32 v{48+r}, v{48+r}')
        for r in range(4): I(f'v_mul_f32 v{28+r}, v{28+r}, v{48+r}')
        I('v_cvt_pk_bf16_f32 v48, v28, v29'); I('v_cvt_pk_bf16_f32 v49, v30, v31')
        self.sleep(cfg.get('ep_pre', 0))
        SEP = cfg.get('sep', 0)
        if SEP == 0:
            if cfg.get('flag1', 0):
                Lx = self.lab('epx')
                I(f's_cmp_lt_u32 s3, {2 if FULL else 4}'); I(f's_cbranch_scc1 {Lx}'); I('s_waitcnt vmcnt(0)'); I(f's_branch {Lx}y'); e.label(Lx, flush=False)
            I(f'global_load_dwordx2 v[90:91], v27, {sp(P_DBG)} sc1', tag='ep')
        if SEP == 1: I(f's_load_dwordx2 s[52:53], {sp(P_DBG)}, 0'); e.lg.append('SMEM')
        e.wait_vm('wmod')
        if SEP == 0 and cfg.get('flag1', 0): e.label(Lx + 'y', flush=False)
        if SEP == 2: I(f's_load_dwordx2 s[52:53], {sp(P_DBG)}, 0'); e.lg.append('SMEM')
        self.stamp(13)
        nafter = after() if after else 0
        for t in range(4):
            I(f'v_xor_b32 v{8+t}, {t<<5}, v12')
            I(f'ds_read_b64_tr_b16 {vr(56+2*t,2)}, v{8+t}', tag=f'mt{t}')
        for t in range(4):
            e.wait_lg(f'mt{t}')
            I(f'v_mfma_f32_16x16x16_bf16 {vr(72+4*t,4)}, {vr(56+2*t,2)}, v[48:49], 0')
        if cfg.get('cmp', 0) & 4:
            for t in range(1, 4):
                I(f's_lshl_b64 exec, s[48:49], {2*t}'); I(f'v_mov_b64 v[72:73], {vr(72+4*t,2)}'); I(f'v_mov_b64 v[74:75], {vr(74+4*t,2)}')
            I('s_mov_b32 exec_lo, 0x00ff00ff'); I('s_mov_b32 exec_hi, 0x00ff00ff'); I('ds_write_b128 v14, v[72:75]')
        else:
            self.exec_mask(48)
            for t in range(4): I(f'ds_write_b128 v14, {vr(72+4*t,4)} offset:{t*128}')
        self.exec_all()
        e.barrier()
        L = self.lab('mw')
        I(f's_cmp_ge_u32 s3, {2 if FULL else 4}'); e.branch('s_cbranch_scc1', L)
        I(f'ds_read_b128 v[72:75], v15')
        if FULL: I(f'ds_read_b128 v[76:79], v15 offset:128')
        e.wait_lg()
        self.ror_reduce(range(72, 80 if FULL else 76), [8, 4, 2])
        saved = list(e.vm)
        I('v_cvt_pk_bf16_f32 v88, v72, v73'); I('v_cvt_pk_bf16_f32 v89, v74, v75')
        if FULL:
            I('v_cvt_pk_bf16_f32 v76, v76, v77'); I('v_cvt_pk_bf16_f32 v77, v78, v79')
            I('v_cndmask_b32 v88, v88, v76, s[58:59]'); I('v_cndmask_b32 v89, v89, v77, s[58:59]')
        Le, De = self.lab('epl'), self.lab('epd')
        I(f's_mov_b32 s54, {SPIN}')
        if SEP: I('v_mov_b32 v90, s52'); I('v_mov_b32 v91, s53')
        else: I(f's_waitcnt vmcnt({nafter})')
        e.label(Le, flush=False)
        I('v_cmp_eq_u32 vcc, 0, v90'); I(f's_cbranch_vccz {De}'); I('s_sleep 2')
        I(f'global_load_dwordx2 v[90:91], v27, {sp(P_DBG)} sc1'); I('s_waitcnt vmcnt(0)'); I('s_sub_u32 s54, s54, 1'); I(f's_cbranch_scc0 {Le}')
        e.label(De, flush=False)
        if FULL: I('s_mov_b32 exec_lo, 0x000f000f'); I('s_mov_b32 exec_hi, 0x000f000f')
        else: self.exec_mask(48)
        I('global_store_dwordx4 v26, v[88:91], s[46:47] sc1'); self.exec_all()
        e.label(L); e.vm = saved

    def hu_wait(self, ws, sidx, dticks):
        e, I = self.e, self.I
        L, LW = self.lab('hus'), self.lab('huw')
        I('s_cmp_lg_u32 s3, 0'); e.branch('s_cbranch_scc1', L)
        self.base(98, P_WS, [(sidx, 128)], ws)
        I('v_mov_b32 v15, 0')
        self.poll('hu', ['global_load_dword v14, v15, s[98:99] sc1'], [14], 0, loop_sleep=self.cfg.get('hu_loop', 1))
        I('v_readfirstlane_b32 s7, v14')
        e.label(LW)
        I('s_memrealtime s[100:101]'); I('s_waitcnt lgkmcnt(0)')
        I('s_sub_u32 s6, s100, s7'); I(f's_cmp_lt_u32 s6, {dticks}'); I(f's_cbranch_scc1 {LW}')
        e.label(L)
        e.barrier()
    def hu_pre(self, ws, terms, mask, sh):
        e, I = self.e, self.I
        L = self.lab('hpr'); saved = list(e.vm)
        I('s_cmp_lg_u32 s3, 0'); e.branch('s_cbranch_scc1', L, flush=False)
        self.base(98, P_WS, terms, ws)
        I(f'v_and_b32 v15, {mask}, v1'); I(f'v_lshlrev_b32 v15, {sh}, v15'); I('global_load_dword v14, v15, s[98:99] sc1')
        e.label(L, flush=False); e.vm = saved
    def hu_wait_multi(self, ws, terms, mask, sh, dticks, pre=0, fwd=None, early=False):
        e, I = self.e, self.I
        L, LW = self.lab('hms'), self.lab('hmw')
        I('s_cmp_lg_u32 s3, 0'); e.branch('s_cbranch_scc1', L)
        if early:
            Dq = self.lab('hok')
            I('s_waitcnt vmcnt(0)'); I('v_cmp_eq_u32 vcc, -1, v14'); I(f's_cbranch_vccz {Dq}')
        else:
            self.base(98, P_WS, terms, ws)
            I(f'v_and_b32 v15, {mask}, v1'); I(f'v_lshlrev_b32 v15, {sh}, v15')
        self.poll('hm', ['global_load_dword v14, v15, s[98:99] sc1'], [14], pre, loop_sleep=self.cfg.get('hm_loop', 2))
        if early: e.label(Dq, flush=False)
        if fwd:
            I('s_memrealtime s[100:101]'); self.base(98, P_WS, [(fwd[1], 128)], fwd[0]); I('s_waitcnt lgkmcnt(0)')
            I('s_add_u32 s100, s100, 64'); I('v_sub_u32 v15, s100, v14')
            for sft in (8, 4, 2, 1): I(f'v_min_u32_dpp v15, v15, v15 row_ror:{sft} {DPPM}')
            I('v_sub_u32 v250, s100, v15'); I('v_mov_b32 v251, 0'); I('s_mov_b64 exec, 1'); I('global_store_dword v251, v250, s[98:99] sc1'); self.exec_all()
        I(f'v_mov_b32 v8, {dticks}')
        e.label(LW)
        I('s_memrealtime s[100:101]'); I('s_waitcnt lgkmcnt(0)')
        I('v_sub_u32 v15, s100, v14'); I('v_cmp_lt_u32 vcc, v15, v8'); I(f's_cbranch_vccnz {LW}')
        e.label(L); e.vm = []
        e.barrier()
    def hu_set_w(self, ws, sidx):
        e, I = self.e, self.I
        I('s_memrealtime s[100:101]')
        self.base(98, P_WS, [(sidx, 128), (3, 4)], ws)
        I('s_waitcnt lgkmcnt(0)'); I('s_and_b32 s100, s100, 0xfffffffe'); e.lg = []
        I('v_mov_b32 v251, 0'); I('v_mov_b32 v250, s100'); I('s_mov_b64 exec, 1'); I('global_store_dword v251, v250, s[98:99] sc1'); self.exec_all()
    def hu_wait_w(self, ws, terms, nl, dticks, pre=0):
        e, I = self.e, self.I
        L, LW = self.lab('hws'), self.lab('hww')
        I('s_cmp_lg_u32 s3, 0'); e.branch('s_cbranch_scc1', L)
        self.base(98, P_WS, terms, ws)
        if nl == 16:
            I('v_lshlrev_b32 v15, 10, v2'); I('v_lshl_add_u32 v15, v3, 3, v15')
            regs = [240, 241]
            self.poll('hw', ['global_load_dwordx2 v[240:241], v15, s[98:99] sc1'], regs, pre, loop_sleep=self.cfg.get('hm_loop', 2))
        else:
            I('v_lshlrev_b32 v15, 7, v1')
            regs = list(range(240, 248))
            self.poll('hw', ['global_load_dwordx4 v[240:243], v15, s[98:99] sc1', 'global_load_dwordx4 v[244:247], v15, s[98:99] offset:16 sc1'], regs, pre, loop_sleep=self.cfg.get('hm_loop', 2))
        I('s_memrealtime s[100:101]'); I('s_waitcnt lgkmcnt(0)')
        for r in regs: I(f'v_sub_u32 v{r}, s100, v{r}')
        if nl == 16: I('v_min_u32 v14, v240, v241')
        else:
            I('v_min3_u32 v14, v240, v241, v242'); I('v_min3_u32 v14, v14, v243, v244'); I('v_min3_u32 v14, v14, v245, v246'); I('v_min_u32 v14, v14, v247')
        I('v_sub_u32 v14, s100, v14')
        I(f'v_mov_b32 v8, {dticks}')
        e.label(LW)
        I('s_memrealtime s[100:101]'); I('s_waitcnt lgkmcnt(0)')
        I('v_sub_u32 v15, s100, v14'); I('v_cmp_lt_u32 vcc, v15, v8'); I(f's_cbranch_vccnz {LW}')
        e.label(L)
        e.barrier()
    def hu_prep(self, ws, sidx, sreg):
        self.base(sreg, P_WS, [(sidx, 128)], ws); self.I('v_mov_b32 v251, 0')
    def hu_clock(self):
        self.I('s_memrealtime s[100:101]'); self.e.lg.append('SMEM')
    def hu_store(self, sreg, wave=0, pol='sc1'):
        e, I = self.e, self.I
        L = self.lab('hst'); saved = list(e.vm)
        I(f's_cmp_lg_u32 s3, {wave}'); I(f's_cbranch_scc1 {L}')
        I('s_waitcnt lgkmcnt(0)'); I('s_and_b32 s100, s100, 0xfffffffe')
        I('v_mov_b32 v250, s100'); I('s_mov_b64 exec, 1'); I(f'global_store_dword v251, v250, s[{sreg}:{sreg+1}] {pol}'); self.exec_all()
        e.label(L, flush=False); e.vm = saved
    def hu_set(self, ws, sidx, wave=0):
        e, I = self.e, self.I
        L = self.lab('hset')
        saved = list(e.vm)
        I(f's_cmp_lg_u32 s3, {wave}'); e.branch('s_cbranch_scc1', L, flush=False)
        I('s_memrealtime s[100:101]')
        self.base(98, P_WS, [(sidx, 128)], ws)
        I('s_waitcnt lgkmcnt(0)'); I('s_and_b32 s100, s100, 0xfffffffe')
        I('v_mov_b32 v251, 0'); I('v_mov_b32 v250, s100'); I('s_mov_b64 exec, 1'); I('global_store_dword v251, v250, s[98:99] sc1'); self.exec_all()
        e.label(L, flush=False); e.vm = saved

    def pub_lds(self, lout, vaddr_g, sbase, rd=64, lanes=32, pol='sc1'):
        e, I = self.e, self.I
        L = self.lab('pub')
        e.barrier()
        I('s_cmp_lg_u32 s3, 0'); e.branch('s_cbranch_scc1', L, flush=False)
        I('s_mov_b32 exec_hi, 0' if lanes == 32 else 's_mov_b64 exec, 0xffff')
        I(f'ds_read_b128 {vr(rd,4)}, v253'); I('s_waitcnt lgkmcnt(0)')
        I(f'global_store_dwordx4 v{vaddr_g}, {vr(rd,4)}, s[{sbase}:{sbase+1}] {pol}'); self.exec_all()
        e.label(L, flush=False); e.lg = ['SMEM']
    def go_arrive(self, late=False):
        e, I = self.e, self.I
        L = self.lab('ga'); saved = list(e.vm)
        I('s_cmp_lg_u32 s3, 7'); e.branch('s_cbranch_scc1', L)
        I('s_cmp_eq_u64 s[38:39], 0'); e.branch('s_cbranch_scc1' if late else 's_cbranch_scc0', L)
        self.base(98, P_WS, [(4, 128)], WS_GOC)
        I('v_mov_b32 v248, 0'); I('v_mov_b32 v249, 1'); I('s_mov_b64 exec, 1')
        I(f'global_atomic_add v247, v248, v249, s[98:99] sc0 sc1'); self.exec_all()
        if late: I('s_waitcnt vmcnt(0)')
        e.label(L); e.vm = saved
    def go_finish(self):
        e, I = self.e, self.I
        L = self.lab('gf'); saved = list(e.vm)
        I('s_cmp_lg_u32 s3, 7'); e.branch('s_cbranch_scc1', L, flush=False)
        I('v_readfirstlane_b32 s6, v247'); I('s_memrealtime s[100:101]'); I('s_cmp_lg_u32 s6, 14'); I('s_waitcnt lgkmcnt(0)'); I(f's_cbranch_scc1 {L}')
        self.base(98, P_WS, [(4, 128)], WS_HU2)
        I('s_and_b32 s100, s100, 0xfffffffe')
        I('v_mov_b32 v251, 0'); I('v_mov_b32 v250, s100'); I('s_mov_b64 exec, 1'); I('global_store_dword v251, v250, s[98:99] sc1'); self.exec_all()
        e.label(L, flush=False); e.vm = saved
    def go_wait(self, dticks, mask=7, nobar=False):
        e, I = self.e, self.I
        L, LW = self.lab('gws'), self.lab('gww')
        I('s_cmp_lg_u32 s3, 0'); e.branch('s_cbranch_scc1', L)
        self.base(98, P_WS, [], WS_HU2)
        I(f'v_and_b32 v15, {mask}, v1'); I('v_lshlrev_b32 v15, 7, v15')
        GE = self.cfg.get('go_early', 0)
        if GE:
            Dg = self.lab('goe')
            I('v_cmp_eq_u32 vcc, -1, v14'); I(f's_cbranch_vccz {Dg}')
        self.poll('go', ['global_load_dword v14, v15, s[98:99] sc1'], [14], 0, loop_sleep=self.cfg.get('go_loop', 2))
        if GE: e.label(Dg, flush=False)
        I(f'v_mov_b32 v13, {dticks}')
        e.label(LW)
        I('s_memrealtime s[100:101]'); I('s_waitcnt lgkmcnt(0)')
        I('v_sub_u32 v15, s100, v14'); I('v_cmp_lt_u32 vcc, v15, v13'); I(f's_cbranch_vccnz {LW}')
        e.label(L)
        if not nobar: e.barrier()

    def x1_side(self, issue_only):
        e, I, cfg = self.e, self.I, self.cfg
        if cfg.get('g2', 0) >= 2:
            I('v_and_b32 v244, 7, v2'); I('v_lshlrev_b32 v244, 5, v244'); I('v_lshl_add_u32 v244, v3, 3, v244'); I('v_lshrrev_b32 v245, 1, v244')
            I('v_lshrrev_b32 v246, 3, v2'); I('v_lshl_add_u32 v245, v246, 10, v245'); I('v_mul_u32_u24 v246, 12288, v246'); I('v_add_u32 v244, v244, v246')
            self.base(56, P_X, [(3, 128)])
            I('global_load_dword v16, v245, s[56:57]')
            self.base(56, P_WS, [(3, 256)], WS_MODQ + 4096)
        else:
            if cfg.get('g2', 0): I('v_lshlrev_b32 v244, 5, v2'); I('v_lshl_add_u32 v244, v3, 3, v244')
            else: I('v_lshlrev_b32 v244, 4, v4'); I('v_lshl_add_u32 v244, v5, 3, v244')
            I('v_lshrrev_b32 v245, 1, v244')
            self.base(56, P_X, [(60, 1024), (55, 256)])
            I('global_load_dword v16, v245, s[56:57]')
            self.base(56, P_WS, [(60, 12288), (55, 512)], WS_MODQ + 4096)
        I('v_add_u32 v245, 4096, v244'); I('v_add_u32 v246, 24576, v244'); I('v_add_u32 v247, 28672, v244')
        self.mr_loads = ['global_load_dwordx2 v[18:19], v244, s[56:57] sc1', 'global_load_dwordx2 v[20:21], v244, s[56:57] offset:2048 sc1', 'global_load_dwordx2 v[22:23], v245, s[56:57] sc1',
                         'global_load_dwordx2 v[26:27], v246, s[56:57] sc1', 'global_load_dwordx2 v[28:29], v246, s[56:57] offset:2048 sc1', 'global_load_dwordx2 v[30:31], v247, s[56:57] sc1']
        if issue_only:
            for ld in self.mr_loads: I(ld)
        else:
            self.poll('mr', self.mr_loads, [18, 19, 20, 21, 22, 23, 26, 27, 28, 29, 30, 31], 0)
    def stage_x1(self):
        e, I, cfg = self.e, self.I, self.cfg
        self.stamp(7)
        if cfg.get('gside', 0):
            Dm = self.lab('mrok')
            e.wait_vm()
            r_ = self.maxtree([18, 19, 20, 21, 22, 23, 26, 27, 28, 29, 30, 31], 8)
            I(f'v_cmp_eq_u32 vcc, -1, v{r_}'); I(f's_cbranch_vccz {Dm}')
            self.poll('mr', self.mr_loads, [18, 19, 20, 21, 22, 23, 26, 27, 28, 29, 30, 31], 0)
            e.label(Dm, flush=False)
        else:
            self.x1_side(False)
        for k in range(6): I(f'v_add_f32 v{18+k}, v{18+k}, v{26+k}')
        I('v_add_f32 v22, 1.0, v22'); I('v_add_f32 v23, 1.0, v23')
        I('v_and_b32 v17, 0xffff0000, v16'); I('v_lshlrev_b32 v16, 16, v16')
        if cfg.get('g2', 0) == 2: return self.stage_g3()
        if cfg.get('g2', 0): return self.stage_g2()
        I('v_lshlrev_b32 v9, 14, v5'); I('v_lshl_add_u32 v9, v4, 4, v9')
        for k in range(1, 4): I(f'v_add_u32 v{9+k}, {k*4096}, v9')
        self.base(44, P_WS, [(60, 2048), (55, 512)], WS_H5)
        I('v_lshrrev_b32 v13, 3, v4'); I('v_lshlrev_b32 v13, 6, v13'); I('v_and_b32 v26, 3, v4'); I('v_lshl_add_u32 v13, v26, 4, v13')
        I('v_bfe_u32 v26, v4, 2, 1'); I('v_lshl_add_u32 v13, v26, 3, v13'); I('v_lshl_add_u32 v13, v5, 2, v13')
        self.sval('s6', [(3, 256), (60, 64)], L_H2V); I('v_add_u32 v13, s6, v13')
        I('v_lshlrev_b32 v26, 4, v4'); I('v_lshl_add_u32 v26, v5, 3, v26'); self.sval('s6', [(3, 512)], L_X1); I('v_add_u32 v26, s6, v26')
        I('v_and_b32 v27, 1, v2'); I('v_mul_u32_u24 v27, 1088, v27'); I('v_lshl_add_u32 v27, v3, 4, v27'); I(f'v_add_u32 v27, {L_H2V}, v27')
        self.sval('s6', [(3, 8)], L_XST); I('v_mov_b32 v24, s6'); self.sval('s6', [(60, 32)], L_XST); I('v_mov_b32 v25, s6')
        I('v_mul_u32_u24 v28, 192, v2'); I('v_lshl_add_u32 v28, v3, 4, v28')
        I('s_bfe_u32 s58, s3, 0x10001')
        self.sval('s6', [(60, 64), (62, 32), (58, 8)], L_GRED); I('v_add_u32 v28, s6, v28')
        I('v_and_b32 v29, 1, v2'); I('v_mul_u32_u24 v29, 192, v29'); I('v_lshl_add_u32 v29, v3, 4, v29'); I(f'v_add_u32 v29, {L_GRED}, v29')
        if cfg.get('publds', 1):
            I('v_lshlrev_b32 v30, 8, v2'); I('v_lshl_add_u32 v30, v3, 4, v30'); self.sval('s6', [(3, 512)], L_X1); I('v_add_u32 v30, s6, v30'); I('v_add_u32 v31, s6, v6')
            I('v_lshlrev_b32 v26, 11, v3'); I('v_lshl_add_u32 v26, v2, 4, v26')
        else:
            I('v_lshlrev_b32 v30, 11, v2'); I('v_lshl_add_u32 v30, v3, 4, v30')
        self.base(46, P_WS, [(43, 4096), (3, 256)], WS_H7)
        I('s_lshl_b32 s97, s4, 3'); I('s_add_u32 s97, s97, s5'); I('s_sub_u32 s97, s97, 8')
        if cfg.get('hu5m', 0) == 3: self.hu_wait_w(WS_HU5, [], 64, cfg['t_h5'])
        elif cfg.get('hu5m', 0) == 1: self.hu_wait_multi(WS_HU5, [], 63, 7, cfg['t_h5'])
        elif cfg.get('hu5m', 0) == 2: self.hu_wait_multi(WS_HU5, [(41, 128)], 7, 10, cfg['t_h5'])
        else: self.hu_wait(WS_HU5, 97, cfg['t_h5'])
        self.stamp(8)
        self.poll('h5', [f'global_load_dwordx4 {vr(64+4*k,4)}, v{9+k}, s[44:45] sc1' for k in range(4)], range(64, 80), 0, loop_sleep=cfg.get('h5_loop', 4))
        self.stamp(11)
        for k in range(4): I(f'v_add_f32 v{64+k}, v{64+k}, v{68+k}')
        for k in range(4): I(f'v_add_f32 v{72+k}, v{72+k}, v{76+k}')
        for k in range(4): I(f'v_add_f32 v{64+k}, v{64+k}, v{72+k}')
        I('v_permlane32_swap_b32 v64, v66'); I('v_permlane32_swap_b32 v65, v67')
        I('v_add_f32 v64, v64, v66'); I('v_add_f32 v65, v65, v67')
        I('v_fma_f32 v64, v18, v64, v16'); I('v_fma_f32 v65, v19, v65, v17')
        I('v_readfirstlane_b32 s56, v64')
        I('v_subrev_f32 v66, s56, v64'); I('v_subrev_f32 v67, s56, v65')
        I('v_add_f32 v68, v66, v67'); I('v_mul_f32 v69, v66, v66'); I('v_fmac_f32 v69, v67, v67')
        self.ror_reduce([68, 69], [8, 4, 2, 1])
        for w in (16, 32):
            I('v_mov_b32 v70, v68'); I('v_mov_b32 v71, v69'); I(f'v_permlane{w}_swap_b32 v68, v70'); I(f'v_permlane{w}_swap_b32 v69, v71'); I('v_add_f32 v68, v68, v70'); I('v_add_f32 v69, v69, v71')
        I(f'v_mul_f32 v70, {f32(1/128)}, v68'); I('v_fma_f32 v71, -v70, v68, v69'); I('v_add_f32 v70, s56, v70')
        I('ds_write_b64 v24, v[70:71]')
        e.barrier()
        I('ds_read_b128 v[68:71], v25'); I('ds_read_b128 v[72:75], v25 offset:16'); e.wait_lg()
        I('v_add_f32 v76, v68, v70'); I('v_add_f32 v77, v72, v74'); I('v_add_f32 v76, v76, v77'); I(f'v_mul_f32 v76, {f32(0.25)}, v76')
        I('v_add_f32 v77, v69, v71'); I('v_add_f32 v78, v73, v75'); I('v_add_f32 v77, v77, v78')
        for k in range(4): I(f'v_sub_f32 v{68+2*k}, v{68+2*k}, v76')
        I('v_mul_f32 v78, v68, v68')
        for k in range(1, 4): I(f'v_fmac_f32 v78, v{68+2*k}, v{68+2*k}')
        I(f'v_mov_b32 v79, {f32(1e-5)}'); I(f'v_fmac_f32 v79, {f32(1/512)}, v77'); I(f'v_fmac_f32 v79, {f32(128/512)}, v78'); I('v_rsq_f32 v79, v79')
        I('v_sub_f32 v64, v64, v76'); I('v_sub_f32 v65, v65, v76')
        I('v_mul_f32 v66, v79, v22'); I('v_mul_f32 v67, v79, v23')
        I('v_fma_f32 v64, v64, v66, v20'); I('v_fma_f32 v65, v65, v67, v21')
        I('v_cvt_pk_bf16_f32 v64, v64, v65'); I('ds_write_b32 v13, v64')
        e.barrier()
        for s in range(16): I(f'ds_read_b128 {vr(160+4*s,4)}, v27 offset:{s*64}', tag=f'h2{s}')
        for s in range(16):
            e.wait_lg(f'h2{s}')
            I(f'v_mfma_f32_16x16x32_bf16 {vr(72+4*(s&1),4)}, {vr(96+4*s,4)}, {vr(160+4*s,4)}, {"0" if s < 2 else vr(72+4*(s&1),4)}')
        c1 = -2*math.sqrt(2/math.pi)*math.log2(math.e)
        I(f's_mov_b32 s6, {f32(c1*0.044715)}'); I(f'v_mov_b32 v84, {f32(c1)}')
        for k in range(4): I(f'v_add_f32 v{72+k}, v{72+k}, v{76+k}')
        for k in range(4): I(f'v_mov_b32 v{76+k}, v{72+k}')
        for k in range(4): I(f'v_permlane32_swap_b32 v{72+k}, v{76+k}')
        for k in range(4): I(f'v_mul_f32 v{80+k}, v{72+k}, v{72+k}')
        for k in range(4): I(f'v_fma_f32 v{80+k}, v{80+k}, s6, v84')
        for k in range(4): I(f'v_mul_f32 v{80+k}, v{80+k}, v{72+k}')
        for k in range(4): I(f'v_exp_f32 v{80+k}, v{80+k}')
        for k in range(4): I(f'v_add_f32 v{80+k}, 1.0, v{80+k}')
        for k in range(4): I(f'v_rcp_f32 v{80+k}, v{80+k}')
        for k in range(4): I(f'v_mul_f32 v{72+k}, v{72+k}, v{76+k}')
        for k in range(4): I(f'v_mul_f32 v{72+k}, v{72+k}, v{80+k}')
        I('v_cvt_pk_bf16_f32 v72, v72, v73'); I('v_cvt_pk_bf16_f32 v73, v74, v75')
        I('s_mov_b32 exec_lo, 0x00030003'); I('s_mov_b32 exec_hi, 0')
        I('ds_write_b64 v28, v[72:73]'); self.exec_all()
        e.barrier()
        self.stamp(12)
        I('ds_read_b128 v[64:67], v29'); I('ds_read_b128 v[68:71], v29 offset:64'); e.wait_lg()
        for t in range(4): I(f'v_mfma_f32_16x16x32_bf16 {vr(72+4*t,4)}, {vr(32+8*t,4)}, v[64:67], 0')
        for t in range(4): I(f'v_mfma_f32_16x16x32_bf16 {vr(72+4*t,4)}, {vr(36+8*t,4)}, v[68:71], {vr(72+4*t,4)}')
        self.exec_mask(48)
        if cfg.get('publds', 1):
            for t in range(4): I(f'ds_write_b128 v30, {vr(72+4*t,4)} offset:{t*64}')
            I('s_mov_b32 exec_lo, -1'); I('s_mov_b32 exec_hi, 0'); e.wait_lg()
            I('ds_read_b128 v[64:67], v31'); e.wait_lg()
            I('global_store_dwordx4 v26, v[64:67], s[46:47] sc1')
        else:
            for t in range(4): I(f'global_store_dwordx4 v30, {vr(72+4*t,4)}, s[46:47] offset:{t*64} sc1')
        self.exec_all()
        self.stamp(13)
        e.branch('s_branch', 'L_FIN')

    def stage_g2(self):
        e, I, cfg = self.e, self.I, self.cfg
        L_PRE, L_ST2 = 64*K, 80*K
        I('v_lshrrev_b32 v13, 2, v2'); I('v_lshlrev_b32 v13, 6, v13'); I('v_and_b32 v26, 1, v2'); I('v_lshl_add_u32 v13, v26, 5, v13')
        I('v_lshrrev_b32 v26, 1, v3'); I('v_lshl_add_u32 v13, v26, 4, v13'); I('v_bfe_u32 v26, v2, 1, 1'); I('v_lshl_add_u32 v13, v26, 3, v13')
        I('v_and_b32 v26, 1, v3'); I('v_lshl_add_u32 v13, v26, 2, v13')
        self.sval('s6', [(55, 256), (60, 1088)], L_PRE); I('v_add_u32 v14, s6, v13')
        self.sval('s6', [(55, 256), (60, 1088)], L_H2V); I('v_add_u32 v13, s6, v13')
        for (src, row) in ((22, 0), (20, 4)):
            I(f'v_cvt_pk_bf16_f32 v64, v{src}, v{src+1}')
            I('v_lshlrev_b32 v65, 16, v64'); I('v_and_b32 v66, 0xffff0000, v64')
            I(f'v_sub_f32 v65, v{src}, v65'); I(f'v_sub_f32 v66, v{src+1}, v66')
            I('v_cvt_pk_bf16_f32 v65, v65, v66')
            I(f'ds_write_b32 v14, v64 offset:{row*1088}'); I(f'ds_write_b32 v14, v65 offset:{(row+2)*1088}')
        I('v_and_b32 v27, 7, v2'); I('v_mul_u32_u24 v27, 1088, v27'); I('v_lshl_add_u32 v27, v3, 4, v27'); I(f'v_add_u32 v27, {L_PRE}, v27')
        e.barrier()
        def matmul(extra=None):
            for s in range(16): I(f'ds_read_b128 {vr(160+4*s,4)}, v27 offset:{s*64}', tag=f'h2{s}')
            for s in range(16):
                e.wait_lg(f'h2{s}')
                I(f'v_mfma_f32_16x16x32_bf16 {vr(72+4*(s&1),4)}, {vr(96+4*s,4)}, {vr(160+4*s,4)}, {"0" if s < 2 else vr(72+4*(s&1),4)}')
                if extra: extra(s)
        matmul()
        for k in range(4): I(f'v_add_f32 v{72+k}, v{72+k}, v{76+k}')
        for k in range(4): I(f'v_add_f32_dpp v{88+k}, v{72+k}, v{72+k} row_shl:2 {DPPM}')
        for k in range(4): I(f'v_mov_b32_dpp v{92+k}, v{88+k} row_shl:4 {DPPM}')
        I('v_lshlrev_b32 v9, 11, v3'); I('v_lshl_add_u32 v9, v2, 4, v9'); I('v_add_u32 v10, 8192, v9')
        self.base(44, P_WS, [(60, 1024), (55, 256)], WS_H5)
        I('v_and_b32 v27, 1, v2'); I('v_lshlrev_b32 v25, 11, v27'); I('v_mul_u32_u24 v27, 1088, v27'); I('v_lshl_add_u32 v27, v3, 4, v27'); I(f'v_add_u32 v27, {L_H2V}, v27')
        self.sval('s6', [(3, 512)], L_ST2); I('v_add_u32 v24, s6, v7')
        I('v_lshrrev_b32 v26, 1, v1'); I('v_lshl_add_u32 v25, v26, 4, v25'); I(f'v_add_u32 v25, {L_ST2}, v25')
        I('v_mul_u32_u24 v28, 192, v2'); I('v_lshl_add_u32 v28, v3, 4, v28')
        I('s_bfe_u32 s58, s3, 0x10001')
        self.sval('s6', [(60, 64), (62, 32), (58, 8)], L_GRED); I('v_add_u32 v28, s6, v28')
        I('v_and_b32 v29, 1, v2'); I('v_mul_u32_u24 v29, 192, v29'); I('v_lshl_add_u32 v29, v3, 4, v29'); I(f'v_add_u32 v29, {L_GRED}, v29')
        I('v_lshlrev_b32 v30, 8, v2'); I('v_lshl_add_u32 v30, v3, 4, v30'); self.sval('s6', [(3, 512)], L_X1); I('v_add_u32 v30, s6, v30'); I('v_add_u32 v31, s6, v6')
        I('v_lshlrev_b32 v26, 11, v3'); I('v_lshl_add_u32 v26, v2, 4, v26')
        self.base(46, P_WS, [(43, 4096), (3, 256)], WS_H7)
        I('v_mov_b32 v11, 0x00003f80'); I('v_mov_b32 v12, 0x3f800000')
        c1 = -2*math.sqrt(2/math.pi)*math.log2(math.e)
        I(f's_mov_b32 s56, {f32(c1*0.044715)}'); I(f'v_mov_b32 v20, {f32(c1)}'); I(f'v_mov_b32 v21, {f32(1e-5)}')
        self.hu_wait_multi(WS_HU5, [(41, 128)], 7, 10, cfg['t_h5'])
        self.stamp(8)
        self.poll('h5', [f'global_load_dwordx4 {vr(64+4*k,4)}, v{9+k}, s[44:45] sc1' for k in range(2)], range(64, 72), 0, loop_sleep=cfg.get('h5_loop', 4))
        self.stamp(11)
        for k in range(8): I(f'v_dot2_f32_bf16 v{72+k}, v{64+(k>>1)}, v{11+(k&1)}, 0')
        for k in range(8): I(f'v_dot2_f32_bf16 v{72+k}, v{68+(k>>1)}, v{11+(k&1)}, v{72+k}')
        for k in range(4): I(f'v_permlane32_swap_b32 v{72+k}, v{76+k}')
        for k in range(4): I(f'v_add_f32 v{72+k}, v{72+k}, v{76+k}')
        for k in range(2): I(f'v_permlane16_swap_b32 v{72+k}, v{74+k}')
        for k in range(2): I(f'v_add_f32 v{72+k}, v{72+k}, v{74+k}')
        I('v_fma_f32 v64, v18, v72, v16'); I('v_fma_f32 v65, v19, v73, v17')
        I('v_mul_f32 v66, v64, v22'); I('v_mul_f32 v67, v65, v23')
        I('v_cvt_pk_bf16_f32 v66, v66, v67'); I('ds_write_b32 v13, v66')
        I('v_add_f32 v68, v64, v65'); I('v_mul_f32 v69, v64, v64'); I('v_fmac_f32 v69, v65, v65')
        I('ds_write_b64 v24, v[68:69]')
        e.barrier()
        for k in range(4): I(f'ds_read_b128 {vr(224+4*k,4)}, v25 offset:{k*512}', tag='st')
        steps = []
        steps.append(lambda: [I(f'v_add_f32 v{224+k}, v{224+k}, v{232+k}') for k in range(8)])
        steps.append(lambda: [I(f'v_add_f32 v{224+k}, v{224+k}, v{228+k}') for k in range(4)])
        steps.append(lambda: [I(f'v_add_f32 v{224+k}, v{224+k}, v{226+k}') for k in range(2)])
        for sft in (2, 4, 8): steps.append(lambda sft=sft: self.ror_reduce([224, 225], [sft]))
        for w in (16, 32):
            steps.append(lambda: [I('v_mov_b32 v226, v224'), I('v_mov_b32 v227, v225')])
            steps.append(lambda w=w: [I(f'v_permlane{w}_swap_b32 v224, v226'), I(f'v_permlane{w}_swap_b32 v225, v227')])
            steps.append(lambda: [I('v_add_f32 v224, v224, v226'), I('v_add_f32 v225, v225, v227')])
        steps.append(lambda: [I(f'v_mul_f32 v224, {f32(-1/512)}, v224'), I(f'v_fmac_f32 v21, {f32(1/512)}, v225')])
        steps.append(lambda: [I('v_fma_f32 v21, -v224, v224, v21')])
        steps.append(lambda: [I('v_rsq_f32 v225, v21')])
        matmul(lambda s: steps[s]() if s < len(steps) else None)
        for k in range(4): I(f'v_fma_f32 v{80+k}, v224, v{88+k}, v{72+k}')
        for k in range(4): I(f'v_add_f32 v{80+k}, v{80+k}, v{76+k}')
        for k in range(4): I(f'v_fma_f32 v{72+k}, v225, v{80+k}, v{92+k}')
        for k in range(4): I(f'v_mov_b32 v{76+k}, v{72+k}')
        for k in range(4): I(f'v_permlane32_swap_b32 v{72+k}, v{76+k}')
        for k in range(4): I(f'v_mul_f32 v{80+k}, v{72+k}, v{72+k}')
        for k in range(4): I(f'v_fma_f32 v{80+k}, v{80+k}, s56, v20')
        for k in range(4): I(f'v_mul_f32 v{80+k}, v{80+k}, v{72+k}')
        for k in range(4): I(f'v_exp_f32 v{80+k}, v{80+k}')
        for k in range(4): I(f'v_mul_f32 v{72+k}, v{72+k}, v{76+k}')
        for k in range(4): I(f'v_add_f32 v{80+k}, 1.0, v{80+k}')
        for k in range(4): I(f'v_rcp_f32 v{80+k}, v{80+k}')
        for k in range(4): I(f'v_mul_f32 v{72+k}, v{72+k}, v{80+k}')
        I('v_cvt_pk_bf16_f32 v72, v72, v73'); I('v_cvt_pk_bf16_f32 v73, v74, v75')
        I('s_mov_b32 exec_lo, 0x00030003'); I('s_mov_b32 exec_hi, 0')
        I('ds_write_b64 v28, v[72:73]'); self.exec_all()
        e.barrier()
        self.stamp(12)
        I('ds_read_b128 v[64:67], v29'); I('ds_read_b128 v[68:71], v29 offset:64'); e.wait_lg()
        for t in range(4): I(f'v_mfma_f32_16x16x32_bf16 {vr(72+4*t,4)}, {vr(32+8*t,4)}, v[64:67], 0')
        for t in range(4): I(f'v_mfma_f32_16x16x32_bf16 {vr(72+4*t,4)}, {vr(36+8*t,4)}, v[68:71], {vr(72+4*t,4)}')
        self.exec_mask(48)
        for t in range(4): I(f'ds_write_b128 v30, {vr(72+4*t,4)} offset:{t*64}')
        I('s_mov_b32 exec_lo, -1'); I('s_mov_b32 exec_hi, 0'); e.wait_lg()
        I('ds_read_b128 v[64:67], v31'); e.wait_lg()
        I('global_store_dwordx4 v26, v[64:67], s[46:47] sc1')
        self.exec_all()
        self.stamp(13)
        e.branch('s_branch', 'L_FIN')

    def stage_g3(self):
        e, I, cfg = self.e, self.I, self.cfg
        L_PV, L_RED, L_STW, L_RED2 = L_S, L_S + 10*K, L_S + 18*K, L_S + 22*K
        PIT = 144
        I('v_bfe_u32 v13, v2, 2, 1'); I('v_lshlrev_b32 v13, 6, v13'); I('v_and_b32 v26, 1, v2'); I('v_lshl_add_u32 v13, v26, 5, v13')
        I('v_lshrrev_b32 v26, 1, v3'); I('v_lshl_add_u32 v13, v26, 4, v13'); I('v_bfe_u32 v26, v2, 1, 1'); I('v_lshl_add_u32 v13, v26, 3, v13')
        I('v_and_b32 v26, 1, v3'); I('v_lshl_add_u32 v13, v26, 2, v13')
        I('v_lshrrev_b32 v26, 3, v2'); I(f'v_mul_u32_u24 v27, {PIT}, v26'); I('v_add_u32 v13, v13, v27')
        self.sval('s6', [(3, 1280)], L_PV); I('v_add_u32 v13, s6, v13')
        I('v_and_b32 v27, 7, v2'); I(f'v_mul_u32_u24 v27, {PIT}, v27'); I('v_lshl_add_u32 v27, v3, 4, v27'); I('v_add_u32 v27, s6, v27')
        self.sval('s6', [(3, 8)], L_STW); I('v_lshlrev_b32 v24, 6, v26'); I('v_add_u32 v24, s6, v24')
        I('v_and_b32 v26, 1, v3'); I('v_and_b32 v25, 7, v2'); I('v_lshlrev_b32 v25, 3, v25'); I('v_lshl_add_u32 v25, v26, 6, v25'); I(f'v_add_u32 v25, {L_STW}, v25')
        I('v_and_b32 v28, 1, v2'); I('v_lshlrev_b32 v28, 6, v28'); I('v_lshl_add_u32 v28, v3, 4, v28'); I('v_bfe_u32 v29, v2, 2, 1'); I(f'v_mul_u32_u24 v29, {L_RED2-L_RED}, v29'); I('v_add_u32 v28, v28, v29')
        self.sval('s6', [(3, 1024)], L_RED); I('v_add_u32 v30, s6, v28')
        self.sval('s6', [(3, 128)], L_RED); I('v_lshlrev_b32 v31, 2, v4'); I('v_add_u32 v31, s6, v31'); I(f'v_add_u32 v29, {L_RED2-L_RED}, v31')
        for (src, row) in ((22, 0), (20, 4)):
            I(f'v_cvt_pk_bf16_f32 v64, v{src}, v{src+1}')
            I('v_lshlrev_b32 v65, 16, v64'); I('v_and_b32 v66, 0xffff0000, v64')
            I(f'v_sub_f32 v65, v{src}, v65'); I(f'v_sub_f32 v66, v{src+1}, v66')
            I('v_cvt_pk_bf16_f32 v65, v65, v66')
            I(f'ds_write_b32 v13, v64 offset:{row*PIT}'); I(f'ds_write_b32 v13, v65 offset:{(row+2)*PIT}')
        def matmul(extra=None, pre=None):
            I('ds_read_b128 v[64:67], v27', tag='b0'); I('ds_read_b128 v[68:71], v27 offset:64', tag='b1')
            if pre: pre()
            n = 0
            for s2 in range(2):
                e.wait_lg(f'b{s2}')
                for t in range(8):
                    I(f'v_mfma_f32_16x16x32_bf16 {vr(160+4*t,4)}, {vr(96+8*t+4*s2,4)}, {vr(64+4*s2,4)}, {"0" if s2 == 0 else vr(160+4*t,4)}')
                    if extra: extra(n)
                    n += 1
        def gather(va, dst, tmp):
            for k in range(4): I(f'ds_read2st64_b32 {vr(tmp+2*k,2)}, v{va} offset0:{8*k} offset1:{8*k+4}')
        def sum8(dst, tmp, fill=None):
            for k in range(4): I(f'v_add_f32 v{tmp+k}, v{tmp+k}, v{tmp+4+k}')
            if fill: fill(0)
            for k in range(2): I(f'v_add_f32 v{tmp+k}, v{tmp+k}, v{tmp+2+k}')
            if fill: fill(1)
            I(f'v_add_f32 v{dst}, v{tmp}, v{tmp+1}')
            if fill: fill(2)
        matmul()
        for k in range(32): I(f'v_add_f32_dpp v{192+k}, v{160+k}, v{160+k} row_shl:2 {DPPM}')
        I('s_mov_b32 exec_lo, 0x00330033'); I('s_mov_b32 exec_hi, 0x00330033')
        for t in range(8): I(f'ds_write_b128 v30, {vr(192+4*t,4)} offset:{t*128}')
        self.exec_all()
        e.barrier()
        gather(31, 88, 72); gather(29, 89, 80); e.wait_lg()
        sum8(88, 72); sum8(89, 80)
        I('v_lshlrev_b32 v9, 11, v3'); I('v_lshrrev_b32 v10, 3, v2'); I('v_lshl_add_u32 v9, v10, 10, v9'); I('v_and_b32 v10, 7, v2'); I('v_lshl_add_u32 v9, v10, 4, v9'); I('v_add_u32 v10, 8192, v9')
        self.base(44, P_WS, [(3, 128)], WS_H5)
        I('v_and_b32 v27, 1, v2'); I(f'v_mul_u32_u24 v27, {PIT}, v27'); I('v_lshl_add_u32 v27, v3, 4, v27'); self.sval('s6', [(3, 1280)], L_PV); I('v_add_u32 v27, s6, v27')
        I('v_and_b32 v28, 1, v3'); I('v_mul_u32_u24 v28, 192, v28'); I('v_lshrrev_b32 v29, 2, v2'); I('v_lshl_add_u32 v28, v29, 4, v28'); I('v_and_b32 v29, 3, v2'); I('v_lshl_add_u32 v28, v29, 1, v28')
        I('s_bfe_u32 s58, s3, 0x10001')
        self.sval('s6', [(60, 64), (62, 32), (58, 8)], L_GRED); I('v_add_u32 v28, s6, v28')
        I('v_and_b32 v29, 1, v2'); I('v_mul_u32_u24 v29, 192, v29'); I('v_lshl_add_u32 v29, v3, 4, v29'); I(f'v_add_u32 v29, {L_GRED}, v29')
        I('v_lshlrev_b32 v90, 8, v2'); I('v_lshl_add_u32 v90, v3, 4, v90'); self.sval('s6', [(3, 512)], L_X1); I('v_add_u32 v90, s6, v90'); I('v_add_u32 v91, s6, v6')
        I('v_lshlrev_b32 v26, 11, v3'); I('v_lshl_add_u32 v26, v2, 4, v26')
        if cfg.get('cmp', 0):
            I('v_lshlrev_b32 v92, 6, v2'); I('v_lshl_add_u32 v92, v3, 4, v92'); self.sval('s6', [(3, 1024)], L_RED); I('v_add_u32 v92, s6, v92')
            I('v_and_b32 v90, 1, v2'); I('v_lshlrev_b32 v90, 8, v90'); I('v_lshrrev_b32 v93, 1, v2'); I('v_lshl_add_u32 v90, v93, 6, v90'); I('v_lshl_add_u32 v90, v3, 4, v90')
            self.sval('s6', [(3, 512)], L_X1); I('v_add_u32 v90, s6, v90')
        self.base(46, P_WS, [(43, 4096), (3, 256)], WS_H7)
        I('v_mov_b32 v11, 0x00003f80'); I('v_mov_b32 v12, 0x3f800000')
        c1 = -2*math.sqrt(2/math.pi)*math.log2(math.e)
        I(f's_mov_b32 s56, {f32(c1*0.044715)}'); I(f'v_mov_b32 v20, {f32(c1)}'); I(f'v_mov_b32 v21, {f32(1e-5)}')
        WARM = cfg.get('warm', 0)
        if cfg.get('gprio', 0):
            Lp = self.lab('gp'); I('s_cmp_lt_u32 s3, 4'); I(f's_cbranch_scc1 {Lp}'); I('s_setprio 2'); e.label(Lp, flush=False)
        LPS, LSK, LNS = self.lab('pass'), self.lab('skip'), self.lab('nost')
        if WARM:
            I('s_mov_b32 s59, 0'); e.branch('s_branch', LSK)
            e.label(LPS)
            I(f'v_mov_b32 v21, {f32(1e-5)}')
        self.hu_wait_multi(WS_HU5, [(41, 128)], 7, 10, cfg['t_h5'])
        self.stamp(8)
        self.poll('h5', [f'global_load_dwordx4 {vr(64+4*k,4)}, v{9+k}, s[44:45] sc1' for k in range(2)], range(64, 72), 0, loop_sleep=cfg.get('h5_loop', 4))
        self.stamp(11)
        if WARM: e.label(LSK, flush=False)
        for k in range(8): I(f'v_dot2_f32_bf16 v{72+k}, v{64+(k>>1)}, v{11+(k&1)}, 0')
        for k in range(8): I(f'v_dot2_f32_bf16 v{72+k}, v{68+(k>>1)}, v{11+(k&1)}, v{72+k}')
        for k in range(4): I(f'v_permlane32_swap_b32 v{72+k}, v{76+k}')
        for k in range(4): I(f'v_add_f32 v{72+k}, v{72+k}, v{76+k}')
        for k in range(2): I(f'v_permlane16_swap_b32 v{72+k}, v{74+k}')
        for k in range(2): I(f'v_add_f32 v{72+k}, v{72+k}, v{74+k}')
        I('v_fma_f32 v76, v18, v72, v16'); I('v_fma_f32 v77, v19, v73, v17')
        I('v_mul_f32 v78, v76, v22'); I('v_mul_f32 v79, v77, v23')
        if cfg.get('gfine'): I('s_memrealtime s[66:67]')
        I('v_cvt_pk_bf16_f32 v78, v78, v79'); e.lg = []; I('ds_write_b32 v13, v78')
        steps = []
        steps.append(lambda: [I('v_add_f32 v80, v76, v77'), I('v_mul_f32 v81, v76, v76')])
        steps.append(lambda: [I('v_fmac_f32 v81, v77, v77')])
        for qp in ('quad_perm:[1,0,3,2]', 'quad_perm:[2,3,0,1]', 'row_half_mirror'):
            steps.append(lambda qp=qp: [I(f'v_add_f32_dpp v{r}, v{r}, v{r} {qp} {DPPM}') for r in (80, 81)])
        for w in (16, 32):
            steps.append(lambda: [I('v_mov_b32 v82, v80'), I('v_mov_b32 v83, v81')])
            steps.append(lambda w=w: [I(f'v_permlane{w}_swap_b32 v80, v82'), I(f'v_permlane{w}_swap_b32 v81, v83')])
            steps.append(lambda: [I('v_add_f32 v80, v80, v82'), I('v_add_f32 v81, v81, v83')])
        steps.append(lambda: [I('s_mov_b64 exec, 0x101'), I('ds_write_b64 v24, v[80:81]'), self.exec_mask(48)])
        def ex(n):
            if n < len(steps): steps[n]()
            elif n >= 12: I(f'ds_write_b128 v30, {vr(160+4*(n-12),4)} offset:{(n-12)*128}')
        CMP = cfg.get('cmp', 0)
        def pick(dst, src, t, base=48):
            I(f's_lshl_b64 exec, s[{base}:{base+1}], {2*t}'); I(f'v_mov_b64 {vr(dst,2)}, {vr(src,2)}'); I(f'v_mov_b64 {vr(dst+2,2)}, {vr(src+2,2)}')
        if CMP:
            steps[-1] = lambda: [I('s_mov_b64 exec, 0x101'), I('ds_write_b64 v24, v[80:81]'), self.exec_all()]
            def ex3(n):
                if n < len(steps): steps[n]()
                elif n >= 13: pick(160, 160+4*(n-12), n-12)
            matmul(ex3)
            for t in range(4, 8): pick(160, 160+4*t, t)
            self.exec_all(); I('ds_write_b128 v92, v[160:163]')
        elif cfg.get('g3o', 0):
            NP = cfg.get('g3o')
            def pre():
                for st_ in steps[:NP]: st_()
            rest = steps[NP:]
            def ex2(n):
                if n < len(rest): rest[n]()
                elif n >= 12: I(f'ds_write_b128 v30, {vr(160+4*(n-12),4)} offset:{(n-12)*128}')
            matmul(ex2, pre)
        else: matmul(ex)
        if cfg.get('gfine'): I('s_memrealtime s[68:69]')
        if not CMP:
            for t in range(4, 8): I(f'ds_write_b128 v30, {vr(160+4*t,4)} offset:{t*128}')
        I('s_mov_b32 exec_lo, -1'); I('s_mov_b32 exec_hi, 0')
        e.barrier()
        if cfg.get('gfine'): I('s_memrealtime s[70:71]')
        if cfg.get('gfine'): I('s_waitcnt lgkmcnt(0)')
        I('ds_read_b64 v[80:81], v25', tag='st'); gather(31, 72, 72)
        e.wait_lg('st')
        for qp in ('quad_perm:[1,0,3,2]', 'quad_perm:[2,3,0,1]', 'row_half_mirror'):
            for r in (80, 81): I(f'v_add_f32_dpp v{r}, v{r}, v{r} {qp} {DPPM}')
        I(f'v_mul_f32 v80, {f32(-1/512)}, v80'); I(f'v_fmac_f32 v21, {f32(1/512)}, v81')
        I('v_fma_f32 v21, -v80, v80, v21'); I('v_rsq_f32 v81, v21')
        e.wait_lg()
        if cfg.get('gfine'): I('s_memrealtime s[72:73]')
        I('v_fmac_f32 v72, v80, v88')
        sum8(72, 72)
        I('v_fma_f32 v72, v81, v72, v89')
        I('v_mul_f32 v73, v72, v72'); I('v_fma_f32 v73, v73, s56, v20'); I('v_mul_f32 v73, v73, v72'); I('v_exp_f32 v73, v73')
        I(f'v_mul_f32_dpp v74, v72, v72 row_ror:8 {DPPM}')
        I('v_add_f32 v73, 1.0, v73'); I('v_rcp_f32 v73, v73'); I('v_mul_f32 v74, v74, v73')
        I('v_cvt_pk_bf16_f32 v74, v74, v74')
        if cfg.get('gfine'): I('s_memrealtime s[74:75]')
        I('s_mov_b32 exec_lo, 0x00ff00ff')
        I('ds_write_b16 v28, v74'); self.exec_all()
        e.barrier()
        self.stamp(12)
        I('ds_read_b128 v[64:67], v29'); I('ds_read_b128 v[68:71], v29 offset:64'); e.wait_lg()
        for t in range(4): I(f'v_mfma_f32_16x16x32_bf16 {vr(72+4*t,4)}, {vr(32+8*t,4)}, v[64:67], 0')
        for t in range(4): I(f'v_mfma_f32_16x16x32_bf16 {vr(72+4*t,4)}, {vr(36+8*t,4)}, v[68:71], {vr(72+4*t,4)}')
        if CMP:
            for t in range(1, 4): pick(72, 72+4*t, t)
            I('s_mov_b32 exec_lo, 0x00ff00ff'); I('s_mov_b32 exec_hi, 0x00ff00ff'); I('ds_write_b128 v90, v[72:75]')
        else:
            self.exec_mask(48)
            for t in range(4): I(f'ds_write_b128 v90, {vr(72+4*t,4)} offset:{t*64}')
        I('s_mov_b32 exec_lo, -1'); I('s_mov_b32 exec_hi, 0'); e.wait_lg()
        I('ds_read_b128 v[64:67], v91'); e.wait_lg()
        if WARM:
            I('s_xor_b32 s59, s59, 1'); self.exec_all(); I(f's_cbranch_scc1 {LPS}'); I('s_mov_b32 exec_hi, 0')
        I('global_store_dwordx4 v26, v[64:67], s[46:47] sc1')
        self.exec_all()
        self.stamp(13)
        e.branch('s_branch', 'L_FIN')

    def stage_g4(self):
        e, I, cfg = self.e, self.I, self.cfg
        PIT = 144
        e.vm = []
        self.base(44, P_WD, [(43, 64*1024), (3, 128)])
        I('v_lshlrev_b32 v12, 1, v3'); I('v_and_b32 v9, 7, v1'); I('v_xor_b32 v12, v12, v9'); I('v_lshlrev_b32 v12, 4, v12'); I('v_lshrrev_b32 v9, 3, v1'); I('v_lshl_add_u32 v12, v9, 10, v12')
        for q in range(1 if cfg.get('noload') else 8):
            I(f'global_load_dwordx4 {vr(160+4*q,4)}, v12, s[44:45] nt', tag='wd')
            if q < 7: I('v_add_u32 v12, 8192, v12')
        self.base(44, P_WG, [(3, 64*3584), (43, 128)])
        self.dma_128(44, 3584, 8, [(3, 8192)], L_WG, 'ga')
        ALL = cfg.get('g4all', 0)
        if ALL:
            self.base(44, P_WU, [(3, 64*3584), (43, 128)])
            self.dma_128(44, 3584, 8, [(3, 8192)], L_WU, 'up')
            e.wait_vm('wd')
            if ALL == 1: self.x1_side(True); e.vm[-1] = 'side'
        else:
            e.wait_vm('wd')
            self.x1_side(True); e.vm[-1] = 'side'
            self.base(44, P_WU, [(3, 64*3584), (43, 128)])
            self.dma_128(44, 3584, 8, [(3, 8192)], L_WU, 'up')
        self.sval('s6', [(3, 4096)], L_S); I('v_add_u32 v13, s6, v6')
        self.tr_base_128(12, [(3, 4096)], L_S)
        for s2 in range(2):
            for q in range(4): I(f'ds_write_b128 v13, {vr(160+16*s2+4*q,4)} offset:{q*1024}')
            for t in range(4):
                I(f'v_xor_b32 v{8+(t&1)}, {t<<5}, v12')
                I(f'ds_read_b64_tr_b16 {vr(32+8*t+4*s2,2)}, v{8+(t&1)}'); I(f'ds_read_b64_tr_b16 {vr(34+8*t+4*s2,2)}, v{8+(t&1)} offset:2048')
        I('v_bfe_u32 v13, v2, 2, 1'); I('v_lshlrev_b32 v13, 6, v13'); I('v_and_b32 v24, 1, v2'); I('v_lshl_add_u32 v13, v24, 5, v13')
        I('v_lshrrev_b32 v24, 1, v3'); I('v_lshl_add_u32 v13, v24, 4, v13'); I('v_bfe_u32 v24, v2, 1, 1'); I('v_lshl_add_u32 v13, v24, 3, v13')
        I('v_and_b32 v24, 1, v3'); I('v_lshl_add_u32 v13, v24, 2, v13')
        I('v_lshrrev_b32 v24, 3, v2'); I(f'v_mul_u32_u24 v25, {PIT}, v24'); I('v_add_u32 v13, v13, v25')
        self.sval('s6', [(3, 4096)], L_S); I('v_add_u32 v13, s6, v13')
        I('v_and_b32 v84, 3, v2'); I(f'v_mul_u32_u24 v84, {PIT}, v84'); I('v_lshl_add_u32 v84, v3, 4, v84'); I('v_add_u32 v84, s6, v84')
        I('v_and_b32 v85, 1, v2'); I(f'v_mul_u32_u24 v85, {PIT}, v85'); I('v_lshl_add_u32 v85, v3, 4, v85'); I('v_add_u32 v85, s6, v85')
        I('v_and_b32 v90, 1, v2'); I('v_lshlrev_b32 v90, 8, v90'); I('v_lshrrev_b32 v93, 1, v2'); I('v_lshl_add_u32 v90, v93, 6, v90'); I('v_lshl_add_u32 v90, v3, 4, v90')
        I('s_add_u32 s6, s6, 1024'); I('v_add_u32 v90, s6, v90'); I('v_add_u32 v91, s6, v6')
        I('s_lshl_b32 s6, s3, 13')
        I('v_lshlrev_b32 v24, 3, v24'); I('v_add_u32 v24, s6, v24')
        I('v_and_b32 v93, 1, v3'); I('v_and_b32 v25, 7, v2'); I('v_lshlrev_b32 v25, 13, v25'); I('v_lshl_add_u32 v25, v93, 3, v25')
        I('v_lshlrev_b32 v92, 6, v2'); I('v_lshl_add_u32 v92, v3, 4, v92'); I('v_add_u32 v92, s6, v92')
        I('v_and_b32 v94, 1, v2'); I('v_lshlrev_b32 v94, 6, v94'); I('v_bfe_u32 v95, v2, 1, 1'); I('v_lshl_add_u32 v94, v95, 10, v94')
        I('v_lshrrev_b32 v95, 2, v2'); I('v_lshl_add_u32 v94, v95, 7, v94'); I('v_lshl_add_u32 v94, v3, 4, v94'); I('v_add_u32 v94, s6, v94')
        I('v_lshrrev_b32 v95, 3, v2'); I('v_lshlrev_b32 v95, 9, v95'); I('v_lshl_add_u32 v95, v93, 6, v95'); I('v_and_b32 v93, 7, v2'); I('v_lshl_add_u32 v95, v93, 2, v95')
        self.sval('s6', [(61, 128), (62, 32)]); I('v_add_u32 v95, s6, v95'); I('v_add_u32 v93, 1024, v95')
        I('v_lshlrev_b32 v86, 11, v3'); I('v_lshrrev_b32 v10, 3, v2'); I('v_lshl_add_u32 v86, v10, 10, v86'); I('v_and_b32 v10, 7, v2'); I('v_lshl_add_u32 v86, v10, 4, v86'); I('v_add_u32 v87, 8192, v86')
        self.base(44, P_WS, [(3, 128)], WS_H5)
        self.base(46, P_WS, [(43, 4096), (3, 256)], WS_H7)
        self.tr_base_128(12, [(3, 8192)], L_WG)
        I('s_mov_b32 s58, 0x000f000f'); I('s_mov_b32 s59, 0x000f000f')
        def pick(dst, src, sh, base=48):
            I(f's_lshl_b64 exec, s[{base}:{base+1}], {sh}'); I(f'v_mov_b64 {vr(dst,2)}, {vr(src,2)}'); I(f'v_mov_b64 {vr(dst+2,2)}, {vr(src+2,2)}')
        def frags(h):
            for t in range(4):
                I(f'v_xor_b32 v{8+(t&1)}, {t<<5}, v12')
                for s2 in range(2):
                    r = 96 + 32*h + 8*t + 4*s2
                    I(f'ds_read_b64_tr_b16 {vr(r,2)}, v{8+(t&1)} offset:{s2*4096}'); I(f'ds_read_b64_tr_b16 {vr(r+2,2)}, v{8+(t&1)} offset:{s2*4096+2048}')
        def gather(va, tmp):
            for k in range(4): I(f'ds_read2st64_b32 {vr(tmp+2*k,2)}, v{va} offset0:{64*k} offset1:{64*k+32}')
        def sum8(dst, tmp):
            for k in range(4): I(f'v_add_f32 v{tmp+k}, v{tmp+k}, v{tmp+4+k}')
            for k in range(2): I(f'v_add_f32 v{tmp+k}, v{tmp+k}, v{tmp+2+k}')
            I(f'v_add_f32 v{dst}, v{tmp}, v{tmp+1}')
        if ALL:
            e.wait_vm('ga')
            if ALL == 2: self.x1_side(True); e.vm[-1] = 'side'
            frags(0); I(f'v_add_u32 v12, {L_WU}, v12'); e.wait_vm('up'); frags(1); e.wait_vm('side'); self.stamp(7)
        else:
            e.wait_vm('side')
            frags(0)
        Dm = self.lab('mrok'); saved = list(e.vm)
        r_ = self.maxtree([18, 19, 20, 21, 22, 23, 26, 27, 28, 29, 30, 31], 10)
        I(f'v_cmp_eq_u32 vcc, -1, v{r_}'); I(f's_cbranch_vccz {Dm}')
        self.poll('mr', self.mr_loads, [18, 19, 20, 21, 22, 23, 26, 27, 28, 29, 30, 31], 0, t=10)
        e.label(Dm, flush=False); e.vm = saved
        for k in range(6): I(f'v_add_f32 v{18+k}, v{18+k}, v{26+k}')
        I('v_add_f32 v22, 1.0, v22'); I('v_add_f32 v23, 1.0, v23')
        I('v_and_b32 v17, 0xffff0000, v16'); I('v_lshlrev_b32 v16, 16, v16')
        I('v_cvt_pk_bf16_f32 v64, v22, v23'); I('v_cvt_pk_bf16_f32 v65, v20, v21')
        I('ds_write_b32 v13, v64'); I(f'ds_write_b32 v13, v65 offset:{2*PIT}')
        I('ds_read_b128 v[64:67], v84'); I('ds_read_b128 v[68:71], v84 offset:64')
        I('v_and_b32 v28, 1, v3'); I('v_mul_u32_u24 v28, 192, v28'); I('v_lshrrev_b32 v29, 2, v2'); I('v_lshl_add_u32 v28, v29, 4, v28'); I('v_and_b32 v29, 3, v2'); I('v_lshl_add_u32 v28, v29, 1, v28')
        I('s_bfe_u32 s57, s3, 0x10001')
        self.sval('s6', [(60, 64), (62, 32), (57, 8)], 4096); I('v_add_u32 v28, s6, v28')
        I('v_and_b32 v29, 1, v2'); I('v_mul_u32_u24 v29, 192, v29'); I('v_lshl_add_u32 v29, v3, 4, v29'); I('v_add_u32 v29, 4096, v29')
        I('v_lshlrev_b32 v26, 11, v3'); I('v_lshl_add_u32 v26, v2, 4, v26')
        I('v_mov_b32 v30, 0x00003f80'); I('v_mov_b32 v31, 0x3f800000')
        c1 = -2*math.sqrt(2/math.pi)*math.log2(math.e)
        I(f's_mov_b32 s56, {f32(c1*0.044715)}'); I(f'v_mov_b32 v20, {f32(c1)}'); I(f'v_mov_b32 v21, {f32(1e-5)}')
        def cpass(h):
            e.wait_lg()
            for s2 in range(2):
                for t in range(4):
                    I(f'v_mfma_f32_16x16x32_bf16 {vr(160+4*t,4)}, {vr(96+32*h+8*t+4*s2,4)}, {vr(64+4*s2,4)}, {"0" if s2 == 0 else vr(160+4*t,4)}')
            for t in range(1, 4): pick(160, 160+4*t, 4*t, 58)
            self.exec_all(); I(f'ds_write_b128 v94, v[160:163] offset:{512*h}')
        cpass(0)
        if not ALL:
            I(f'v_add_u32 v12, {L_WU}, v12')
            e.wait_vm()
            self.stamp(7)
            frags(1)
        cpass(1)
        HE = cfg.get('hu_early', 0)
        if not HE:
            e.barrier()
            gather(95, 72); gather(93, 160); e.wait_lg()
            sum8(88, 72); sum8(89, 160)
        HU7 = cfg.get('t_h7b', 0)
        if HU7: self.hu_prep(WS_HU2 + 4096, 43, 38)
        self.hu_wait_multi(WS_HU5, [(41, 128)], 7, 10, cfg['t_h5'])
        self.stamp(8)
        h5l = [f'global_load_dwordx4 {vr(64+4*k,4)}, v{86+k}, s[44:45] sc1' for k in range(2)]
        if HE:
            Dh = self.lab('h5k')
            for ld in h5l: I(ld.replace(' sc1', '') if cfg.get('h5plain', 0) else ld)
            gather(95, 72); gather(93, 160); e.wait_lg()
            sum8(88, 72); sum8(89, 160)
            I('v_add_u32 v95, 3072, v95'); I('v_add_u32 v92, 3072, v92')
            e.wait_vm()
            r_ = self.maxtree(range(64, 72), 8)
            I(f'v_cmp_eq_u32 vcc, -1, v{r_}'); I(f's_cbranch_vccz {Dh}')
        self.poll('h5', h5l, range(64, 72), 0, loop_sleep=cfg.get('h5_loop', 4))
        if HE: e.label(Dh, flush=False)
        self.stamp(11)
        if HU7: self.hu_clock()
        if cfg.get('nodot', 0):
            for k in range(4): I(f'v_lshlrev_b32 v{72+2*k}, 16, v{64+k}'); I(f'v_and_b32 v{73+2*k}, 0xffff0000, v{64+k}')
            for k in range(4): I(f'v_lshlrev_b32 v{64+k}, 16, v{68+k}'); I(f'v_and_b32 v{68+k}, 0xffff0000, v{68+k}')
            for k in range(4): I(f'v_add_f32 v{72+2*k}, v{72+2*k}, v{64+k}'); I(f'v_add_f32 v{73+2*k}, v{73+2*k}, v{68+k}')
        else:
            for k in range(8): I(f'v_dot2_f32_bf16 v{72+k}, v{64+(k>>1)}, v{30+(k&1)}, 0')
            for k in range(8): I(f'v_dot2_f32_bf16 v{72+k}, v{68+(k>>1)}, v{30+(k&1)}, v{72+k}')
        for k in range(4): I(f'v_permlane32_swap_b32 v{72+k}, v{76+k}')
        for k in range(4): I(f'v_add_f32 v{72+k}, v{72+k}, v{76+k}')
        if HU7: n0 = e.n; self.hu_store(38, wave=cfg.get('hu7_wave', 7)); e.n = n0 + 2
        for k in range(2): I(f'v_permlane16_swap_b32 v{72+k}, v{74+k}')
        for k in range(2): I(f'v_add_f32 v{72+k}, v{72+k}, v{74+k}')
        I('v_fma_f32 v76, v18, v72, v16'); I('v_fma_f32 v77, v19, v73, v17')
        I('v_mul_f32 v78, v76, v22'); I('v_mul_f32 v79, v77, v23')
        I('v_cvt_pk_bf16_f32 v78, v78, v79'); e.lg = []; I('ds_write_b32 v13, v78')
        steps = []
        steps.append(lambda: [I('v_add_f32 v80, v76, v77'), I('v_mul_f32 v81, v76, v76')])
        steps.append(lambda: [I('v_fmac_f32 v81, v77, v77')])
        for qp in ('quad_perm:[1,0,3,2]', 'quad_perm:[2,3,0,1]', 'row_half_mirror'):
            steps.append(lambda qp=qp: [I(f'v_add_f32_dpp v{r}, v{r}, v{r} {qp} {DPPM}') for r in (80, 81)])
        for w in (16, 32):
            steps.append(lambda: [I('v_mov_b32 v82, v80'), I('v_mov_b32 v83, v81')])
            steps.append(lambda w=w: [I(f'v_permlane{w}_swap_b32 v80, v82'), I(f'v_permlane{w}_swap_b32 v81, v83')])
            steps.append(lambda: [I('v_add_f32 v80, v80, v82'), I('v_add_f32 v81, v81, v83')])
        steps.append(lambda: [I('s_mov_b64 exec, 0x101'), I('ds_write_b64 v24, v[80:81] offset:2048'), self.exec_all()])
        I('ds_read_b128 v[64:67], v85', tag='b0'); I('ds_read_b128 v[68:71], v85 offset:64', tag='b1')
        NP = cfg.get('g3o', 0)
        for st_ in steps[:NP]: st_()
        steps = steps[NP:]
        n = 0
        for s2 in range(2):
            e.wait_lg(f'b{s2}')
            for t in range(8):
                I(f'v_mfma_f32_16x16x32_bf16 {vr(160+4*t,4)}, {vr(96+8*t+4*s2,4)}, {vr(64+4*s2,4)}, {"0" if s2 == 0 else vr(160+4*t,4)}')
                if n < len(steps): steps[n]()
                elif n >= 13: pick(160, 160+4*(n-12), 2*(n-12))
                n += 1
        for t in range(4, 8): pick(160, 160+4*t, 2*t)
        self.exec_all(); I('ds_write_b128 v92, v[160:163]')
        I('s_mov_b32 exec_hi, 0')
        e.barrier()
        I('ds_read_b64 v[80:81], v25 offset:2048', tag='st'); gather(95, 72)
        e.wait_lg('st')
        for qp in ('quad_perm:[1,0,3,2]', 'quad_perm:[2,3,0,1]', 'row_half_mirror'):
            for r in (80, 81): I(f'v_add_f32_dpp v{r}, v{r}, v{r} {qp} {DPPM}')
        I(f'v_mul_f32 v80, {f32(-1/512)}, v80'); I(f'v_fmac_f32 v21, {f32(1/512)}, v81')
        I('v_fma_f32 v21, -v80, v80, v21'); I('v_rsq_f32 v81, v21')
        e.wait_lg()
        I('v_fmac_f32 v72, v80, v88')
        sum8(72, 72)
        I('v_fma_f32 v72, v81, v72, v89')
        I('v_mul_f32 v73, v72, v72'); I('v_fma_f32 v73, v73, s56, v20'); I('v_mul_f32 v73, v73, v72'); I('v_exp_f32 v73, v73')
        I(f'v_mul_f32_dpp v74, v72, v72 row_ror:8 {DPPM}')
        I('v_add_f32 v73, 1.0, v73'); I('v_rcp_f32 v73, v73'); I('v_mul_f32 v74, v74, v73')
        I('v_cvt_pk_bf16_f32 v74, v74, v74')
        I('s_mov_b32 exec_lo, 0x00ff00ff')
        I('ds_write_b16 v28, v74'); self.exec_all()
        e.barrier()
        self.stamp(12)
        I('ds_read_b128 v[64:67], v29'); I('ds_read_b128 v[68:71], v29 offset:64'); e.wait_lg()
        for t in range(4): I(f'v_mfma_f32_16x16x32_bf16 {vr(72+4*t,4)}, {vr(32+8*t,4)}, v[64:67], 0')
        for t in range(4): I(f'v_mfma_f32_16x16x32_bf16 {vr(72+4*t,4)}, {vr(36+8*t,4)}, v[68:71], {vr(72+4*t,4)}')
        for t in range(1, 4): pick(72, 72+4*t, 2*t)
        I('s_mov_b32 exec_lo, 0x00ff00ff'); I('s_mov_b32 exec_hi, 0x00ff00ff'); I('ds_write_b128 v90, v[72:75]')
        I('s_mov_b32 exec_lo, -1'); I('s_mov_b32 exec_hi, 0')
        I('ds_read_b128 v[64:67], v91'); e.wait_lg()
        I('global_store_dwordx4 v26, v[64:67], s[46:47] sc1')
        self.exec_all()
        self.stamp(13)
        e.branch('s_branch', 'L_FIN')

    def stage_fin(self):
        e, I, cfg = self.e, self.I, self.cfg
        if cfg.get('gpf', 1):
            Lp = self.lab('gpf'); pol = '' if cfg.get('gpf', 1) == 2 else 'nt'
            I('s_cmp_ge_u32 s43, 28'); e.branch('s_cbranch_scc1', Lp)
            if cfg.get('gpf3', 0): I('s_cmp_lg_u32 s41, 3'); e.branch('s_cbranch_scc1', Lp)
            self.sleep(cfg.get('gpf_pre', 0))
            self.base(44, P_WU, [(3, 64*3584), (43, 128)])
            self.dma_128(44, 3584, 8, [(3, 8192)], 0, 'pf', pol=pol)
            if cfg.get('gpf_what', 0) == 0:
                self.base(44, P_WD, [(43, 64*1024), (3, 128)])
                self.dma_128(44, 1024, 8, [(3, 8192)], 64*K, 'pf', pol=pol)
            elif cfg.get('gpf_what', 0) == 2:
                self.base(44, P_WG, [(3, 64*3584), (43, 128)], 32*3584)
                self.dma_128(44, 3584, 4, [(3, 8192)], 64*K, 'pf', pol=pol)
            e.wait_vm()
            e.label(Lp); e.vm = []
        if cfg.get('uvpf', 0):
            self.sleep(cfg.get('uvpf_pre', 0))
            for qq in range(4):
                self.base(44, P_WUV, [(3, 16*8192), (43, 256)], qq*128*8192)
                self.dma_256(44, 8192, qq*32768, 'pf', '32', pol='' if cfg['uvpf'] == 2 else 'nt')
            e.wait_vm()
            self.stamp(7)
        I('s_cmp_lg_u32 s3, 0'); e.branch('s_cbranch_scc1', 'L_FIN')
        if cfg.get('pt', 0) & 1: I('v_mov_b32 v9, 0'); I(f'global_load_dword v250, v9, {sp(P_OUT)}')
        I('v_lshrrev_b32 v9, 3, v1'); I('v_bfe_u32 v10, v1, 2, 1'); I('v_and_b32 v11, 3, v1')
        I('v_lshlrev_b32 v12, 12, v9'); I('v_lshl_add_u32 v12, v10, 11, v12'); I('v_lshl_add_u32 v12, v11, 4, v12')
        for k in range(1, 3): I(f'v_add_u32 v{12+k}, {k*32768}, v12')
        I('v_and_b32 v15, 3, v9'); I('v_lshlrev_b32 v15, 12, v15'); I('v_lshl_add_u32 v15, v10, 11, v15'); I('v_lshl_add_u32 v15, v11, 4, v15'); I(f'v_add_u32 v15, {3*32768}, v15')
        I('v_and_b32 v16, 1, v9'); I('v_lshl_add_u32 v16, v16, 1, v10'); I('v_mul_u32_u24 v16, 12288, v16'); I('v_lshl_add_u32 v16, v11, 4, v16'); I(f'v_add_u32 v17, {1536*4}, v16')
        self.base(44, P_WS, [(43, 64)], WS_MODQ + 1024*4)
        I('v_lshlrev_b32 v18, 10, v10'); I('v_lshl_add_u32 v18, v11, 3, v18')
        self.base(46, P_X, [(43, 32)])
        I('global_load_dwordx2 v[20:21], v18, s[46:47]')
        I('s_lshl_b32 s97, s4, 3'); I('s_add_u32 s97, s97, s5'); I('s_sub_u32 s97, s97, 8')
        FM = cfg.get('fin_m', 0)
        if FM:
            self.base(98, P_WS, [(41, 128)], WS_HU5 + 512)
            I('v_and_b32 v19, 7, v1'); I('v_lshlrev_b32 v19, 10, v19')
            self.poll('hu', ['global_load_dword v56, v19, s[98:99] sc1'], [56], cfg.get('fin_pre', 20), loop_sleep=cfg.get('fin_loop', 8))
        else:
            self.base(98, P_WS, [(97, 128)], WS_HU5)
            I('v_mov_b32 v19, 0')
            self.poll('hu', ['global_load_dword v22, v19, s[98:99] sc1'], [22], cfg.get('fin_pre', 20), loop_sleep=4)
            I('v_readfirstlane_b32 s57, v22')
        self.stamp(8)
        self.poll('mg', ['global_load_dwordx4 v[24:27], v16, s[44:45] sc1', 'global_load_dwordx4 v[28:31], v17, s[44:45] sc1'], range(24, 32), 0)
        self.ror_reduce(range(24, 32), [8])
        I('v_and_b32 v23, 0xffff0000, v21'); I('v_lshlrev_b32 v22, 16, v21'); I('v_and_b32 v21, 0xffff0000, v20'); I('v_lshlrev_b32 v20, 16, v20')
        G2 = cfg.get('g2', 0)
        if G2:
            self.base(44, P_WS, [(43, 32)], WS_H5); I('v_lshrrev_b32 v59, 1, v12')
        else: self.base(44, P_WS, [(43, 64)], WS_H5)
        self.base(46, P_OUT, [(43, 32)])
        def wait_until(d):
            LW = self.lab('fw')
            if FM:
                I(f'v_mov_b32 v58, {d}'); e.label(LW)
                I('s_memrealtime s[100:101]'); I('s_waitcnt lgkmcnt(0)'); I('v_sub_u32 v57, s100, v56'); I('v_cmp_lt_u32 vcc, v57, v58'); I(f's_cbranch_vccnz {LW}')
                return
            e.label(LW)
            I('s_memrealtime s[100:101]'); I('s_waitcnt lgkmcnt(0)'); I('s_sub_u32 s6, s100, s57'); I(f's_cmp_lt_u32 s6, {d}'); I(f's_cbranch_scc1 {LW}')
        wait_until(cfg['t_h5'] + cfg.get('fin_h5', 30))
        if G2:
            self.poll('h5', ['global_load_dwordx2 v[34:35], v59, s[44:45] sc1'], [34, 35], 0, loop_sleep=8)
            I('v_lshlrev_b32 v32, 16, v34'); I('v_and_b32 v33, 0xffff0000, v34'); I('v_lshlrev_b32 v34, 16, v35'); I('v_and_b32 v35, 0xffff0000, v35')
        else: self.poll('h5', ['global_load_dwordx4 v[32:35], v12, s[44:45] sc1'], range(32, 36), 0, loop_sleep=8)
        self.stamp(11)
        def red8(b):
            self.ror_reduce(range(b, b+4), [8])
            for w in (16, 32):
                for k in range(4): I(f'v_mov_b32 v{60+k}, v{b+k}')
                for k in range(4): I(f'v_permlane{w}_swap_b32 v{b+k}, v{60+k}')
                for k in range(4): I(f'v_add_f32 v{b+k}, v{b+k}, v{60+k}')
        red8(32)
        for k in range(4): I(f'v_fma_f32 v{20+k}, v{24+k}, v{32+k}, v{20+k}')
        self.base(44, P_WS, [(43, 64)], WS_H7)
        I('v_cmp_gt_u32 vcc, 32, v1'); I('v_cndmask_b32 v19, 0, 1.0, vcc')
        if cfg.get('t_h7b', 0):
            self.base(98, P_WS, [], WS_HU2 + 4096)
            I('v_min_u32 v59, 27, v1'); I('v_lshlrev_b32 v59, 7, v59')
            wait_until(cfg.get('t_h7a', 150))
            self.poll('hu7', ['global_load_dword v56, v59, s[98:99] sc1'], [56], 0, loop_sleep=2)
            wait_until(cfg['t_h7b'])
        else: wait_until(cfg['t_h7'])
        self.poll('h7', [f'global_load_dwordx4 {vr(36+4*k,4)}, v{12+k}, s[44:45] sc1' for k in range(4)], range(36, 52), 0, loop_sleep=cfg.get('h7_loop', 4))
        self.stamp(12)
        for k in range(4): I(f'v_add_f32 v{36+k}, v{36+k}, v{40+k}')
        for k in range(4): I(f'v_fma_f32 v{44+k}, v{48+k}, v19, v{44+k}')
        for k in range(4): I(f'v_add_f32 v{36+k}, v{36+k}, v{44+k}')
        red8(36)
        for k in range(4): I(f'v_fma_f32 v{36+k}, v{28+k}, v{36+k}, v{20+k}')
        I('v_cvt_pk_bf16_f32 v36, v36, v37'); I('v_cvt_pk_bf16_f32 v37, v38, v39')
        if cfg.get('calib') == 2: self.sleep(cfg['calib_t'])
        I('s_mov_b64 exec, 0xff'); I(f'global_store_dwordx2 v18, v[36:37], s[46:47] {["", "sc1", "sc0 sc1", "nt"][cfg.get("outpol", 0)]}'); self.exec_all()
        self.stamp(13)
        e.branch('s_branch', 'L_FIN')

    def role_b(self):
        e, I, cfg = self.e, self.I, self.cfg
        I('s_mov_b32 s38, s2')
        I('s_lshr_b32 s39, s38, 6'); I('s_and_b32 s42, s38, 63')
        for k in range(4): I(f'v_mov_b32 v{16+k}, -1')
        I('s_lshl_b32 s6, s55, 4'); I('v_xor_b32 v20, s6, v6')
        for k in range(1, 4): I(f'v_xor_b32 v{20+k}, {k<<6}, v20')
        LNC = self.lab('nc')
        CB = 94 if not cfg.get('stamps') else 98
        ILV = cfg.get('ilv', 0)
        if ILV == 1:
            self.base(CB, P_CKV, [(39, 8388608), (42, 1024), (3, 4*65536)]); CHS = 32*65536
            for k in range(4): I(f'v_add_u32 v{244+k}, {k*64512}, v{20+k}')
        elif ILV == 2:
            self.base(CB, P_CKV, [(39, 8388608), (42, 4096), (3, 4*65536)]); CHS = 32*65536
        elif ILV == 3:
            self.base(CB, P_CKV, [(39, 8388608), (42, 32768), (3, 4096)]); CHS = 32*65536
        else:
            self.base(CB, P_CKV, [(39, 8388608), (42, 131072), (3, 4096)]); CHS = 32768
        VA = 244 if ILV == 1 else 20
        self.sval('s52', [(3, 4096)], L_CKV)
        WIN = cfg.get('ckv_win', 4)
        ckv_next = [0]
        def ckv_issue(upto):
            while ckv_next[0] < min(upto, 16):
                n = ckv_next[0]; ch, k = n >> 2, n & 3
                if k == 0 and ch: I(f's_add_u32 s{CB}, s{CB}, {CHS}'); I(f's_addc_u32 s{CB+1}, s{CB+1}, 0')
                I(f's_add_u32 m0, s52, {ch*32768}')
                I(f'global_load_lds_dwordx4 v{VA+k}, s[{CB}:{CB+1}] offset:{k*1024} nt', tag=f'ckv{n}')
                ckv_next[0] += 1
        if not cfg.get('p1a', 0):
            LCL = self.lab('cl')
            P1Q = cfg.get('p1q', 0)
            if P1Q == 2:
                I('s_lshl_b32 s43, s5, 2'); I('s_and_b32 s6, s4, 3'); I('s_add_u32 s43, s43, s6'); I('s_lshr_b32 s6, s4, 2'); I('s_lshl_b32 s6, s6, 6'); I('s_add_u32 s43, s43, s6')
            else: I('s_mov_b32 s43, s38')
            I('s_cmp_ge_u32 s43, 64'); e.branch('s_cbranch_scc1', LCL)
            if P1Q: I('s_lshr_b32 s56, s43, 4'); I('s_and_b32 s57, s43, 15')
            else: I('s_lshr_b32 s56, s5, 2'); I('s_bfe_u32 s6, s5, 0x10001'); I('s_lshl_b32 s6, s6, 3'); I('s_add_u32 s6, s6, s4'); I('s_lshl_b32 s6, s6, 1'); I('s_and_b32 s57, s5, 1'); I('s_add_u32 s57, s57, s6')
            def p1_after():
                if not cfg.get('p1_early', 0): return 0
                ckv_issue(cfg['p1_early']); return cfg['p1_early']
            def p1_mid():
                if cfg.get('p1bar', 0): I('s_barrier')
                I('s_mov_b32 s63, s52')
                ckv_issue(cfg['p1_first'])
            if P1Q: self.p1_tile(L_MT, L_RED1, after=p1_after, mid=p1_mid if cfg.get('p1_first', 0) else None)
            if cfg.get('p1_first', 0): I('s_mov_b32 s52, s63')
            if not P1Q: self.mod_tile(True, L_MT, L_SC, L_RED1, early=True, after=p1_after)
            self.stamp(12)
            ckv_issue(WIN)
            ckv_next[0] = 0
            e.branch('s_branch', 'L_CKVGO')
            e.sec('early')
            e.label(LCL); e.vm = []; e.lg = ['SMEM']
            I('s_cmp_ge_u32 s43, 96'); e.branch('s_cbranch_scc1', LNC)
            I('s_sub_u32 s43, s43, 64')
            self.base(44, P_WS, [(43, 16384), (3, 2048)], WS_H2)
            for k in range(2 if not cfg.get('noclean') else 0): I(f'global_store_dwordx4 v6, v[16:19], s[44:45] offset:{k*1024} {POL[cfg.get("c0pol", 0)]}')
            self.base(44, P_WS, [(43, 2048), (3, 256)], WS_HQ2)
            I('s_mov_b64 exec, 0xffff'); I('global_store_dwordx4 v6, v[16:19], s[44:45] sc1'); self.exec_all()
            e.wait_vm(); e.barrier()
            L1 = self.lab('c1')
            I('s_cmp_lg_u32 s3, 0'); e.branch('s_cbranch_scc1', L1)
            I('v_mov_b32 v8, 0'); I('v_mov_b32 v9, 1'); I('s_mov_b64 exec, 1')
            I(f'global_atomic_add v10, v8, v9, {sp(P_DBG)} offset:192 sc0 sc1')
            I('s_waitcnt vmcnt(0)'); self.exec_all()
            I('v_readfirstlane_b32 s6, v10'); I('s_nop 3'); I('s_cmp_lg_u32 s6, 31'); e.branch('s_cbranch_scc1', L1)
            I('v_mov_b32 v9, 0x01010101'); I('s_mov_b64 exec, 1')
            I(f'global_store_dword v8, v9, {sp(P_DBG)} offset:128 sc1'); self.exec_all()
            e.label(L1); e.vm = ['x']
            self.stamp(1)
            self.sleep(cfg.get('bc_pre', 0))
            e.branch('s_branch', 'L_MODDONE')
            e.label(LNC)
        self.sleep(cfg.get('b_pre', 0))
        e.label('L_MODDONE'); e.vm = ['x']; e.lg = ['SMEM']
        self.stamp(2)
        ckv_issue(WIN)
        e.cont()
        e.label('L_CKVGO')
        I('s_mov_b32 s53, s52')
        Q2 = cfg.get('qk2', 0)
        if Q2:
            I('v_and_b32 v8, 3, v2'); I('v_xor_b32 v8, v8, v3'); I('v_lshlrev_b32 v8, 2, v8'); I('v_lshrrev_b32 v9, 2, v2'); I('v_or_b32 v8, v8, v9')
            I('v_lshlrev_b32 v8, 4, v8'); I('v_lshl_add_u32 v24, v2, 10, v8')
            I('s_lshl_b32 s6, s55, 15'); I('v_add_u32 v25, s6, v24')
            self.sval('s6', [(60, 16384)], L_QABS); I('v_add_u32 v24, s6, v24')
        else:
            I('v_and_b32 v8, 3, v4'); I('v_lshlrev_b32 v8, 2, v8'); I('v_bfe_u32 v9, v4, 2, 2'); I('v_or_b32 v8, v8, v9'); I('v_xor_b32 v8, v8, v5')
            I('v_lshlrev_b32 v8, 4, v8'); I('v_lshl_add_u32 v24, v4, 10, v8')
            I('s_lshl_b32 s6, s60, 9'); I('v_add_u32 v24, s6, v24')
            I('s_lshl_b32 s6, s55, 15'); I('v_add_u32 v25, s6, v24')
            I(f'v_add_u32 v24, {L_QABS}, v24')
        I('v_lshrrev_b32 v8, 2, v2'); I('v_lshl_add_u32 v9, v5, 2, v8'); I('v_lshl_or_b32 v8, v8, 2, v5')
        I('v_and_b32 v10, 1, v3'); I('v_lshlrev_b32 v10, 1, v10'); I('v_bfe_u32 v11, v2, 1, 1'); I('v_or_b32 v10, v10, v11')
        I('s_lshl_b32 s6, s62, 3'); I('v_or_b32 v10, s6, v10')
        I('v_xor_b32 v10, v10, v8'); I('v_lshlrev_b32 v10, 4, v10'); I('v_lshl_add_u32 v10, v9, 10, v10')
        I('v_and_b32 v11, 1, v2'); I('v_lshl_add_u32 v10, v11, 3, v10')
        I('s_lshl_b32 s6, s61, 8'); I('v_add_u32 v10, s6, v10')
        for u in range(2):
            for jh in range(2):
                r = 26 + 2*u + jh
                I(f'v_xor_b32 v{r}, {(u<<6)|(jh<<5)}, v10')
                if jh: I(f'v_add_u32 v{r}, 8192, v{r}')
        QA, PV = (32, 160) if Q2 else (32, 96)
        ACC, ML = (96, 246) if Q2 else (208, 200)
        SENT = cfg.get('h3sent', 1)
        S6 = SENT == 6
        S2 = SENT >= 2; S3 = SENT in (3, 4)
        if S2: SENT = 0
        CLK = cfg.get('t_h3f', 0)
        def do_clears():
            for k in range(4): I(f'v_mov_b32 v{240+k}, -1')
            I('v_lshrrev_b32 v14, 3, v1'); I('v_lshlrev_b32 v14, 10, v14'); I('v_and_b32 v13, 7, v1'); I('v_lshl_add_u32 v14, v13, 4, v14')
            self.base(46, P_WS, [(38, 32768), (3, 128)], WS_H3)
            for q in range(4):
                I(f'global_store_dwordx4 v14, v[240:243], s[46:47] {POL[cfg.get("clrpol", 0)]}', tag='clr')
                if q < 3: I('v_add_u32 v14, 8192, v14')
        def do_wuv():
            self.base(56, P_WUV, [(41, 128*8192), (3, 16*8192), (40, 256)])
            self.dma_256(56, 8192, L_WUV, 'wuv', '32', vt=12)
        self.base(44, P_WS, [(39, 32768), (3, 4096)], WS_H2)
        h2loads = [f'global_load_dwordx4 {vr(160+4*k,4)}, v6, s[44:45] offset:{k*1024} sc1' for k in range(4)]
        SPEC = cfg.get('t_spec', 0); H2D = cfg.get('h2dma', 0)
        TL = cfg.get('t_late', 0); L_GOF = 20*K
        for ch in range(4):
            if TL and ch == 3:
                LO, LW0, LCK, LGO, LZ, LRI = [self.lab(x) for x in ('tlo', 'tlw', 'tlc', 'tlg', 'tlz', 'tlr')]
                e.wait_vm('ep'); saved = list(e.vm)
                self.flagcheck_finish(1, 17)
                I('v_readfirstlane_b32 s63, v18'); I('s_memrealtime s[100:101]'); I(f'v_mov_b32 v16, {L_GOF}'); I('s_waitcnt lgkmcnt(0)')
                I('s_cmp_eq_u32 s63, 0'); I('s_cselect_b32 s63, s100, s63')
                I('s_cmp_lg_u32 s3, 0'); I(f's_cbranch_scc1 {LO}')
                self.base(46, P_WS, [], WS_HU2); I(f's_movk_i32 s43, {TL}')
                I('v_and_b32 v15, 7, v1'); I('v_lshlrev_b32 v15, 7, v15'); I(f'v_mov_b32 v13, {cfg["t_h2"]}')
                e.label(LRI, flush=False)
                I('global_load_dword v14, v15, s[46:47] sc1')
                e.label(LW0, flush=False)
                I('s_memrealtime s[100:101]'); I('s_getreg_b32 s7, hwreg(HW_REG_IB_STS, 0, 4)'); I('s_waitcnt lgkmcnt(0)')
                I('s_sub_u32 s6, s100, s63'); I('s_cmp_ge_u32 s6, s43'); I(f's_cbranch_scc1 {LGO}')
                I('s_cmp_lg_u32 s7, 0'); I(f's_cbranch_scc1 {LW0}')
                I('s_movk_i32 s43, 0x4000')
                I('v_cmp_eq_u32 vcc, -1, v14'); I(f's_cbranch_vccnz {LRI}')
                I('v_sub_u32 v19, s100, v14'); I('v_cmp_lt_u32 vcc, v19, v13'); I(f's_cbranch_vccnz {LW0}')
                e.label(LGO, flush=False)
                I('v_mov_b32 v19, 1'); I('ds_write_b32 v16, v19'); I(f's_branch {LZ}')
                e.label(LO, flush=False)
                I('ds_read_b32 v19, v16'); I('s_memrealtime s[100:101]'); I('s_waitcnt lgkmcnt(0)')
                I('v_cmp_ne_u32 vcc, 0, v19'); I(f's_cbranch_vccnz {LZ}')
                I('s_sub_u32 s6, s100, s63'); I('s_cmp_lt_u32 s6, 0x4100'); I(f's_cbranch_scc1 {LO}')
                e.label(LZ, flush=False)
                self.stamp(10)
                I(f's_mov_b32 s54, {SPIN}'); self.sval('s63', [(3, 4096)], L_QABS); I('s_mov_b32 m0, s63')
                for k in range(4): I(f'global_load_lds_dwordx4 v{20+k}, s[44:45] offset:{k*1024} sc1')
                I('s_waitcnt vmcnt(4)'); e.vm = []; e.lg = ['SMEM']
            if SPEC and ch == 3:
                LE, LJ, LS = self.lab('spe'), self.lab('spj'), self.lab('sps')
                e.wait_vm('ep')
                I('v_readfirstlane_b32 s6, v17'); I('v_readfirstlane_b32 s63, v18'); I('s_memrealtime s[100:101]'); I('s_mov_b32 s43, 0')
                I('s_cmp_lg_u32 s6, 0x01010101'); I(f's_cbranch_scc1 {LE}')
                I('s_cmp_eq_u32 s63, 0'); I(f's_cbranch_scc1 {LE}')
                if not cfg.get('spec_vm', 0):
                    I('s_waitcnt lgkmcnt(0)'); I('s_sub_u32 s6, s100, s63'); I(f's_cmp_lt_u32 s6, {SPEC - cfg.get("t_lead", 75)}'); I(f's_cbranch_scc1 {LE}')
                e.label(LS, flush=False)
                if cfg.get('spec_vm', 0) == 1:
                    I('s_getreg_b32 s6, hwreg(HW_REG_IB_STS, 0, 4)'); I('s_cmp_eq_u32 s6, 0'); I(f's_cbranch_scc1 {LE}')
                I('s_memrealtime s[100:101]'); I('s_waitcnt lgkmcnt(0)'); I('s_sub_u32 s6, s100, s63'); I(f's_cmp_lt_u32 s6, {SPEC}'); I(f's_cbranch_scc1 {LS}')
                for ld in h2loads: I(ld)
                I('s_mov_b32 s43, 1'); I('s_waitcnt vmcnt(4)'); I(f's_branch {LJ}')
                e.label(LE, flush=False)
                I('s_waitcnt vmcnt(0)')
                e.label(LJ, flush=False); e.vm = []; e.lg = ['SMEM']
            for k in range(4):
                if S2 and not S3 and not S6 and 4*ch+k == cfg.get('clr_k', 0): do_clears()
                e.wait_vm(f'ckv{4*ch+k}'); ckv_issue(4*ch + k + 1 + (WIN if 4*ch+k < cfg.get('ckv_sw', 99) else cfg.get('ckv_win2', 6)))
            if cfg.get('chst'): self.stamp([7, 11, 14, 1][ch])
            if cfg.get('go_early', 0) and ch == 2:
                I('v_and_b32 v15, 7, v1'); I('v_lshlrev_b32 v15, 7, v15'); I(f'v_add_u32 v15, {WS_HU2}, v15'); I('v_mov_b32 v14, -1')
                I('s_cmp_eq_u32 s3, 0'); I('s_cselect_b64 exec, -1, 0')
                I(f'global_load_dword v14, v15, {sp(P_WS)} sc1'); self.exec_all(); e.vm.pop()
            if (cfg.get('pt', 0) & 2) and ch == cfg.get('pt_ch', 0):
                Lp = self.lab('pt'); saved = list(e.vm)
                I('s_cmp_lg_u32 s3, 5'); e.branch('s_cbranch_scc1', Lp, flush=False)
                I('v_lshlrev_b32 v8, 16, v1'); I(f'v_add_u32 v8, {WS_H3}, v8'); I(f'global_load_dword v250, v8, {sp(P_WS)} sc1')
                e.label(Lp, flush=False); e.vm = saved
            if ch == (1 if (SPEC or TL) else 2):
                if cfg.get('flag1', 0):
                    I('v_mov_b32 v17, 0x01010101'); I('s_cmp_eq_u32 s3, 0'); I('s_cselect_b64 exec, -1, 0')
                self.flagcheck_issue(1, 17)
                if cfg.get('flag1', 0): self.exec_all(); e.vm.pop()
            if (SPEC or TL) and ch == 1: I(f'global_load_dword v18, v8, {sp(P_DBG)} offset:-128 sc1', tag='ep')
            e.barrier()
            if TL and ch == 1: I(f'v_mov_b32 v16, {L_GOF}'); I('v_mov_b32 v19, 0'); I('ds_write_b32 v16, v19')
            def chfrags(ch=ch):
                L = self.lab('qa')
                I(f's_cmp_lg_u32 s55, {ch}'); e.branch('s_cbranch_scc1', L)
                if Q2:
                    for j in range(4):
                        I(f'v_xor_b32 v{8+(j&1)}, {j<<4}, v25')
                        for kq in range(4):
                            for kt in range(2): I(f'ds_read_b128 {vr(QA+8*(4*kq+j)+4*kt,4)}, v{8+(j&1)} offset:{kq*256+kt*16384}')
                else:
                    for k7 in range(8):
                        I(f'v_xor_b32 v{8+(k7&1)}, {k7<<5}, v25')
                        I(f'ds_read_b128 {vr(QA+4*k7,4)}, v{8+(k7&1)}'); I(f'ds_read_b128 {vr(QA+4*(k7+8),4)}, v{8+(k7&1)} offset:256')
                e.label(L)
                for ks in (2*ch, 2*ch+1):
                    for u in range(2):
                        for jh in range(2):
                            if Q2: I(f'ds_read_b64_tr_b16 {vr(PV+32*u+4*ks+2*jh,2)}, v{26+2*u+(ks&1)} offset:{(ch&1)*32768+jh*16384}')
                            else: I(f'ds_read_b64_tr_b16 {vr(PV+32*u+4*ks+2*jh,2)}, v{26+2*u+jh} offset:{(ks&3)*16384}')
            if not (ch == 3 and cfg.get('late3', 0) and not TL): chfrags()
            if ch == 1:
                for r in range(26, 30): I(f'v_add_u32 v{r}, 65536, v{r}')
        self.stamp(3)
        if SPEC:
            LB, LC, LP, DP = self.lab('spb'), self.lab('spc'), self.lab('h2'), self.lab('h2d')
            I('s_cmp_eq_u32 s43, 1'); e.branch('s_cbranch_scc1', LB)
            e.vm = []; self.flagcheck_finish(1, 17)
            if cfg.get('spec_vm', 0) != 2: self.go_wait(cfg['t_h2'], nobar=True)
            e.label(LB)
            if cfg.get('spec_vm', 0) != 2: e.barrier()
            self.stamp(10)
            I(f's_mov_b32 s54, {SPIN}')
            I('s_cmp_eq_u32 s43, 1'); e.branch('s_cbranch_scc1', LC)
            e.label(LP)
            for ld in h2loads: I(ld)
            e.label(LC, flush=False)
            e.wait_vm()
            r_ = self.maxtree(range(160, 176), 8)
            I(f'v_cmp_eq_u32 vcc, -1, v{r_}'); I(f's_cbranch_vccz {DP}')
            if cfg.get('fine'): self.stamp(7)
            I(f's_sleep {cfg.get("h2_loop", 8)}'); I('s_sub_u32 s54, s54, 1'); I(f's_cbranch_scc0 {LP}')
            e.label(DP, flush=False)
        else:
            if not TL:
                e.vm = ['flag']; self.flagcheck_finish(1, 17)
                if cfg.get('wuv_pre', 1): do_wuv()
                if SENT and cfg.get('clr_at', 1) == 0: do_clears()
                self.go_wait(cfg['t_h2'])
                self.stamp(10)
            if S6 and cfg.get('clr_at', 1) == 3:
                Dh2 = self.lab('h2ok')
                e.vm = []
                for ld in h2loads: I(ld, tag='h2')
                do_clears()
                e.wait_vm('h2')
                r_ = self.maxtree(range(160, 176), 8)
                I(f'v_cmp_eq_u32 vcc, -1, v{r_}'); I(f's_cbranch_vccz {Dh2}')
                self.poll('h2', h2loads, range(160, 176), 0, loop_sleep=cfg.get('h2_loop', 8))
                e.label(Dh2, flush=False); e.vm = ['clr']*4
            elif H2D:
                if TL: e.branch('s_branch', 'L_H2W')
                if not TL: I(f's_mov_b32 s54, {SPIN}'); self.sval('s63', [(3, 4096)], L_QABS)
                if cfg.get('late3', 0) and not TL:
                    I('s_mov_b32 m0, s63')
                    for k in range(4): I(f'global_load_lds_dwordx4 v{20+k}, s[44:45] offset:{k*1024} {"" if cfg.get("h2plain", 0) else "sc1"}')
                    chfrags()
                    e.branch('s_branch', 'L_H2W')
                e.label('L_H2R')
                I('s_mov_b32 m0, s63')
                for k in range(4): I(f'global_load_lds_dwordx4 v{20+k}, s[44:45] offset:{k*1024} sc1')
                e.label('L_H2W', flush=False)
                if Q2:
                    I('v_lshlrev_b32 v15, 4, v2'); I('s_lshl_b32 s6, s60, 8'); I('v_add_u32 v15, s6, v15'); I('s_lshl_b32 s6, s55, 2'); I('v_add_u32 v30, s6, v15'); I('v_xor_b32 v31, 256, v15')
                    I('v_mov_b32 v249, 0x7f800000')
                    I('v_lshrrev_b32 v252, 1, v3'); I('v_lshlrev_b32 v252, 10, v252'); I('v_and_b32 v13, 1, v3'); I('v_lshl_add_u32 v252, v13, 9, v252'); I('v_add_u32 v252, v252, v15'); I('s_lshl_b32 s6, s55, 11'); I('v_add_u32 v252, s6, v252')
                    e.wait_lg()
                    for j, ar in enumerate([8, 14, 10, 11]): I(f'v_xor_b32 v{ar}, {j<<4}, v24')
                    if cfg.get('h2chk', 0): I('v_add_u32 v13, s63, v6')
                e.wait_vm()
                if cfg.get('h2chk', 0):
                    Dk = self.lab('h2c')
                    for k in range(4): I(f'ds_read_b128 {vr(224+4*k,4)}, v13 offset:{k*1024}', tag=f'c{k}')
                    for k in range(4):
                        e.wait_lg(f'c{k}'); q = 224 + 4*k
                        if k == 0: I(f'v_max3_u32 v248, v{q}, v{q+1}, v{q+2}'); I(f'v_max_u32 v248, v248, v{q+3}')
                        else: I(f'v_max3_u32 v248, v248, v{q}, v{q+1}'); I(f'v_max3_u32 v248, v248, v{q+2}, v{q+3}')
                    I('v_cmp_eq_u32 vcc, -1, v248'); I(f's_cbranch_vccz {Dk}')
                    I(f's_sleep {cfg.get("h2_loop", 8)}'); I('s_sub_u32 s54, s54, 1'); I('s_cbranch_scc0 L_H2R')
                    e.label(Dk, flush=False)
            else:
                self.poll('h2', h2loads, range(160, 176), 0, loop_sleep=cfg.get('h2_loop', 8))
        self.stamp(4)
        if CLK:
            Lf = self.lab('h3c')
            I('s_cmp_lg_u32 s3, 7'); e.branch('s_cbranch_scc1', Lf, flush=False)
            I('s_memrealtime s[100:101]')
            self.base(58, P_WS, [(38, 16)], WS_FL2)
            I('v_lshlrev_b32 v16, 11, v1'); I('s_waitcnt lgkmcnt(0)'); I('s_and_b32 s100, s100, 0xfffffffe'); I('v_mov_b32 v17, s100')
            I('s_mov_b64 exec, 0xff'); I('global_store_dword v16, v17, s[58:59] sc1'); self.exec_all()
            e.label(Lf, flush=False); e.vm = []
        if S2:
            Lf = self.lab('h3f')
            I('s_cmp_lg_u32 s3, 7'); e.branch('s_cbranch_scc1', Lf, flush=False)
            I('s_memrealtime s[100:101]')
            self.base(58, P_WS, [(38, 16)], WS_FL)
            saved = list(e.vm)
            I('v_lshlrev_b32 v16, 11, v1'); I('s_waitcnt lgkmcnt(0)'); I('s_and_b32 s100, s100, 0xfffffffe'); I('v_mov_b32 v17, s100')
            I('s_mov_b64 exec, 0xff'); I('global_store_dword v16, v17, s[58:59] sc1'); self.exec_all()
            e.label(Lf, flush=False); e.vm = saved
        if not H2D:
            self.sval('s6', [(3, 4096)], L_QABS)
            for k in range(4):
                I(f'v_add_u32 v{8+k}, s6, v{20+k}')
                I(f'ds_write_b128 v{8+k}, {vr(160+4*k,4)} offset:{k*1024}')
        e.barrier()
        if cfg.get('fine'): self.stamp(11); e.wait_lg()
        if Q2:
            assert H2D
            CHK = cfg.get('h2chk', 0)
            QR = [224, 228, 232, 236, 16]
            AR = [8, 14, 10, 11]
            def qb(ks): return QR[ks % 5]
            def qrd(ks): I(f'ds_read_b128 {vr(qb(ks),4)}, v{AR[ks&3]} offset:{(ks>>2)*256}', tag=f'qb{ks}')
            for j in range(5): qrd(j)
            for ks in range(16):
                e.wait_lg(f'qb{ks}')
                for kt in range(2):
                    I(f'v_mfma_f32_16x16x32_bf16 {vr(240+4*kt,4)}, {vr(QA+8*ks+4*kt,4)}, {vr(qb(ks),4)}, {"0" if ks == 0 else vr(240+4*kt,4)}')
                q = qb(ks)
                if CHK: pass
                elif ks == 0: I(f'v_max3_u32 v248, v{q}, v{q+1}, v{q+2}'); I(f'v_max_u32 v248, v248, v{q+3}')
                else: I(f'v_max3_u32 v248, v248, v{q}, v{q+1}'); I(f'v_max3_u32 v248, v248, v{q+2}, v{q+3}')
                if ks + 5 < 16: qrd(ks + 5)
                if ks == cfg.get('wuv_at', 7): do_wuv()
            if not CHK: I('v_cmp_eq_u32 vcc, -1, v248')
            I('v_max3_f32 v224, v240, v241, v242'); I('v_max3_f32 v225, v244, v245, v246'); I('v_max3_f32 v224, v224, v243, v247'); I('v_max_f32 v224, v224, v225')
            if not CHK: I('v_cndmask_b32 v224, v224, v249, vcc')
            self.cross(16, 224, 225, 'max'); self.cross(32, 224, 225, 'max')
            I(f'ds_write_b32 v30, v224 offset:{L_MAX}')
            def wuv_half(lo):
                Lw = self.lab('wv')
                I('s_cmp_ge_u32 s3, 4' if lo else 's_cmp_lt_u32 s3, 4'); e.branch('s_cbranch_scc1', Lw)
                do_wuv()
                if lo: I(f's_add_u32 s56, s56, {64*8192}'); I('s_addc_u32 s57, s57, 0')
                else: I(f's_sub_u32 s56, s56, {64*8192}'); I('s_subb_u32 s57, s57, 0')
                self.dma_256(56, 8192, L_WUV + (4*4096 if lo else -4*4096), 'wuv', '32', vt=12)
                e.label(Lw)
            if cfg.get('wuv_at') == 99: wuv_half(True)
            if cfg.get('fine'): self.stamp(14)
            e.barrier()
            if cfg.get('fine'): self.stamp(2)
            if CHK:
                I(f'ds_read_b128 v[228:231], v15 offset:{L_MAX}'); e.wait_lg()
                I('v_max3_f32 v224, v228, v229, v230'); I('v_max_f32 v224, v224, v231')
                for k in range(8): I(f'v_sub_f32 v{240+k}, v{240+k}, v224')
            else:
                I(f'ds_read_b128 v[228:231], v15 offset:{L_MAX}'); I(f'ds_read_b128 v[232:235], v31 offset:{L_MAX}')
                e.wait_lg()
                I('v_max3_f32 v224, v228, v229, v230'); I('v_max3_f32 v225, v232, v233, v234'); I('v_max_f32 v224, v224, v231'); I('v_max3_f32 v225, v225, v235, v224')
                for k in range(8): I(f'v_sub_f32 v{240+k}, v{240+k}, v224')
                Dk = self.lab('h2k')
                I('v_cmp_eq_u32 vcc, v249, v225'); I(f's_cbranch_vccz {Dk}')
                n0 = e.n
                I(f's_sleep {cfg.get("h2_loop", 8)}'); I('s_sub_u32 s54, s54, 1'); I('s_cbranch_scc0 L_H2R')
                e.label(Dk, flush=False); e.n = n0
            for k in range(8): I(f'v_exp_f32 v{240+k}, v{240+k}')
            for k in range(4): I(f'v_cvt_pk_bf16_f32 v{228+k}, v{240+2*k}, v{241+2*k}')
            I(f'ds_write_b128 v252, v[228:231] offset:{L_P}')
            LS = cfg.get('latesum', 0)
            sums = [lambda: [I(f'v_add_f32 v{240+k}, v{240+k}, v{244+k}') for k in range(4)],
                    lambda: [I('v_add_f32 v240, v240, v241'), I('v_add_f32 v242, v242, v243')],
                    lambda: [I('v_add_f32 v240, v240, v242')],
                    lambda: self.cross(16, 240, 241), lambda: self.cross(32, 240, 241),
                    lambda: I(f'ds_write_b32 v30, v240 offset:{L_SUM}')]
            if not LS:
                for f_ in sums: f_()
        if not Q2:
            def qb(ks): return 160 + 4*ks if ks < 8 else 208 + 4*(ks-8)
            for k7 in range(8):
                I(f'v_xor_b32 v{8+(k7&3)}, {k7<<5}, v24')
                I(f'ds_read_b128 {vr(qb(k7),4)}, v{8+(k7&3)}', tag=f'qb{k7}'); I(f'ds_read_b128 {vr(qb(k7+8),4)}, v{8+(k7&3)} offset:256', tag=f'qb{k7+8}')
            order = []
            for k7 in range(8): order += [k7, k7+8]
            for n, ks in enumerate(order):
                e.wait_lg(f'qb{ks}')
                I(f'v_mfma_f32_32x32x16_bf16 v[192:207], {vr(QA+4*ks,4)}, {vr(qb(ks),4)}, {"0" if n == 0 else "v[192:207]"}')
                if H2D:
                    q = qb(ks)
                    if n == 0: I(f'v_max3_u32 v248, v{q}, v{q+1}, v{q+2}'); I(f'v_max_u32 v248, v248, v{q+3}')
                    else: I(f'v_max3_u32 v248, v248, v{q}, v{q+1}'); I(f'v_max3_u32 v248, v248, v{q+2}, v{q+3}')
                if n == cfg.get('wuv_at', 7) and not cfg.get('wuv_pre', 1): do_wuv()
                if n == cfg.get('clr_n', 2) and (SENT or S6) and cfg.get('clr_at', 1) == 1: do_clears()
            I('s_lshl_b32 s6, s3, 11'); I('v_add_u32 v8, s6, v6'); I('s_xor_b32 s6, s6, 8192'); I('v_add_u32 v9, s6, v6')
            LA, LB = self.lab('x0'), self.lab('x1')
            I('s_cmp_eq_u32 s60, 0'); e.branch('s_cbranch_scc1', LA)
            I(f'ds_write_b128 v8, v[192:195] offset:{L_XCH}'); I(f'ds_write_b128 v8, v[196:199] offset:{L_XCH+1024}')
            for k in range(8): I(f'v_mov_b32 v{240+k}, v{200+k}')
            e.branch('s_branch', LB)
            e.label(LA)
            I(f'ds_write_b128 v8, v[200:203] offset:{L_XCH}'); I(f'ds_write_b128 v8, v[204:207] offset:{L_XCH+1024}')
            for k in range(8): I(f'v_mov_b32 v{240+k}, v{192+k}')
            if cfg.get('wuv_at', 7) == 99:
                do_wuv()
                I(f's_add_u32 s56, s56, {64*8192}'); I('s_addc_u32 s57, s57, 0')
                self.dma_256(56, 8192, L_WUV + 4*4096, 'wuv', '32', vt=12)
                I('s_lshl_b32 s6, s3, 11'); I('s_xor_b32 s6, s6, 8192'); I('v_add_u32 v9, s6, v6')
            e.label(LB)
            if cfg.get('fine'): self.stamp(14)
            e.barrier()
            if cfg.get('fine'): self.stamp(1)
            I(f'ds_read_b128 v[192:195], v9 offset:{L_XCH}'); I(f'ds_read_b128 v[196:199], v9 offset:{L_XCH+1024}')
            I('v_lshlrev_b32 v10, 5, v4'); I('s_lshl_b32 s6, s3, 2'); I('v_add_u32 v11, s6, v10')
            if H2D: I('v_cmp_eq_u32 vcc, -1, v248'); I('v_mov_b32 v249, 0x7f800000')
            e.wait_lg()
            for k in range(8): I(f'v_add_f32 v{192+k}, v{192+k}, v{240+k}')
            I('v_max3_f32 v200, v192, v193, v194'); I('v_max3_f32 v201, v195, v196, v197'); I('v_max3_f32 v200, v200, v198, v199'); I('v_max_f32 v200, v200, v201')
            if H2D: I('v_cndmask_b32 v200, v200, v249, vcc')
            self.cross(32, 200, 201, 'max')
            I(f'ds_write_b32 v11, v200 offset:{L_MAX}')
            e.barrier()
            if cfg.get('fine'): self.stamp(2)
            I(f'ds_read_b128 v[240:243], v10 offset:{L_MAX}'); I(f'ds_read_b128 v[244:247], v10 offset:{L_MAX+16}')
            I('s_lshl_b32 s6, s55, 1'); I('s_add_u32 s6, s6, s60'); I('s_lshl_b32 s6, s6, 10'); I('v_add_u32 v12, s6, v6')
            e.wait_lg()
            I('v_max3_f32 v200, v240, v241, v242'); I('v_max3_f32 v204, v244, v245, v246'); I('v_max3_f32 v200, v200, v243, v247'); I('v_max_f32 v200, v200, v204')
            if H2D:
                Dk = self.lab('h2k')
                I('v_cmp_eq_u32 vcc, v249, v200'); I(f's_cbranch_vccz {Dk}')
                n0 = e.n
                I(f's_sleep {cfg.get("h2_loop", 8)}'); I('s_sub_u32 s54, s54, 1'); I('s_cbranch_scc0 L_H2R')
                e.label(Dk, flush=False); e.n = n0
            for k in range(8): I(f'v_sub_f32 v{192+k}, v{192+k}, v200')
            for k in range(8): I(f'v_exp_f32 v{192+k}, v{192+k}')
            for k in range(4): I(f'v_cvt_pk_bf16_f32 v{204+k}, v{192+2*k}, v{193+2*k}')
            I(f'ds_write_b128 v12, v[204:207] offset:{L_P}')
            for k in range(4): I(f'v_add_f32 v{192+k}, v{192+k}, v{196+k}')
            I('v_add_f32 v192, v192, v193'); I('v_add_f32 v194, v194, v195'); I('v_add_f32 v192, v192, v194')
            self.cross(32, 192, 193)
            I(f'ds_write_b32 v11, v192 offset:{L_SUM}')
        e.wait_vm('clr')
        e.barrier()
        self.stamp(5); e.wait_lg()
        for ks in range(8): I(f'ds_read_b128 {vr(32+4*ks,4)}, v6 offset:{L_P+ks*1024}', tag=f'p{ks}')
        if CLK:
            self.base(58, P_WS, [(4, 2048), (3, 256)], WS_FL2)
            I('v_lshlrev_b32 v16, 4, v2')
            I('global_load_dword v248, v16, s[58:59] sc1', tag='fl')
        if S2:
            if S3:
                self.base(58, P_WS, [(4, 2048)], WS_FL)
                I('v_lshlrev_b32 v16, 4, v2'); I('s_lshl_b32 s6, s3, 8'); I('v_add_u32 v16, s6, v16')
                I('s_mov_b64 exec, 0xffff'); I(f'v_add_u32 v16, {WS_FL2-WS_FL}, v16')
                I('s_lshl_b32 s6, s38, 4'); I(f's_add_u32 s6, s6, {WS_FL2-WS_FL}')
                I('s_mov_b32 exec_lo, 0'); I('s_mov_b32 exec_hi, -1'); I('v_mov_b32 v16, s6'); self.exec_all()
            elif S6:
                self.base(58, P_WS, [(4, 2048), (60, 1024)], WS_FL)
                I('v_mov_b32 v16, v6')
            else:
                self.base(58, P_WS, [(4, 2048), (3, 256)], WS_FL)
                I('v_lshlrev_b32 v16, 4, v2')
            I('global_load_dword v17, v16, s[58:59] sc1', tag='fl')
        L = self.lab('st')
        saved_lg = list(e.lg); saved_vm = list(e.vm)
        LS = Q2 and cfg.get('latesum', 0)
        def w7stats():
            I('v_lshlrev_b32 v8, 4, v4')
            I(f'ds_read_b128 v[224:227], v8 offset:{L_SUM}'); I(f'ds_read_b128 v[228:231], v8 offset:{L_MAX}')
            I('s_waitcnt lgkmcnt(0)')
            I('v_add_f32 v224, v224, v225'); I('v_add_f32 v226, v226, v227'); I('v_max3_f32 v228, v228, v229, v230'); I(f'v_add_f32 v{ML+1}, v224, v226'); I(f'v_max_f32 v{ML}, v228, v231')
        if not LS: I('s_cmp_lg_u32 s3, 7'); e.branch('s_cbranch_scc1', L)
        if LS: pass
        elif Q2: w7stats()
        else:
            I(f'ds_read_b128 v[64:67], v10 offset:{L_SUM}'); I(f'ds_read_b128 v[68:71], v10 offset:{L_SUM+16}')
            I('v_lshlrev_b32 v8, 9, v4')
            self.base(44, P_WS, [(39, 16384), (42, 8)], WS_ST)
            I('s_waitcnt lgkmcnt(0)')
            for k in range(4): I(f'v_add_f32 v{64+k}, v{64+k}, v{68+k}')
            I('v_add_f32 v64, v64, v65'); I('v_add_f32 v66, v66, v67'); I('v_add_f32 v201, v64, v66')
        REC = cfg.get('h3rec', 0)
        if not REC:
            I('s_mov_b32 exec_hi, 0')
            I('global_store_dwordx2 v8, v[200:201], s[44:45] sc1')
            self.exec_all()
        e.label(L); e.lg = saved_lg; e.vm = saved_vm
        if cfg.get('pv_prio'):
            L = self.lab('pr')
            I('s_cmp_ge_u32 s3, 4'); e.branch('s_cbranch_scc1', L); I('s_setprio 2'); e.label(L)
        if Q2 and cfg.get('wuv_at') == 98: wuv_half(False)
        for ks in range(8):
            e.wait_lg(f'p{ks}')
            for u in range(2):
                I(f'v_mfma_f32_32x32x16_bf16 {vr(ACC+16*u,16)}, {vr(32+4*ks,4)}, {vr(PV+32*u+4*ks,4)}, {"0" if ks == 0 else vr(ACC+16*u,16)}')
                if LS and 0 <= 2*ks + u - 10 < len(sums): sums[2*ks + u - 10]()
        I('v_lshlrev_b32 v8, 12, v5'); I('v_lshl_add_u32 v8, v4, 2, v8')
        for q in range(1, 4): I(f'v_add_u32 v{8+q}, {q*8192}, v8')
        self.base(44, P_WS, [(38, 32768), (3, 128)], WS_H3)
        if not S2:
            self.base(58, P_WS, [(38, 16)], WS_FL)
            I('v_lshlrev_b32 v16, 11, v1'); I('v_mov_b32 v17, 0')
        w7l = ['global_load_dwordx2 v[56:57], v7, s[56:57] sc1', 'global_load_dwordx2 v[58:59], v18, s[56:57] sc1']
        if SENT:
            self.base(56, P_WS, [(40, 512)], WS_ST); I('v_add_u32 v18, 16384, v7')
        if S3:
            Lo, Do = self.lab('own'), self.lab('ownd')
            I(f's_mov_b32 s54, {SPIN}'); I('s_waitcnt vmcnt(1)')
            I('s_cmp_eq_u32 s3, 7'); I(f's_cbranch_scc1 {Lo}'); I('s_waitcnt vmcnt(0)')
            e.label(Lo, flush=False)
            I('v_cmp_eq_u32 vcc, -1, v17'); I('s_nop 3'); I('s_cmp_eq_u32 vcc_hi, 0'); I(f's_cbranch_scc1 {Do}')
            I('s_sleep 4'); I('global_load_dword v17, v16, s[58:59] sc1'); I('s_waitcnt vmcnt(0)')
            I('s_sub_u32 s54, s54, 1'); I(f's_cbranch_scc0 {Lo}')
            e.label(Do, flush=False); e.vm = []
        for r in range(16):
            I(f'v_cvt_pk_bf16_f32 v{64+r}, v{ACC+r}, v{ACC+16+r}')
            if r == 0 and SENT:
                Lw = self.lab('w7'); saved = list(e.vm)
                I('s_cmp_lg_u32 s3, 7'); e.branch('s_cbranch_scc1', Lw, flush=False)
                for ld in w7l: I(ld)
                e.label(Lw, flush=False); e.vm = saved
            I(f'global_store_dword v{8+(r>>2)}, v{64+r}, s[44:45] offset:{(r&3)*1024} {POL[cfg.get("h3pol", 0)]}', tag='h3')
        if SENT:
            Lw, Dw = self.lab('w7b'), self.lab('w7ok'); saved = list(e.vm)
            I('s_cmp_lg_u32 s3, 7'); e.branch('s_cbranch_scc1', Lw, flush=False)
            I('s_waitcnt vmcnt(16)')
            r_ = self.maxtree([56, 57, 58, 59], 13)
            I(f'v_cmp_eq_u32 vcc, -1, v{r_}'); I(f's_cbranch_vccz {Dw}')
            self.poll('st', w7l, [56, 57, 58, 59], 0, t=13)
            e.label(Dw, flush=False)
            I(f'v_add_u32 v13, {L_EST2}, v7'); I('ds_write_b64 v13, v[56:57]'); I('ds_write_b64 v13, v[58:59] offset:512')
            e.label(Lw); e.vm = saved
        if cfg.get('pv_prio'): I('s_setprio 0')
        self.stamp(6)
        if cfg.get('wuv_at') == 97: do_wuv()
        self.tr_base_256(18, L_WUV)
        I('v_lshlrev_b32 v19, 3, v3'); I('s_lshl_b32 s6, s55, 7'); I('v_add_u32 v19, s6, v19')
        self.base(56, P_WS, [(60, 16384), (40, 512)], WS_ST)
        I('v_lshlrev_b32 v9, 15, v3'); I('v_lshl_add_u32 v9, v2, 4, v9')
        for k in range(1, 4): I(f'v_add_u32 v{9+k}, {k*4*32768}, v9')
        self.base(44, P_WS, [(3, 16*32768), (40, 1024), (41, 256)], WS_H3)
        I('v_lshlrev_b32 v13, 4, v2'); I('v_lshl_add_u32 v13, v3, 2, v13'); self.sval('s6', [(3, 272)], L_EROW); I('v_add_u32 v13, s6, v13')
        I('v_and_b32 v14, 7, v2'); I('v_mul_u32_u24 v14, 272, v14'); I('v_lshl_add_u32 v14, v3, 4, v14'); I(f'v_add_u32 v14, {L_EROW}, v14')
        I('v_lshlrev_b32 v15, 6, v2'); I('v_lshl_add_u32 v15, v3, 4, v15')
        self.sval('s6', [(61, 64), (62, 8)], L_OUT); I('v_add_u32 v15, s6, v15')
        self.base(46, P_WS, [(40, 2048), (41, 512)], WS_H4)
        if cfg.get('hsplit', 0): self.hu_prep(WS_HU4, 38, 98)
        stl = ['global_load_dwordx2 v[56:57], v7, s[56:57] sc1'] + [f'global_load_dword v{48+k}, v19, s[56:57] offset:{32*k} sc1' for k in range(4)]
        if SENT:
            for s_ in range(4):
                ro = 64*(s_ >> 1) + 16*(s_ & 1)
                I(f'ds_read_b64_tr_b16 {vr(96+4*s_,2)}, v18 offset:{ro*256}'); I(f'ds_read_b64_tr_b16 {vr(98+4*s_,2)}, v18 offset:{(ro+32)*256}')
            e.barrier()
            if cfg.get('fine'): self.stamp(12)
            self.sval('s6', [(60, 512)], L_EST2); I('v_add_u32 v16, s6, v7'); I('v_add_u32 v17, s6, v19')
            I('ds_read_b64 v[56:57], v16')
            for k in range(4): I(f'ds_read_b32 v{48+k}, v17 offset:{32*k}')
            h3l = [f'global_load_dwordx4 {vr(64+4*k,4)}, v{9+k}, s[44:45] sc1' for k in range(4)]
            self.sleep(cfg['d_h3s'])
            e.vm = []
            for ld in h3l: I(ld, tag='h3')
            e.wait_lg()
        elif S6:
            I('s_waitcnt vmcnt(16)'); e.barrier()
            for s_ in range(4):
                ro = 64*(s_ >> 1) + 16*(s_ & 1)
                I(f'ds_read_b64_tr_b16 {vr(96+4*s_,2)}, v18 offset:{ro*256}'); I(f'ds_read_b64_tr_b16 {vr(98+4*s_,2)}, v18 offset:{(ro+32)*256}')
            def until(d):
                LW = self.lab('h3w')
                I(f'v_mov_b32 v60, {d}')
                e.label(LW)
                I('s_memrealtime s[100:101]'); I('s_waitcnt lgkmcnt(0)')
                I('v_sub_u32 v61, s100, v17'); I('v_cmp_lt_u32 vcc, v61, v60'); I(f's_cbranch_vccnz {LW}')
            until(cfg.get('t_st', 230))
            if cfg.get('fine'): self.stamp(12)
            self.poll('st', stl, [56, 57, 48, 49, 50, 51], 0, loop_sleep=cfg.get('h3_loop', 2))
            if cfg.get('fine'): self.stamp(7)
        elif S2:
            I('s_waitcnt vmcnt(16)'); e.barrier()
            for s_ in range(4):
                ro = 64*(s_ >> 1) + 16*(s_ & 1)
                I(f'ds_read_b64_tr_b16 {vr(96+4*s_,2)}, v18 offset:{ro*256}'); I(f'ds_read_b64_tr_b16 {vr(98+4*s_,2)}, v18 offset:{(ro+32)*256}')
            Df, LW, LR, DR = self.lab('flok'), self.lab('h3w'), self.lab('h3r'), self.lab('h3d')
            I('v_cmp_eq_u32 vcc, -1, v17'); I(f's_cbranch_vccz {Df}')
            self.poll('h3f', ['global_load_dword v17, v16, s[58:59] sc1'], [17], 0, loop_sleep=4)
            e.label(Df, flush=False)
            if cfg.get('fine'): self.stamp(12)
            I(f'v_mov_b32 v60, {cfg.get("t_h3", 300)}')
            e.label(LW)
            I('s_memrealtime s[100:101]'); I('s_waitcnt lgkmcnt(0)')
            I('v_sub_u32 v61, s100, v17'); I('v_cmp_lt_u32 vcc, v61, v60'); I(f's_cbranch_vccnz {LW}')
            if cfg.get('fine'): self.stamp(13)
            I(f's_mov_b32 s54, {SPIN}')
            if cfg.get('hu4_early', 0): self.hu_set(WS_HU4, 38)
            e.label(LR); e.vm = []
            for ld in stl: I(ld, tag='st')
            for k in range(4): I(f'global_load_dwordx4 {vr(64+4*k,4)}, v{9+k}, s[44:45] {POL[cfg.get("h3lpol", 0)]}', tag='h3')
            e.wait_vm('st')
            self.maxtree([56, 57, 48, 49, 50, 51], 60)
        elif REC:
            self.base(58, P_WS, [(38, 256)], WS_ST)
            self.base(56, P_WS, [(3, 4096), (40, 8)], WS_ST)
            I('v_add_u32 v16, v2, v3'); I('v_and_b32 v16, 15, v16'); I('v_lshlrev_b32 v16, 8, v16')
            self.sval('s6', [(3, 8)], L_EST); I('v_mov_b32 v17, s6'); I('v_and_b32 v19, 7, v2'); I('v_lshlrev_b32 v19, 3, v19'); I(f'v_add_u32 v19, {L_EST}, v19')
            if LS:
                e.barrier()
                Lw = self.lab('w7s')
                I('s_cmp_lg_u32 s3, 7'); e.branch('s_cbranch_scc1', Lw); w7stats(); e.label(Lw); e.lg = []
            e.wait_vm('h3'); e.barrier()
            Lf = self.lab('h3f')
            I('s_cmp_lg_u32 s3, 7'); e.branch('s_cbranch_scc1', Lf)
            I('s_mov_b32 exec_hi, 0'); I(f'global_store_dwordx2 v7, {vr(ML,2)}, s[58:59] sc1'); self.exec_all()
            e.label(Lf); e.vm = ['x']
            if cfg.get('fine'): self.stamp(12)
            if cfg.get('wuv_at') == 97:
                Lz = self.lab('wz')
                I('s_waitcnt vmcnt(1)'); I('s_cmp_eq_u32 s3, 7'); I(f's_cbranch_scc1 {Lz}'); I('s_waitcnt vmcnt(0)'); e.label(Lz, flush=False); I('s_barrier')
            for s_ in range(4):
                ro = 64*(s_ >> 1) + 16*(s_ & 1)
                I(f'ds_read_b64_tr_b16 {vr(96+4*s_,2)}, v18 offset:{ro*256}'); I(f'ds_read_b64_tr_b16 {vr(98+4*s_,2)}, v18 offset:{(ro+32)*256}')
            if cfg.get('h3fine', 0):
                Lp, Dp = self.lab('hf'), self.lab('hfd')
                I(f's_mov_b32 s54, {SPIN}'); I('v_mov_b32 v60, 0')
                self.sleep(cfg['d_h3'])
                I('global_load_dwordx2 v[56:57], v16, s[56:57] sc1')
                e.label(Lp)
                I('s_waitcnt vmcnt(0)')
                I('v_max_u32 v62, v56, v57')
                I('v_cmp_eq_u32 s[52:53], -1, v62')
                for k in range(4): I(f'v_mov_b32_dpp v{48+k}, v62 row_newbcast:{4*k} {DPPM}')
                I('s_cmp_eq_u64 s[52:53], 0'); I(f's_cbranch_scc1 {Dp}')
                I('global_load_dwordx2 v[56:57], v16, s[56:57] sc1')
                e.label(Dp, flush=False)
                for k in range(4):
                    I(f'v_and_b32 v61, {1<<k}, v60'); I(f'v_cmp_ne_u32 vcc, -1, v{48+k}'); I('v_cmp_eq_u32 s[6:7], 0, v61'); I('s_nop 1' if k else 's_nop 1')
                    I('s_and_b64 exec, vcc, s[6:7]')
                    I(f'global_load_dwordx4 {vr(64+4*k,4)}, v{9+k}, s[44:45] sc1'); I(f'v_or_b32 v60, {1<<k}, v60'); self.exec_all()
                Lq = self.lab('hfq')
                I('s_cmp_eq_u64 s[52:53], 0'); I(f's_cbranch_scc1 {Lq}')
                I('s_sub_u32 s54, s54, 1'); I(f's_cbranch_scc0 {Lp}')
                e.label(Lq, flush=False)
                if cfg.get('fine'): self.stamp(13)
            else:
                self.poll('h3f', ['global_load_dwordx2 v[56:57], v16, s[56:57] sc1'], [56, 57], cfg['d_h3'], loop_sleep=cfg.get('h3_loop', 2))
                if cfg.get('h3bar', 0): I('s_barrier')
                if cfg.get('fine'): self.stamp(13)
                for k in range(4): I(f'global_load_dwordx4 {vr(64+4*k,4)}, v{9+k}, s[44:45] sc1')
            I('v_mov_b32 v58, v56')
            self.ror_reduce([58], [8, 4, 2, 1], 'max')
            I('v_sub_f32 v56, v56, v58'); I('v_exp_f32 v56, v56')
            I('v_mul_f32 v59, v56, v57')
            for k in range(4): I(f'v_mov_b32_dpp v{48+k}, v56 row_newbcast:{4*k} {DPPM}')
            self.ror_reduce([59], [8, 4, 2, 1])
            I('ds_write_b64 v17, v[58:59]')
        else:
            if cfg.get('hu4_early', 0) == 2:
                I(f'v_mov_b32 v249, {L_EST}'); I('v_mov_b32 v250, 0'); I('ds_write_b32 v249, v250')
            e.wait_vm(); e.barrier()
            Lf = self.lab('h3f')
            I('s_cmp_lg_u32 s3, 0'); e.branch('s_cbranch_scc1', Lf)
            TV = cfg.get('t_d', 0)
            if TV:
                I('s_memrealtime s[100:101]'); I('s_waitcnt lgkmcnt(0)'); I('s_add_u32 s100, s100, 1'); I('s_and_b32 s100, s100, 0xfffffffe'); I('v_mov_b32 v17, s100')
            I('s_mov_b64 exec, 0xff'); I('global_store_dword v16, v17, s[58:59] sc1'); self.exec_all()
            e.label(Lf); e.vm = ['x']
            if cfg.get('fine'): self.stamp(12)
            for s_ in range(4):
                ro = 64*(s_ >> 1) + 16*(s_ & 1)
                I(f'ds_read_b64_tr_b16 {vr(96+4*s_,2)}, v18 offset:{ro*256}'); I(f'ds_read_b64_tr_b16 {vr(98+4*s_,2)}, v18 offset:{(ro+32)*256}')
            self.base(58, P_WS, [(4, 2048), (3, 256)], WS_FL)
            I('v_lshlrev_b32 v16, 4, v2')
            if TV:
                LW = self.lab('h3v')
                I(f'v_mov_b32 v60, {TV}')
                e.label(LW)
                I('s_memrealtime s[100:101]'); I('s_waitcnt lgkmcnt(0)')
                I('v_sub_u32 v61, s100, v248'); I('v_cmp_lt_u32 vcc, v61, v60'); I(f's_cbranch_vccnz {LW}')
                I(f's_sub_u32 s63, s100, {cfg.get("t_m", 6)}')
                if cfg.get('fine'): self.stamp(7)
                for k in range(4): I(f'global_load_dwordx4 {vr(64+4*k,4)}, v{9+k}, s[44:45] sc1')
            if CLK:
                LW = self.lab('h3w')
                I(f'v_mov_b32 v60, {CLK}')
                e.label(LW)
                I('s_memrealtime s[100:101]'); I('s_waitcnt lgkmcnt(0)')
                I('v_sub_u32 v61, s100, v248'); I('v_cmp_lt_u32 vcc, v61, v60'); I(f's_cbranch_vccnz {LW}')
            self.poll('h3f', ['global_load_dword v17, v16, s[58:59] sc1', 'global_load_dwordx2 v[56:57], v7, s[56:57] sc1'] +
                      [f'global_load_dword v{48+k}, v19, s[56:57] offset:{32*k} sc1' for k in range(4)], [17, 56, 57, 48, 49, 50, 51], 0 if CLK else cfg['d_h3'], loop_sleep=cfg.get('h3_loop', 2))
            if cfg.get('fine'): self.stamp(13)
            if TV:
                Lv = self.lab('h3ok')
                I('v_sub_u32 v61, s63, v17'); I('v_cmp_gt_i32 vcc, 0, v61'); I(f's_cbranch_vccz {Lv}')
            for k in range(4): I(f'global_load_dwordx4 {vr(64+4*k,4)}, v{9+k}, s[44:45] {POL[cfg.get("h3lpol", 0)]}')
            if TV: e.label(Lv, flush=False)
            if cfg.get('hu4_early', 0) == 2:
                Lh = self.lab('hl')
                I('v_mov_b32 v251, 1'); I('s_mov_b64 exec, 1'); I('ds_add_rtn_u32 v250, v249, v251'); self.exec_all()
                I('s_memrealtime s[100:101]')
                self.base(98, P_WS, [(38, 128)], WS_HU4)
                I('s_waitcnt lgkmcnt(0)'); e.lg = []
                I('v_readfirstlane_b32 s6, v250'); I('s_and_b32 s100, s100, 0xfffffffe'); I('v_mov_b32 v251, 0'); I('v_mov_b32 v250, s100')
                I('s_cmp_lg_u32 s6, 7'); I(f's_cbranch_scc1 {Lh}')
                I('s_mov_b64 exec, 1'); I('global_store_dword v251, v250, s[98:99] sc1'); self.exec_all()
                e.label(Lh, flush=False)
            elif cfg.get('hu4_early', 0): (self.hu_set_w if cfg.get('hu4m', 0) == 2 else self.hu_set)(WS_HU4, 38)
        if not REC:
            I('v_mov_b32 v58, v56')
            self.ror_reduce([58], [8, 4, 2, 1], 'max'); self.cross(16, 58, 59, 'max'); self.cross(32, 58, 59, 'max')
            I('v_sub_f32 v56, v56, v58'); I('v_exp_f32 v56, v56')
            for k in range(4): I(f'v_sub_f32 v{48+k}, v{48+k}, v58')
            I('v_mul_f32 v56, v56, v57')
            for k in range(4): I(f'v_exp_f32 v{48+k}, v{48+k}')
            self.ror_reduce([56], [8, 4, 2, 1]); self.cross(16, 56, 59); self.cross(32, 56, 59)
            I('v_rcp_f32 v56, v56')
            for k in range(4): I(f'v_mul_f32 v{48+k}, v{48+k}, v56')
        if S6:
            until(cfg.get('t_h3', 290))
            if cfg.get('fine'): self.stamp(13)
            self.poll('h3', [f'global_load_dwordx4 {vr(64+4*k,4)}, v{9+k}, s[44:45] sc1' for k in range(4)], range(64, 80), 0, loop_sleep=cfg.get('h3_loop', 2))
        e.wait_vm()
        if SENT:
            Dh = self.lab('h3o')
            r_ = self.maxtree(range(64, 80), 8)
            I(f'v_cmp_eq_u32 vcc, -1, v{r_}'); I(f's_cbranch_vccz {Dh}')
            self.poll('h3', h3l, range(64, 80), 2, loop_sleep=4)
            e.label(Dh, flush=False)
        if S2 and not S6:
            r_ = self.maxtree([60] + list(range(64, 80)), 8)
            I(f'v_cmp_eq_u32 vcc, -1, v{r_}'); I(f's_cbranch_vccz {DR}')
            if cfg.get('fine'): self.stamp(7)
            I(f's_sleep {cfg.get("h3_loop", 2)}'); I('s_sub_u32 s54, s54, 1'); I(f's_cbranch_scc0 {LR}')
            e.label(DR, flush=False)
        HS = cfg.get('hsplit', 0)
        if HS: self.hu_clock()
        elif not cfg.get('hu4_early', 0): (self.hu_set_w if cfg.get('hu4m', 0) == 2 else self.hu_set)(WS_HU4, 38)
        self.stamp(8)
        for q in range(4):
            if HS and q == 1: n0 = e.n; self.hu_store(98, pol='' if cfg.get('loc', 0) & 2 else 'sc1'); e.n = n0 + 2
            for k in range(4):
                I(f'v_lshlrev_b32 v{88+2*k}, 16, v{64+4*q+k}'); I(f'v_and_b32 v{89+2*k}, 0xffff0000, v{64+4*q+k}')
            if cfg.get('pk', 0):
                wq = 48 + (q & ~1); sel = f'op_sel:[{q&1},0,0] op_sel_hi:[{q&1},1,1]'
                for k in range(4):
                    if q == 0: I(f'v_pk_mul_f32 {vr(80+2*k,2)}, {vr(wq,2)}, {vr(88+2*k,2)} op_sel:[0,0] op_sel_hi:[0,1]')
                    else: I(f'v_pk_fma_f32 {vr(80+2*k,2)}, {vr(wq,2)}, {vr(88+2*k,2)}, {vr(80+2*k,2)} {sel}')
                continue
            for k in range(8):
                if q == 0: I(f'v_mul_f32 v{80+k}, v48, v{88+k}')
                else: I(f'v_fmac_f32 v{80+k}, v{48+q}, v{88+k}')
        for k in range(4): I(f'v_permlane32_swap_b32 v{80+2*k}, v{81+2*k}')
        for k in range(4): I(f'v_add_f32 v{88+k}, v{80+2*k}, v{81+2*k}')
        I('v_permlane16_swap_b32 v88, v90'); I('v_permlane16_swap_b32 v89, v91')
        I('v_add_f32 v88, v88, v90'); I('v_add_f32 v89, v89, v91')
        I('v_cvt_pk_bf16_f32 v88, v88, v89'); I('ds_write_b32 v13, v88')
        e.barrier()
        if REC: I('ds_read_b64 v[56:57], v19', tag='mz')
        for s in range(4): I(f'ds_read_b128 {vr(64+4*s,4)}, v14 offset:{s*64}', tag=f'er{s}')
        fs = [lambda: [I(f'v_max_f32_dpp v58, v56, v56 quad_perm:[1,0,3,2] {DPPM}')],
              lambda: [I(f'v_max_f32_dpp v58, v58, v58 quad_perm:[2,3,0,1] {DPPM}'), I('v_sub_f32 v56, v56, v58'), I('v_exp_f32 v56, v56')],
              lambda: [I('v_mul_f32 v57, v56, v57'), I(f'v_add_f32_dpp v57, v57, v57 quad_perm:[1,0,3,2] {DPPM}')],
              lambda: [I(f'v_add_f32_dpp v57, v57, v57 quad_perm:[2,3,0,1] {DPPM}'), I('v_rcp_f32 v57, v57'), I('v_mul_f32 v56, v56, v57')]]
        for s in range(4):
            e.wait_lg(f'er{s}')
            I(f'v_mfma_f32_16x16x32_bf16 v[80:83], {vr(96+4*s,4)}, {vr(64+4*s,4)}, {"0" if s == 0 else "v[80:83]"}')
            if REC: fs[s]()
        if REC:
            for k in range(4): I(f'v_mul_f32 v{80+k}, v{80+k}, v56')
        for qp in ('[1,0,3,2]', '[2,3,0,1]'):
            for k in range(4): I(f'v_add_f32_dpp v{80+k}, v{80+k}, v{80+k} quad_perm:{qp} {DPPM}')
        I('v_cvt_pk_bf16_f32 v80, v80, v81'); I('v_cvt_pk_bf16_f32 v81, v82, v83')
        if cfg.get('publds', 1):
            self.exec_mask(50); I('ds_write_b64 v15, v[80:81]'); self.exec_all()
            self.pub_lds(L_OUT, 6, 46, pol='' if cfg.get('loc', 0) & 1 else 'sc1')
        else:
            self.exec_mask(50); I('global_store_dwordx2 v15, v[80:81], s[46:47] sc1'); self.exec_all()
        self.stamp(9)
        if cfg.get('loc', 0) & 3:
            Lf = self.lab('h4a')
            I('s_cmp_lg_u32 s3, 0'); I(f's_cbranch_scc1 {Lf}'); self.sleep(cfg.get('loc_d', 40))
            I('s_mov_b32 exec_hi, 0'); I('global_store_dwordx4 v6, v[64:67], s[46:47] sc1')
            I('s_mov_b64 exec, 1'); I('global_store_dword v251, v250, s[98:99] sc1'); self.exec_all()
            e.label(Lf, flush=False)

def generate(cfg, path):
    g = Gen(cfg); g.build()
    body = g.e.text()
    hdr = open('cdna_kernels/' + NAME + '.s.ref').read().split('; @launch')[0]
    s = hdr + f'; @launch grid=(256,1,1) block=(512,1,1) lds={LDS_BYTES}\n'
    s += f'''.amdgcn_target "amdgcn-amd-amdhsa--gfx950"
.text
.globl {NAME}_kernel
.p2align 8
.type {NAME}_kernel,@function
{NAME}_kernel:
{body}.section .rodata,"a"
.p2align 6
.amdhsa_kernel {NAME}_kernel
  .amdhsa_next_free_vgpr 256
  .amdhsa_next_free_sgpr 102
  .amdhsa_accum_offset 256
  .amdhsa_group_segment_fixed_size 0
  .amdhsa_kernarg_size 120
  .amdhsa_user_sgpr_count 2
  .amdhsa_user_sgpr_kernarg_segment_ptr 1
  .amdhsa_system_sgpr_workgroup_id_x 1
.end_amdhsa_kernel
'''
    import subprocess, re, os
    kb = 40
    for it in range(2):
        open(path, 'w').write(s.replace('CODE_KB', str(kb)))
        subprocess.check_call(['clang', '-x', 'assembler', '-target', 'amdgcn-amd-amdhsa', '-mcpu=gfx950', '-c', path, '-o', path + '.o'])
        h = subprocess.check_output(['llvm-objdump', '-h', path + '.o']).decode()
        size = int(re.search(r'\.text\s+([0-9a-f]+)', h).group(1), 16)
        kb = size >> 10
        os.remove(path + '.o')
    g.size = size
    return g

DEFAULT = dict(stamps=0, d_h3s=16, pv_prio=1, gseq=0, wuv_pre=0, a_pre=0, wuk_late=2, ckv_win=4, f_pre=25, f_pre3=0, t_h1=258, h3_loop=1, p1q=1, gside=1, hu4m=1, hu5m=2, fin_m=1, fin_h5=80, d_h3=16, h4dma=1, hsplit=1, g_pre=30, gpf=0, g_pre3=0, t_h5=58, t_h7=226, g2=3, ilv=2, h3sent=0, t_h4=56, loc=7, h4_loop=1, d_hq=3, hq_loop=1, t_h2=60, h2chk=1, b_pre=35, bc_pre=10, cmp=7, h2dma=1, g4all=2, pk=1, h3rec=1, qk2=1, wuv_at=3, late3=1, latesum=1, hu_early=3)
if __name__ == '__main__':
    cfg = dict(DEFAULT)
    out = 'cdna_kernels/' + NAME + '.s'
    for a in sys.argv[1:]:
        k, v = a.split('=')
        if k == 'out': out = v
        else: cfg[k] = int(v)
    g = generate(cfg, out)
    print('early', len(g.e.secs['early']), 'instrs', len(g.e.lines), 'nops', g.e.nops, 'maxv', g.e.maxv, 'size', g.size)
```

```python
import sys, math, struct
sys.path.insert(0, 'work')
from emit import Emitter
NAME = 'adaLN_cond__compressed_kv_cla__glu_gated_geglu__decode'
def f32(x): return '0x%08x' % struct.unpack('<I', struct.pack('<f', x))[0]

WS_MODP, WS_HQ, WS_H2, WS_ST, WS_H4, WS_H5, WS_H6, WS_MODQ, WS_H3, WS_DBG = 0x0, 0x10000, 0x20000, 0x30000, 0x38000, 0x48000, 0x50000, 0x58000, 0x100000, 0x600000
WS_HU2, WS_HU4, WS_HU5 = 0x68000, 0x6C000, 0x70000
WS_H7 = 0x7C000
WS_HQ2 = 0x10000
WS_FL2 = 0x98000
WS_GOC, WS_FL = 0x74000, 0x78000
CLR_BYTES = 0x54000
K = 1024
L_WQ, L_WUK = 0, 32*K
L_S = 128*K
L_HV = L_S
L_CKV, L_QABS = 0, 128*K
L_MT, L_SC, L_RED1 = 128*K, 96*K, 98*K
L_XCH, L_MAX, L_SUM, L_P = 0, 16*K, 17*K, 24*K
L_WUV = 32*K
L_EST, L_EROW, L_EST2 = L_S, L_S + 1*K, L_S + 4*K
L_WO, L_WG, L_WU, L_WDN = 0, 0, 64*K, 0
L_FRED, L_XST, L_H2V, L_GRED, L_X1 = L_S, L_S+16*K, L_S+17*K, L_S+20*K, L_S+22*K
L_OUT = L_S + 30*K
LDS_BYTES = 160*K
SPIN = 60000

P_X, P_CKV, P_WQ, P_WUK, P_WUV, P_WO, P_WG, P_WU, P_WD, P_C, P_WMOD, P_OUT, P_DBG, P_WS = 8, 10, 12, 14, 16, 18, 22, 24, 26, 28, 30, 32, 34, 36
def sp(p): return f's[{p}:{p+1}]'
def vr(a, n): return f'v[{a}:{a+n-1}]' if n > 1 else f'v{a}'
POL = ['sc1', 'sc1 nt', 'sc0 sc1', 'sc0 sc1 nt']
DPPM = 'row_mask:0xf bank_mask:0xf'

DOC = """
One persistent launch, 256 workgroups x 8 waves, stages chained through d_ws.
 B group (wg<128): adaLN shift/scale tiles or buffer reset, stream 128 keys of c_kv, absorbed QK^T, softmax, PV,
                   then per (head, latent quarter): merge of the 128 partial outputs and w_uv.
 A group (wg>=128): q = h.w_q, q_abs = q.w_uk, then w_o tiles / MLP slices (LayerNorm folded in after the matmul) / output.
Hand-offs: small buffers are reset to all-ones in this launch (flag in d_debug) and every word read is checked against it;
 the first hand-off carries a per-launch clock tag, the partial outputs are covered by a record written after they completed.
 Clock values exchanged between stages only pace the first look of a consumer (polling lines under write is slow);
 every wait is bounded and results do not depend on timing or on where a workgroup runs.
"""

class Gen:
    def __init__(self, cfg):
        self.cfg = cfg
        cfg['skip'] = {0: '', 1: 'wuk', 2: 'wq', 3: 'wuk wq', 4: 'wuv'}[cfg.get('skipk', 0)]
        self.e = Emitter(); self.I = self.e.I
        self.uid = 0
        self.spol = 'nt' if cfg.get('small_nt', 0) else ''
    def lab(self, s): self.uid += 1; return f'L_{s}_{self.uid}'
    def stamp(self, k):
        if not self.cfg.get('stamps'): return
        self.I(f's_memrealtime s[{64+2*k}:{65+2*k}]'); self.e.lg.append('SMEM')
    def base(self, dst, ptr, terms, const=0):
        I = self.I
        first = True
        for (s, m) in terms:
            t = 's6' if first else 's7'
            I(f's_mul_i32 {t}, s{s}, {m}')
            if not first: I('s_add_u32 s6, s6, s7')
            first = False
        if first: I(f's_mov_b32 s6, {const}')
        elif const: I(f's_add_u32 s6, s6, {const}')
        if getattr(self, 'kwait', False): I('s_waitcnt lgkmcnt(0)'); self.kwait = False
        I(f's_add_u32 s{dst}, s{ptr}, s6'); I(f's_addc_u32 s{dst+1}, s{ptr+1}, 0')
    def sval(self, dst, terms, const=0):
        I = self.I
        first = True
        for (s, m) in terms:
            t = dst if first else 's7'
            I(f's_mul_i32 {t}, s{s}, {m}')
            if not first: I(f's_add_u32 {dst}, {dst}, s7')
            first = False
        if first: I(f's_mov_b32 {dst}, {const}')
        elif const: I(f's_add_u32 {dst}, {dst}, {const}')
    def sleep(self, n):
        while n > 0:
            k = min(n, 127); self.I(f's_sleep {k}'); n -= k
    def maxtree(self, regs, t):
        I = self.I
        regs = list(regs)
        if len(regs) == 1: return regs[0]
        if len(regs) == 2: I(f'v_max_u32 v{t}, v{regs[0]}, v{regs[1]}'); return t
        I(f'v_max3_u32 v{t}, v{regs[0]}, v{regs[1]}, v{regs[2]}'); k = 3
        while k < len(regs):
            if k + 1 < len(regs): I(f'v_max3_u32 v{t}, v{t}, v{regs[k]}, v{regs[k+1]}'); k += 2
            else: I(f'v_max_u32 v{t}, v{t}, v{regs[k]}'); k += 1
        return t
    def poll(self, name, loads, regs, pre, loop_sleep=2, t=8, onfail=None):
        e, I = self.e, self.I
        L, D = self.lab(name), self.lab(name + 'd')
        I(f's_mov_b32 s54, {SPIN}')
        self.sleep(pre)
        e.label(L, flush=True)
        for ld in loads: I(ld)
        e.wait_vm()
        r = self.maxtree(regs, t)
        I(f'v_cmp_eq_u32 vcc, -1, v{r}')
        I(f's_cbranch_vccz {D}')
        if onfail: onfail()
        I(f's_sleep {loop_sleep}')
        I('s_sub_u32 s54, s54, 1')
        I(f's_cbranch_scc0 {L}')
        e.label(D, flush=False); e.vm = []
    def flag_ld(self, which, dst, tag=None):
        if which == 0: self.I('v_and_b32 v8, 7, v1'); self.I('v_lshlrev_b32 v8, 2, v8')
        else: self.I('v_mov_b32 v8, 128')
        self.I(f'global_load_dword v{dst}, v8, {sp(P_DBG)} sc1', tag=tag)
    def flagcheck_issue(self, which, dst): self.flag_ld(which, dst, 'flag')
    def flagcheck_finish(self, which, dst):
        e, I = self.e, self.I
        L, D = self.lab('fl'), self.lab('fld')
        I(f's_mov_b32 s54, {SPIN}'); I('s_mov_b32 s63, 0x01010101')
        e.wait_vm('flag')
        e.label(L, flush=True)
        I(f'v_cmp_ne_u32 vcc, s63, v{dst}')
        I(f's_cbranch_vccz {D}')
        I('s_sleep 6')
        saved = list(e.vm)
        self.flag_ld(which, dst)
        I('s_waitcnt vmcnt(0)')
        I('s_sub_u32 s54, s54, 1')
        I(f's_cbranch_scc0 {L}')
        e.label(D, flush=False)
        e.vm = saved
    def ror_reduce(self, regs, steps, op='add'):
        for s in steps:
            for r in regs: self.I(f'v_{op}_f32_dpp v{r}, v{r}, v{r} row_ror:{s} {DPPM}')
    def cross(self, which, r, t, op='add'):
        I = self.I
        I(f'v_mov_b32 v{t}, v{r}'); I(f'v_permlane{which}_swap_b32 v{r}, v{t}'); I(f'v_{op}_f32 v{r}, v{r}, v{t}')
    def exec_mask(self, pair): self.I(f's_mov_b64 exec, s[{pair}:{pair+1}]')
    def exec_all(self): self.I('s_mov_b64 exec, -1')

    def dma_128(self, sbase, pitch, ninstr, lds_terms, lds_const, tag, vt=11, pol='nt', between=None):
        I = self.I
        I(f'v_lshlrev_b32 v{vt}, 1, v3'); I('v_and_b32 v9, 7, v1'); I(f'v_xor_b32 v{vt}, v{vt}, v9'); I(f'v_lshlrev_b32 v{vt}, 4, v{vt}')
        I('v_lshrrev_b32 v9, 3, v1'); I(f's_mov_b32 s6, {pitch}'); I('v_mul_lo_u32 v9, v9, s6'); I(f'v_add_u32 v{vt}, v{vt}, v9')
        self.sval('s53', lds_terms, lds_const)
        if between: between()
        if self.cfg.get('noload') and tag in ('gu', 'wo', 'ga', 'up'): ninstr = 1
        for q in range(ninstr):
            I(f's_add_u32 m0, s53, {q*1024}')
            I(f'global_load_lds_dwordx4 v{vt}, s[{sbase}:{sbase+1}] {pol}', tag=tag)
            if q < ninstr - 1: I(f'v_add_u32 v{vt}, {8*pitch}, v{vt}')
    def tr_base_128(self, dst, lds_terms, lds_const):
        I = self.I
        I('v_lshrrev_b32 v9, 2, v2'); I('v_lshl_add_u32 v9, v3, 2, v9')
        I(f'v_bfe_u32 v{dst}, v9, 1, 2'); I(f'v_lshlrev_b32 v{dst}, 5, v{dst}'); I(f'v_lshl_add_u32 v{dst}, v9, 7, v{dst}')
        I('v_and_b32 v9, 3, v2'); I(f'v_lshl_add_u32 v{dst}, v9, 3, v{dst}')
        self.sval('s6', lds_terms, lds_const); I(f'v_add_u32 v{dst}, s6, v{dst}')
    def dma_256(self, sbase, pitch, lds_const, tag, swz, vt=11, pol='nt', between=None):
        I = self.I
        I(f's_mov_b32 s6, {pitch}'); I('v_mul_lo_u32 v9, v3, s6')
        if swz == '32': I(f'v_lshlrev_b32 v{vt}, 1, v3')
        else: I(f'v_mov_b32 v{vt}, v3')
        I(f'v_xor_b32 v{vt}, v{vt}, v2'); I(f'v_lshl_add_u32 v{vt}, v{vt}, 4, v9')
        self.sval('s53', [(3, 4096)], lds_const)
        if between: between()
        for q in range(4 if tag not in self.cfg.get('skip', '') else 1):
            x = ((q & 1) << 7) if swz == '32' else (q << 6)
            if q: I(f'v_xor_b32 v{vt+1}, {x}, v{vt}'); I(f'v_add_u32 v{vt+1}, {q*4*pitch}, v{vt+1}')
            I(f's_add_u32 m0, s53, {q*1024}')
            I(f'global_load_lds_dwordx4 v{vt+1 if q else vt}, s[{sbase}:{sbase+1}] {pol}', tag=tag)
    def tr_base_256(self, dst, lds_const):
        I = self.I
        I('v_lshrrev_b32 v9, 2, v2'); I('v_lshl_add_u32 v9, v3, 2, v9')
        I(f'v_and_b32 v{dst}, 7, v9'); I(f'v_xor_b32 v{dst}, s3, v{dst}'); I(f'v_lshlrev_b32 v{dst}, 5, v{dst}'); I(f'v_lshl_add_u32 v{dst}, v9, 8, v{dst}')
        I('v_and_b32 v9, 3, v2'); I(f'v_lshl_add_u32 v{dst}, v9, 3, v{dst}')
        if lds_const: I(f'v_add_u32 v{dst}, {lds_const}, v{dst}')

    def build(self):
        e, I, cfg = self.e, self.I, self.cfg
        for l in DOC.strip().split('\n'): e.comment(l)
        I('s_cmp_ge_u32 s2, 256'); I('s_cbranch_scc1 L_END')
        I('s_load_dwordx16 s[8:23], s[0:1], 0'); I('s_load_dwordx8 s[24:31], s[0:1], 64')
        I('s_load_dwordx4 s[32:35], s[0:1], 96'); I('s_load_dwordx2 s[36:37], s[0:1], 112')
        if cfg.get('stamps'):
            I('s_memrealtime s[64:65]')
            for k in range(66, 96): I(f's_mov_b32 s{k}, 0')
        I('s_memrealtime s[100:101]')
        I('s_getpc_b64 s[44:45]')
        I('v_and_b32 v1, 63, v0'); I('v_lshrrev_b32 v8, 6, v0')
        I('v_and_b32 v2, 15, v0'); I('v_readfirstlane_b32 s3, v8')
        I('v_bfe_u32 v3, v0, 4, 2'); I('v_and_b32 v4, 31, v0'); I('v_bfe_u32 v5, v0, 5, 1')
        I('v_lshlrev_b32 v6, 4, v1'); I('v_lshlrev_b32 v7, 3, v1')
        I('s_and_b32 s4, s2, 7'); I('s_lshr_b32 s5, s2, 3')
        I(f'v_add_u32 v253, {L_OUT}, v6')
        I('s_and_b32 s44, s44, 0xffffff00')
        I('s_sub_u32 s6, s5, 12'); I('s_cmp_ge_u32 s6, 4'); I('s_cbranch_scc1 L_NOPF')
        I('s_sub_u32 s7, s3, 2'); I('s_cmp_ge_u32 s7, 6'); I('s_cbranch_scc1 L_NOPF')
        I('s_mul_i32 s6, s6, 6'); I('s_add_u32 s6, s6, s7'); I('s_add_u32 s6, s6, 1')
        I(f's_cmp_ge_u32 s6, CODE_KB'); I('s_cbranch_scc1 L_NOPF')
        I('s_lshl_b32 s6, s6, 10'); I('v_add_u32 v8, s6, v6')
        I('global_load_dwordx4 v[240:243], v8, s[44:45]')
        e.label('L_NOPF'); e.vm = []
        if cfg.get('remap', 0):
            I('s_and_b32 s6, s4, 3'); I('s_lshl_b32 s6, s6, 1'); I('s_lshr_b32 s7, s5, 4'); I('s_add_u32 s6, s6, s7')
            I('s_and_b32 s5, s5, 15'); I('s_cmp_lt_u32 s4, 4'); I('s_cselect_b32 s7, 16, 0'); I('s_add_u32 s5, s5, s7')
            I('s_mov_b32 s4, s6'); I('s_lshl_b32 s2, s5, 3'); I('s_add_u32 s2, s2, s4')
        I('s_mov_b32 s48, 0x00030003'); I('s_mov_b32 s49, 0x00030003')
        I('s_mov_b32 s50, 0x00110011'); I('s_mov_b32 s51, 0x00110011')
        I('s_lshr_b32 s60, s3, 2'); I('s_and_b32 s55, s3, 3'); I('s_lshr_b32 s61, s3, 1'); I('s_and_b32 s62, s3, 1')
        I('s_bfe_u32 s6, s5, 0x20002'); I('s_lshl_b32 s40, s4, 2'); I('s_add_u32 s40, s40, s6'); I('s_and_b32 s41, s5, 3')
        LZ = cfg.get('lazy', 0)
        if not LZ: I('s_waitcnt lgkmcnt(0)')
        if cfg.get('p1st'): self.stamp(7)
        if cfg.get('pretouch', 0):
            LP = self.lab('pt')
            I('s_cmp_lg_u32 s3, 6'); I(f's_cbranch_scc1 {LP}')
            I('v_lshlrev_b32 v8, 16, v1'); I(f'v_add_u32 v8, {0xff80}, v8')
            I(f'global_load_dword v248, v8, {sp(P_WS)}')
            I(f'v_add_u32 v8, {0x400000}, v8'); I('s_mov_b32 exec_hi, 0'); I(f'global_load_dword v249, v8, {sp(P_WS)}'); self.exec_all()
            I('v_mov_b32 v8, 0'); I(f'global_load_dword v250, v8, {sp(P_OUT)}')
            e.label(LP); e.vm = []
        if cfg.get('skewdbg', 0):
            Ls = self.lab('skd')
            I('s_sub_u32 s6, s2, 96'); I('s_cmp_ge_u32 s6, 8'); I(f's_cbranch_scc1 {Ls}'); I('s_cmp_lg_u32 s3, 0'); I(f's_cbranch_scc1 {Ls}')
            I('s_waitcnt lgkmcnt(0)'); I('s_lshl_b32 s6, s6, 2'); I('v_mov_b32 v8, s6'); I('v_mov_b32 v10, s100'); I('s_mov_b64 exec, 1')
            I(f'global_store_dword v8, v10, {sp(P_DBG)} offset:8 sc1'); self.exec_all()
            e.label(Ls); e.vm = []
        LE = self.lab('ep')
        I(f's_cmp_lg_u32 s2, {cfg.get("ep_wg", 64)}'); I(f's_cbranch_scc1 {LE}'); I('s_cmp_lg_u32 s3, 0'); I(f's_cbranch_scc1 {LE}')
        if LZ: I('s_waitcnt lgkmcnt(0)')
        I('s_or_b32 s100, s100, 1'); I('v_mov_b32 v10, s100'); I('v_mov_b32 v11, s101'); I('v_mov_b32 v8, 0'); I('s_mov_b64 exec, 1')
        I(f'global_store_dwordx2 v8, v[10:11], {sp(P_DBG)} sc1'); self.exec_all()
        e.label(LE); e.vm = []
        I('s_and_b32 s5, s5, 15')
        I('s_and_b32 s96, s2, 127')
        if cfg.get('p1a', 0):
            I('s_cmp_lt_u32 s2, 128'); I('s_cbranch_scc1 L_ROLE_B')
            self.role_a()
            e.sec('early')
            e.label('L_ROLE_B'); e.vm = []; e.lg = ['SMEM']
            self.role_b()
        else:
            I('s_cmp_ge_u32 s2, 128'); I('s_cbranch_scc1 L_ROLE_A')
            self.role_b()
            e.branch('s_branch', 'L_FIN')
            e.sec('early')
            e.label('L_ROLE_A'); e.vm = []; e.lg = ['SMEM']
            self.role_a()
        e.label('L_FIN')
        if cfg.get('stamps'):
            self.stamp(15); I('s_waitcnt lgkmcnt(0)')
            if cfg.get('ldump', 1):
                e.label('L_LD')
                I('s_sleep 8'); I('s_memrealtime s[100:101]'); I('s_waitcnt lgkmcnt(0)'); I('s_sub_u32 s6, s100, s64'); I('s_cmp_lt_u32 s6, 2000'); I('s_cbranch_scc1 L_LD')
            self.base(44, P_WS, [(2, 1024), (3, 128)], WS_DBG)
            I('v_mov_b32 v8, 0'); I('s_mov_b64 exec, 1')
            for k in range(16):
                I(f'v_mov_b32 v10, s{64+2*k}'); I(f'v_mov_b32 v11, s{65+2*k}'); I(f'global_store_dwordx2 v8, v[10:11], s[44:45] offset:{8*k}')
        if cfg.get('dbgst'):
            I('s_cmp_lg_u32 s3, 0'); e.branch('s_cbranch_scc1', 'L_END')
            for (wg, items) in ((128+64, [(8, 15), (9, 6)]), (64, [(10, 3), (11, 4), (12, 6), (13, 9)]), (128, [(14, 10)]), (128+96, [(15, 12)])):
                Ld = self.lab('dg')
                I(f's_cmp_lg_u32 s2, {wg}'); e.branch('s_cbranch_scc1', Ld)
                I('s_mov_b64 exec, 1'); I('v_mov_b32 v8, 0')
                for (word, k) in items:
                    I(f's_sub_u32 s6, s{64+2*k}, s64'); I('v_mov_b32 v10, s6'); I(f'global_store_dword v8, v10, {sp(P_DBG)} offset:{4*word}')
                e.label(Ld)
        e.label('L_END')
        I('s_endpgm')

    def role_a(self):
        e, I, cfg = self.e, self.I, self.cfg
        self.sleep(cfg.get('a_pre', 0))
        L_HV2, L_QV = 128*K, 130*K
        P1A = cfg.get('p1a', 0)
        LWQ = self.lab('wqd')
        if P1A == 3: I('s_mov_b32 s97, 0')
        if P1A:
            LNP, LNC2 = self.lab('np1'), self.lab('nc2')
            I('s_cmp_ge_u32 s96, 64'); e.branch('s_cbranch_scc1', LNP)
            I('s_lshr_b32 s56, s5, 2'); I('s_bfe_u32 s6, s5, 0x10001'); I('s_lshl_b32 s6, s6, 3'); I('s_add_u32 s6, s6, s4'); I('s_lshl_b32 s6, s6, 1'); I('s_and_b32 s57, s5, 1'); I('s_add_u32 s57, s57, s6')
            def mid():
                Lm = self.lab('mid'); saved = list(e.vm)
                I('s_mov_b32 s52, s53')
                I('s_cmp_lt_u32 s3, 2'); e.branch('s_cbranch_scc1', Lm)
                self.base(44, P_WQ, [(41, 128*8192), (3, 16*8192), (40, 256)])
                self.dma_256(44, 8192, L_WQ, 'wq', '32')
                e.label(Lm); e.vm = saved
                I('s_mov_b32 s53, s52')
            if P1A == 3:
                I('s_lshr_b32 s56, s96, 4'); I('s_and_b32 s57, s96, 15')
                LX = self.lab('xl')
                I('s_cmp_lg_u32 s3, 0'); e.branch('s_cbranch_scc1', LX)
                I('v_lshlrev_b32 v9, 5, v1')
                I(f'global_load_dwordx4 v[64:67], v9, {sp(P_X)}'); I(f'global_load_dwordx4 v[68:71], v9, {sp(P_X)} offset:16')
                I('v_lshlrev_b32 v10, 10, v5'); I('v_lshl_add_u32 v10, v4, 3, v10'); I('s_lshl_b32 s6, s41, 8'); I('v_add_u32 v10, s6, v10')
                I(f'global_load_dwordx2 v[18:19], v10, {sp(P_X)}')
                e.label(LX); e.vm = []
                def mid3():
                    LX = self.lab('xl'); saved = list(e.vm)
                    self.base(44, P_WQ, [(41, 128*8192), (3, 16*8192), (40, 256)])
                    I('s_barrier')
                    self.dma_256(44, 8192, L_WQ, 'wq', '32')
                self.p1_tile(64*K, 98*K, mid=mid3)
                self.stamp(12)
                I(f's_cmp_lt_u32 s3, {2 if cfg.get("p1full", 0) else 4}'); I('s_cselect_b32 s97, 1, 0')
                e.branch('s_branch', LWQ)
            else:
                self.mod_tile(True, 64*K, 96*K, 98*K, early=True, mid=mid if P1A == 2 else None)
                self.stamp(12)
                if P1A == 2: I('s_cmp_ge_u32 s3, 2'); e.branch('s_cbranch_scc1', LWQ)
                e.branch('s_branch', LNC2)
            e.sec('early')
            e.label(LNP); e.vm = []; e.lg = ['SMEM']
            I('s_cmp_ge_u32 s96, 96'); e.branch('s_cbranch_scc1', LNC2)
            I('s_sub_u32 s43, s96, 64')
            for k in range(4): I(f'v_mov_b32 v{44+k}, -1')
            self.base(44, P_WS, [(43, 16384), (3, 2048)], WS_H2)
            for k in range(2): I(f'global_store_dwordx4 v6, v[44:47], s[44:45] offset:{k*1024} sc1')
            self.base(44, P_WS, [(43, 2048), (3, 256)], WS_HQ2)
            I('s_mov_b64 exec, 0xffff'); I('global_store_dwordx4 v6, v[44:47], s[44:45] sc1'); self.exec_all()
            e.label(LNC2); e.vm = []; e.lg = ['SMEM']
        def xloads():
            LX = self.lab('xl'); saved = list(e.vm)
            I('s_cmp_lg_u32 s3, 0'); e.branch('s_cbranch_scc1', LX)
            I('v_lshlrev_b32 v9, 5, v1')
            I(f'global_load_dwordx4 v[64:67], v9, {sp(P_X)}'); I(f'global_load_dwordx4 v[68:71], v9, {sp(P_X)} offset:16')
            I('v_lshlrev_b32 v10, 10, v5'); I('v_lshl_add_u32 v10, v4, 3, v10'); I('s_lshl_b32 s6, s41, 8'); I('v_add_u32 v10, s6, v10')
            I(f'global_load_dwordx2 v[18:19], v10, {sp(P_X)}')
            e.label(LX); e.vm = saved
        CLA = cfg.get('clA', 0)
        if CLA:
            Lnc = self.lab('nca')
            I('s_mov_b32 s97, 0')
            I('s_cmp_ge_u32 s4, 4'); I(f's_cbranch_scc1 {Lnc}'); I('s_cmp_lt_u32 s5, 8'); I(f's_cbranch_scc1 {Lnc}')
            I('s_sub_u32 s43, s5, 8'); I('s_lshl_b32 s43, s43, 2'); I('s_add_u32 s43, s43, s4'); I('s_mov_b32 s97, 1')
            for k in range(4): I(f'v_mov_b32 v{44+k}, -1')
            self.kwait = True
            self.base(46, P_WS, [(43, 16384), (3, 2048)], WS_H2)
            for k in range(2): I(f'global_store_dwordx4 v6, v[44:47], s[46:47] offset:{k*1024} sc1')
            self.base(46, P_WS, [(43, 2048), (3, 256)], WS_HQ2)
            I('s_mov_b64 exec, 0xffff'); I('global_store_dwordx4 v6, v[44:47], s[46:47] sc1'); self.exec_all()
            e.label(Lnc); e.vm = []
        if cfg.get('lazy', 0):
            def btw():
                self.kwait = True
                self.base(44, P_WQ, [(41, 128*8192), (3, 16*8192), (40, 256)])
                if cfg.get('eref', 0): I('v_mov_b32 v31, 0'); I(f'global_load_dword v130, v31, {sp(P_DBG)} sc1')
            self.dma_256(44, 8192, L_WQ, 'wq', '32', between=btw)
            xloads()
        else:
            xloads()
            self.base(44, P_WQ, [(41, 128*8192), (3, 16*8192), (40, 256)])
            self.dma_256(44, 8192, L_WQ, 'wq', '32')
        self.stamp(1)
        e.cont()
        e.label(LWQ)
        if cfg.get('pt', 0) & 8:
            Lp = self.lab('pt'); saved = list(e.vm)
            I('s_cmp_lg_u32 s3, 6'); e.branch('s_cbranch_scc1', Lp, flush=False)
            I('v_and_b32 v9, 7, v1'); I('v_lshlrev_b32 v9, 16, v9'); I('v_add_u32 v9, 0xf080, v9'); I(f'global_load_dword v250, v9, {sp(P_WS)} sc1')
            I('v_mov_b32 v9, 64'); I(f'global_load_dword v251, v9, {sp(P_DBG)} sc1')
            e.label(Lp, flush=False); e.vm = saved
        if P1A or CLA:
            L1 = self.lab('c1'); saved = list(e.vm)
            if CLA: I('s_cmp_eq_u32 s97, 0'); e.branch('s_cbranch_scc1', L1)
            else: I('s_sub_u32 s6, s96, 64'); I('s_cmp_ge_u32 s6, 32'); e.branch('s_cbranch_scc1', L1)
            I('s_waitcnt vmcnt(4)'); I('s_barrier')
            I('s_cmp_lg_u32 s3, 7'); e.branch('s_cbranch_scc1', L1)
            I('v_mov_b32 v8, 0'); I('v_mov_b32 v9, 1'); I('s_mov_b64 exec, 1')
            I(f'global_atomic_add v10, v8, v9, {sp(P_DBG)} offset:192 sc0 sc1')
            I('s_waitcnt vmcnt(0)'); self.exec_all()
            I('v_readfirstlane_b32 s6, v10'); I('s_nop 3'); I('s_cmp_lg_u32 s6, 31'); e.branch('s_cbranch_scc1', L1)
            I('v_mov_b32 v9, 0x01010101'); I('s_mov_b64 exec, 1')
            I(f'global_store_dword v8, v9, {sp(P_DBG)} offset:128 sc1'); self.exec_all()
            e.label(L1); e.vm = saved
        if cfg.get('h3sent') == 4:
            self.sleep(cfg.get('clr_pre', 0))
            for k in range(4): I(f'v_mov_b32 v{240+k}, -1')
            self.base(46, P_WS, [(96, 32768), (3, 4096)], WS_H3)
            for q in range(4): I(f'global_store_dwordx4 v6, v[240:243], s[46:47] offset:{q*1024} {POL[cfg.get("clrpol", 0)]}', tag='clr')
        self.base(44, P_WUK, [(41, 128*8192), (3, 16*8192), (40, 256)])
        WL = cfg.get('wuk_late', 1)
        if not WL: self.dma_256(44, 8192, L_WUK, 'wuk', '16')
        WX = cfg.get('wuk_x', 0)
        if WX:
            Lx = self.lab('wx'); saved = list(e.vm)
            I('s_cmp_lt_u32 s4, 4'); e.branch('s_cbranch_scc1', Lx)
            self.dma_256(44, 8192, L_WUK, 'wuk', '16')
            e.label(Lx); e.vm = saved
        P1Q = cfg.get('p1q', 0)
        if P1Q:
            I('v_lshlrev_b32 v24, 12, v5'); I('v_lshl_add_u32 v24, v4, 4, v24'); I('v_add_u32 v25, 8192, v24'); I('v_add_u32 v128, 16384, v24'); I('v_add_u32 v129, 24576, v24')
        else:
            I('s_mov_b32 s6, 12288'); I('v_mul_lo_u32 v24, v5, s6'); I('v_lshl_add_u32 v24, v4, 4, v24'); I('v_add_u32 v25, 24576, v24')
        self.base(58, P_WS, [(41, 512)], WS_MODP)
        I('v_lshrrev_b32 v26, 3, v4'); I('v_lshlrev_b32 v26, 6, v26'); I('v_and_b32 v12, 3, v4'); I('v_lshl_add_u32 v26, v12, 4, v26')
        I('v_bfe_u32 v12, v4, 2, 1'); I('v_lshl_add_u32 v26, v12, 3, v26'); I('v_mul_u32_u24 v12, 320, v5'); I('v_add_u32 v26, v26, v12'); I(f'v_add_u32 v26, {L_HV2}, v26')
        I('v_and_b32 v12, 1, v2'); I('v_mul_u32_u24 v27, 320, v12'); I('v_lshl_add_u32 v27, v3, 4, v27'); I(f'v_add_u32 v27, {L_HV2}, v27')
        I('v_lshlrev_b32 v30, 8, v2'); I('v_lshl_add_u32 v30, v3, 3, v30'); self.sval('s6', [(3, 32)], L_OUT); I('v_add_u32 v30, s6, v30')
        I('v_lshlrev_b32 v40, 15, v3'); I('v_lshl_add_u32 v40, v2, 4, v40')
        I('v_mul_u32_u24 v28, 272, v3'); I('v_lshl_add_u32 v28, v2, 4, v28'); I(f'v_add_u32 v28, {L_QV}, v28')
        I('v_and_b32 v12, 7, v2'); I('v_mul_u32_u24 v29, 272, v12'); I('v_lshl_add_u32 v29, v3, 4, v29'); I(f'v_add_u32 v29, {L_QV}, v29')
        I(f's_mov_b32 s56, {f32(128**-0.5*math.log2(math.e))}'); I('v_mov_b32 v31, 0')
        self.base(46, P_WS, [(40, 2048), (41, 512)], WS_HQ2)
        self.tr_base_256(41, L_WQ)
        if P1A == 3:
            Lw = self.lab('wqw')
            I('s_waitcnt vmcnt(1)'); I('s_cmp_eq_u32 s97, 1'); I(f's_cbranch_scc1 {Lw}'); e.wait_vm('wq'); e.label(Lw, flush=False)
        elif WX:
            Lx, Ly = self.lab('wx2'), self.lab('wx3')
            I('s_cmp_lt_u32 s4, 4'); e.branch('s_cbranch_scc1', Lx)
            I('s_waitcnt vmcnt(4)'); e.branch('s_branch', Ly)
            e.label(Lx)
        if P1A != 3: e.wait_vm('wq')
        if WL == 2: self.dma_256(44, 8192, L_WUK, 'wuk', '16')
        if WX: e.label(Ly)
        e.barrier()
        for s4 in range(4):
            I(f'ds_read_b64_tr_b16 {vr(96+4*s4,2)}, v41 offset:{s4*8192}'); I(f'ds_read_b64_tr_b16 {vr(98+4*s4,2)}, v41 offset:{s4*8192+4096}')
        LL = self.lab('ln')
        I('s_cmp_lg_u32 s3, 0'); e.branch('s_cbranch_scc1', LL)
        I('v_mov_b32 v20, 0x3f803f80'); I('v_mov_b32 v14, 0')
        for k in range(8): I(f'v_dot2_f32_bf16 v14, v{64+k}, v20, v14')
        self.ror_reduce([14], [8, 4, 2, 1]); self.cross(16, 14, 21)
        I(f'v_mul_f32 v14, {f32(1/512)}, v14'); I('v_mov_b32 v15, 0')
        for k in range(8):
            I(f'v_lshlrev_b32 v21, 16, v{64+k}'); I('v_sub_f32 v21, v21, v14'); I('v_fmac_f32 v15, v21, v21')
            I(f'v_and_b32 v21, 0xffff0000, v{64+k}'); I('v_sub_f32 v21, v21, v14'); I('v_fmac_f32 v15, v21, v21')
        self.ror_reduce([15], [8, 4, 2, 1]); self.cross(16, 15, 21)
        I(f'v_mov_b32 v21, {f32(1e-5)}'); I(f'v_fmac_f32 v21, {f32(1/512)}, v15'); I('v_rsq_f32 v15, v21')
        I('v_lshlrev_b32 v20, 16, v18'); I('v_and_b32 v21, 0xffff0000, v18'); I('v_lshlrev_b32 v22, 16, v19'); I('v_and_b32 v23, 0xffff0000, v19')
        for k in range(4): I(f'v_sub_f32 v{20+k}, v{20+k}, v14')
        for k in range(4): I(f'v_mul_f32 v{20+k}, v{20+k}, v15')
        e.label(LL)
        def wuk_frags():
            I('v_xor_b32 v12, v3, v2'); I('v_lshlrev_b32 v12, 4, v12'); I('v_lshl_add_u32 v12, v2, 8, v12'); self.sval('s6', [(3, 4096)], L_WUK); I('v_add_u32 v12, s6, v12')
            for ks in range(4):
                I(f'v_xor_b32 v13, {ks<<6}, v12'); I(f'ds_read_b128 {vr(48+4*ks,4)}, v13')
        if not WL: e.wait_vm('wuk'); wuk_frags()
        self.stamp(2)
        L2, L = self.lab('fb'), self.lab('h1s')
        Lh, Dk, LW, L0, Lc = self.lab('h1l'), self.lab('h1ok'), self.lab('h1w'), self.lab('h10'), self.lab('h1c')
        h1l = [f'global_load_dwordx2 v[42:43], v31, {sp(P_DBG)} sc1',
               'global_load_dwordx4 v[72:75], v24, s[58:59] sc1', 'global_load_dwordx4 v[76:79], v24, s[58:59] offset:2048 sc1',
               'global_load_dwordx4 v[80:83], v25, s[58:59] sc1', 'global_load_dwordx4 v[84:87], v25, s[58:59] offset:2048 sc1']
        if P1Q:
            h1l += ['global_load_dwordx4 v[112:115], v128, s[58:59] sc1', 'global_load_dwordx4 v[116:119], v128, s[58:59] offset:2048 sc1',
                    'global_load_dwordx4 v[120:123], v129, s[58:59] sc1', 'global_load_dwordx4 v[124:127], v129, s[58:59] offset:2048 sc1']
        I('s_mov_b32 s57, s100')
        if cfg.get('eref', 0): I('v_readfirstlane_b32 s6, v130'); I('s_nop 3'); I('s_cmp_lg_u32 s6, 0'); I('s_cselect_b32 s57, s6, s57')
        I(f's_mov_b32 s54, {SPIN}'); I('s_cmp_eq_u32 s3, 0'); I('s_cselect_b32 s7, 0, 8'); I(f's_add_u32 s7, s7, {cfg.get("t_h1", 200)}')
        e.label(LW)
        I('s_memrealtime s[100:101]'); I('s_waitcnt lgkmcnt(0)'); I('s_sub_u32 s6, s100, s57'); I('s_cmp_lt_u32 s6, s7'); I(f's_cbranch_scc1 {LW}')
        I('s_cmp_lg_u32 s3, 0'); e.branch('s_cbranch_scc1', L0)
        for ld in h1l: I(ld.replace(' sc1', '') if cfg.get('h1plain', 0) else ld)
        e.label(L0); e.vm = []
        I('s_cmp_lg_u32 s3, 1'); e.branch('s_cbranch_scc1', L2)
        self.flagcheck_issue(1, 16)
        e.label(L2); e.vm = []
        if WL == 1: self.dma_256(44, 8192, L_WUK, 'wuk', '16')
        L2 = self.lab('fb2')
        I('s_cmp_lg_u32 s3, 1'); e.branch('s_cbranch_scc1', L2)
        e.vm = ['flag'] + e.vm
        self.flagcheck_finish(1, 16)
        e.label(L2)
        I('s_cmp_lg_u32 s3, 0'); e.branch('s_cbranch_scc1', L)
        H1B = cfg.get('h1b', 0)
        if H1B:
            RA = [72, 76, 80, 84, 112, 116, 120, 124]
            LW2 = self.lab('h1w2')
            e.label(LW2)
            I('s_memrealtime s[100:101]'); I('s_waitcnt lgkmcnt(0)'); I('s_sub_u32 s6, s100, s57'); I(f's_cmp_lt_u32 s6, {cfg["t_h1"] + H1B}'); I(f's_cbranch_scc1 {LW2}')
            for k, ld in enumerate(h1l[1:]): I(ld.replace(vr(RA[k],4), vr(136+4*k,4)))
            I('s_waitcnt vmcnt(8)')
            I('v_not_b32 v8, v42'); I('v_and_b32 v8, 1, v8')
            for b4 in RA:
                I(f'v_xor_b32 v9, v{b4+2}, v42'); I(f'v_xor_b32 v10, v{b4+3}, v43'); I('v_or3_b32 v8, v8, v9, v10')
            I('v_cmp_ne_u32 vcc, 0, v8'); I(f's_cbranch_vccz {Dk}')
            I('s_waitcnt vmcnt(0)')
            for k, b4 in enumerate(RA):
                I(f'v_mov_b64 {vr(b4,2)}, {vr(136+4*k,2)}'); I(f'v_mov_b64 {vr(b4+2,2)}, {vr(138+4*k,2)}')
        else: I(f's_waitcnt vmcnt({4 if WL == 1 else 0})')
        e.branch('s_branch', Lc)
        e.label(Lh)
        for ld in h1l: I(ld)
        I('s_waitcnt vmcnt(0)')
        e.label(Lc)
        I('v_not_b32 v8, v42'); I('v_and_b32 v8, 1, v8')
        for b4 in (72, 76, 80, 84) + ((112, 116, 120, 124) if P1Q else ()):
            I(f'v_xor_b32 v9, v{b4+2}, v42'); I(f'v_xor_b32 v10, v{b4+3}, v43'); I('v_or3_b32 v8, v8, v9, v10')
        I('v_cmp_ne_u32 vcc, 0, v8'); I(f's_cbranch_vccz {Dk}')
        self.stamp(5)
        I(f's_sleep {cfg.get("h1_loop", 4)}'); I('s_sub_u32 s54, s54, 1'); I(f's_cbranch_scc0 {Lh}')
        e.label(Dk, flush=False); e.vm = []
        self.stamp(3)
        I('v_mov_b32 v8, 0x00003f80'); I('v_mov_b32 v9, 0x3f800000')
        for k in range(4):
            I(f'v_dot2_f32_bf16 v{88+k}, v{72+(k>>1)}, v{8+(k&1)}, v{20+k}'); I(f'v_dot2_f32_bf16 v{92+k}, v{76+(k>>1)}, v{8+(k&1)}, 0')
        for b0 in (80,) + ((112, 120) if P1Q else ()):
            for k in range(4):
                I(f'v_dot2_f32_bf16 v{88+k}, v{b0+(k>>1)}, v{8+(k&1)}, v{88+k}'); I(f'v_dot2_f32_bf16 v{92+k}, v{b0+4+(k>>1)}, v{8+(k&1)}, v{92+k}')
        for k in range(4): I(f'v_fmac_f32 v{88+k}, v{20+k}, v{92+k}')
        I('v_cvt_pk_bf16_f32 v88, v88, v89'); I('v_cvt_pk_bf16_f32 v89, v90, v91')
        I('ds_write_b64 v26, v[88:89]')
        e.label(L); e.vm = []
        e.barrier()
        for s4 in range(4): I(f'ds_read_b128 {vr(64+4*s4,4)}, v27 offset:{s4*64}', tag=f'hv{s4}')
        I('s_mov_b64 s[38:39], 0')
        NOGO = cfg.get('spec_vm', 0) == 2
        if cfg.get('go_q', 0) == 0 and not NOGO: self.go_arrive()
        for s4 in range(4):
            e.wait_lg(f'hv{s4}')
            I(f'v_mfma_f32_16x16x32_bf16 v[80:83], {vr(96+4*s4,4)}, {vr(64+4*s4,4)}, {"0" if s4 == 0 else "v[80:83]"}')
        I('v_cvt_pk_bf16_f32 v80, v80, v81'); I('v_cvt_pk_bf16_f32 v81, v82, v83')
        self.exec_mask(48); I('ds_write_b64 v30, v[80:81]'); self.exec_all()
        LOCQ = cfg.get('loc', 0) & 4
        self.pub_lds(L_OUT, 6, 46, rd=132, pol='' if LOCQ else 'sc1')
        self.stamp(4)
        if LOCQ: I('s_mov_b64 s[52:53], s[46:47]')
        def hq_again():
            I('s_mov_b32 exec_hi, 0'); I('global_store_dwordx4 v6, v[132:135], s[52:53] sc1'); self.exec_all()
        def hq_fail():
            Lf = self.lab('hqf')
            I(f's_cmp_lg_u32 s54, {SPIN - cfg.get("loc_k", 4)}'); I(f's_cbranch_scc1 {Lf}'); hq_again(); e.label(Lf, flush=False)
        if cfg.get('go_q', 0) == 1 and not NOGO: self.go_arrive()
        self.base(44, P_WS, [(40, 2048)], WS_HQ2)
        self.base(46, P_WS, [(40, 1024), (41, 256)], WS_H2)
        Lg = self.lab('gw7')
        I('s_cmp_eq_u32 s3, 0'); e.branch('s_cbranch_scc1', Lg); I('s_waitcnt vmcnt(0)')
        if not NOGO: self.go_finish()
        if WL == 1: wuk_frags()
        e.label(Lg)
        if WL == 2: wuk_frags()
        Lq = self.lab('hq1')
        I('s_cmp_lg_u32 s3, 0'); e.branch('s_cbranch_scc1', Lq)
        self.poll('hq', [f'global_load_dwordx4 {vr(64+4*k,4)}, v6, s[44:45] offset:{k*1024} sc1' for k in range(2)], range(64, 72), cfg.get('d_hq', 8), loop_sleep=cfg.get('hq_loop', 2), onfail=hq_fail if LOCQ else None)
        I('ds_write_b128 v28, v[64:67]'); I(f'ds_write_b128 v28, v[68:71] offset:{4*272}')
        if WL == 1: wuk_frags()
        self.stamp(14)
        e.label(Lq); e.vm = []
        e.barrier()
        for ks in range(4): I(f'ds_read_b128 {vr(64+4*ks,4)}, v29 offset:{ks*64}', tag=f'qv{ks}')
        if cfg.get('h3sent') == 4:
            Lc = self.lab('ac')
            I('s_cmp_lg_u32 s3, 7'); e.branch('s_cbranch_scc1', Lc, flush=False)
            self.base(98, P_WS, [(96, 16)], WS_FL2)
            I('v_lshlrev_b32 v8, 11, v1'); I('s_and_b32 s6, s57, 0xfffffffe'); I('v_mov_b32 v9, s6')
            I('s_mov_b64 exec, 0xff'); I('global_store_dword v8, v9, s[98:99] sc1'); self.exec_all()
            e.label(Lc, flush=False); e.vm = []
        for ks in range(4):
            e.wait_lg(f'qv{ks}')
            I(f'v_mfma_f32_16x16x32_bf16 v[80:83], {vr(48+4*ks,4)}, {vr(64+4*ks,4)}, {"0" if ks == 0 else "v[80:83]"}')
        self.ror_reduce(range(80, 84), [2, 4])
        for k in range(4): I(f'v_mul_f32 v{80+k}, s56, v{80+k}')
        I('v_cvt_pk_bf16_f32 v80, v80, v81'); I('v_cvt_pk_bf16_f32 v81, v82, v83')
        self.exec_mask(48); I('ds_write_b64 v30, v[80:81]'); self.exec_all()
        self.pub_lds(L_OUT, 40, 46)
        self.stamp(6)
        if LOCQ:
            Lf = self.lab('hqa')
            I('s_cmp_lg_u32 s3, 0'); I(f's_cbranch_scc1 {Lf}'); self.sleep(cfg.get('loc_dq', 8)); hq_again(); e.label(Lf, flush=False)
        e.barrier()
        if cfg.get('h3sent') == 3:
            Lc, Lc1, Lc2 = self.lab('ac'), self.lab('ac1'), self.lab('ac2')
            I('s_cmp_ge_u32 s5, 12'); e.branch('s_cbranch_scc1', Lc)
            self.sleep(cfg.get('clr_pre', 0))
            for k in range(4): I(f'v_mov_b32 v{240+k}, -1')
            self.base(46, P_WS, [(96, 32768), (3, 4096)], WS_H3)
            for q in range(4): I(f'global_store_dwordx4 v6, v[240:243], s[46:47] offset:{q*1024} {POL[cfg.get("clrpol", 0)]}')
            I('s_cmp_lt_u32 s5, 8'); e.branch('s_cbranch_scc1', Lc1)
            I(f's_add_u32 s46, s46, {32*32768}'); I('s_addc_u32 s47, s47, 0')
            for q in range(4): I(f'global_store_dwordx4 v6, v[240:243], s[46:47] offset:{q*1024} {POL[cfg.get("clrpol", 0)]}')
            e.label(Lc1)
            self.base(46, P_WS, [(96, 16)], WS_FL2)
            I('v_and_b32 v8, 7, v1'); I('v_lshlrev_b32 v8, 11, v8'); I('v_lshrrev_b32 v9, 3, v1'); I('v_lshl_add_u32 v8, v9, 9, v8')
            I('s_mov_b32 s7, 0xff'); I('s_cmp_lt_u32 s5, 8'); I('s_cselect_b32 s7, s7, 0xffff')
            I('s_memrealtime s[100:101]')
            e.wait_vm(); e.barrier()
            I('s_cmp_lg_u32 s3, 7'); e.branch('s_cbranch_scc1', Lc)
            I('s_and_b32 s100, s100, 0xfffffffe'); I('v_mov_b32 v9, s100')
            I('s_mov_b32 exec_lo, s7'); I('s_mov_b32 exec_hi, 0'); I('global_store_dword v8, v9, s[46:47] sc1'); self.exec_all()
            e.label(Lc); e.vm = ['x']
            if cfg.get('fine'): self.stamp(11)
        I('s_cmp_lt_u32 s5, 8'); e.branch('s_cbranch_scc1', 'L_ROLE_F')
        I('s_lshl_b32 s43, s4, 2'); I('s_add_u32 s43, s43, s41')
        I('s_cmp_lt_u32 s5, 12'); e.branch('s_cbranch_scc1', 'L_LOAD_H')
        I('s_cmp_ge_u32 s43, 28'); e.branch('s_cbranch_scc1', 'L_FIN')
        if 'g_pre3' in cfg:
            Lg3 = self.lab('g3')
            self.sleep(cfg['g_pre3'])
            I('s_cmp_eq_u32 s41, 3'); I(f's_cbranch_scc1 {Lg3}')
            self.sleep(cfg['g_pre'] - cfg['g_pre3'])
            e.label(Lg3)
        else: self.sleep(cfg.get('g_pre', 0))
        if cfg.get('g2', 0) == 3:
            self.stage_g4()
            e.label('L_LOAD_H'); e.vm = []; e.lg = ['SMEM']
            self.stage_fin()
            e.label('L_ROLE_F'); e.vm = []; e.lg = ['SMEM']
            self.stage_f()
            return
        for (P, Lb) in ((P_WG, L_WG), (P_WU, L_WU)):
            self.base(44, P, [(3, 64*3584), (43, 128)])
            self.dma_128(44, 3584, 8, [(3, 8192)], Lb, 'gu')
            if cfg.get('gseq', 1) and P == P_WG: I('s_waitcnt vmcnt(2)')
        self.base(44, P_WD, [(43, 64*1024), (3, 128)])
        I('v_lshlrev_b32 v12, 1, v3'); I('v_and_b32 v9, 7, v1'); I('v_xor_b32 v12, v12, v9'); I('v_lshlrev_b32 v12, 4, v12'); I('v_lshrrev_b32 v9, 3, v1'); I('v_lshl_add_u32 v12, v9, 10, v12')
        for q in range(1 if cfg.get('noload') else 8):
            I(f'global_load_dwordx4 {vr(160+4*q,4)}, v12, s[44:45] nt')
            if q < 7: I('v_add_u32 v12, 8192, v12')
        GS = cfg.get('gside', 0)
        if cfg.get('g2', 0) == 2:
            I('s_waitcnt vmcnt(8)'); self.x1_side(True)
            I('v_lshrrev_b32 v9, 2, v2'); I('v_lshl_add_u32 v9, v3, 2, v9')
            I('v_bfe_u32 v10, v9, 1, 2'); I('v_lshlrev_b32 v10, 5, v10'); I('v_lshl_add_u32 v10, v9, 7, v10')
            I('v_and_b32 v9, 1, v2'); I('v_lshl_add_u32 v10, v9, 3, v10'); I('v_bfe_u32 v9, v2, 1, 1'); I('v_lshl_add_u32 v10, v9, 16, v10')
            I('s_lshl_b32 s6, s3, 13'); I('v_add_u32 v10, s6, v10')
            for t in range(8):
                I(f'v_xor_b32 v{8+(t&1)}, {t<<4}, v10')
                for s2 in range(2):
                    I(f'ds_read_b64_tr_b16 {vr(96+8*t+4*s2,2)}, v{8+(t&1)} offset:{s2*4096}'); I(f'ds_read_b64_tr_b16 {vr(98+8*t+4*s2,2)}, v{8+(t&1)} offset:{s2*4096+2048}')
            e.wait_lg()
        elif GS:
            I('s_waitcnt vmcnt(8)'); self.x1_side(True); I('s_barrier')
        else:
            e.wait_vm(); e.barrier()
        if cfg.get('g2', 0) != 2:
            I('v_lshrrev_b32 v9, 2, v2'); I('v_lshl_add_u32 v9, v3, 2, v9')
            I('v_bfe_u32 v10, v9, 1, 2'); I('v_lshlrev_b32 v10, 1, v10'); I('v_xor_b32 v10, s3, v10'); I('v_lshlrev_b32 v10, 4, v10'); I('v_lshl_add_u32 v10, v9, 7, v10')
            I('v_and_b32 v9, 1, v2'); I('v_lshl_add_u32 v10, v9, 3, v10'); I('v_bfe_u32 v9, v2, 1, 1'); I('v_lshl_add_u32 v10, v9, 16, v10')
            for s in range(16):
                I(f'ds_read_b64_tr_b16 {vr(96+4*s,2)}, v10 offset:{s*4096}'); I(f'ds_read_b64_tr_b16 {vr(98+4*s,2)}, v10 offset:{s*4096+2048}')
            e.barrier()
        if GS: I('s_waitcnt vmcnt(7)')
        I('s_lshl_b32 s6, s3, 13'); I('v_add_u32 v13, s6, v6')
        for q in range(8): I(f'ds_write_b128 v13, {vr(160+4*q,4)} offset:{q*1024}')
        self.tr_base_128(12, [(3, 8192)], 0)
        e.wait_lg()
        for t in range(4):
            I(f'v_xor_b32 v13, {t<<5}, v12')
            for s2 in range(2):
                I(f'ds_read_b64_tr_b16 {vr(32+8*t+4*s2,2)}, v13 offset:{s2*4096}'); I(f'ds_read_b64_tr_b16 {vr(34+8*t+4*s2,2)}, v13 offset:{s2*4096+2048}')
        self.stage_x1()
        e.label('L_LOAD_H'); e.vm = []; e.lg = ['SMEM']
        self.stage_fin()
        e.label('L_ROLE_F'); e.vm = []; e.lg = ['SMEM']
        self.stage_f()

    def stage_f(self):
        e, I, cfg = self.e, self.I, self.cfg
        if 'f_pre3' in cfg:
            Lf3 = self.lab('f3')
            self.sleep(cfg['f_pre3'])
            I('s_cmp_eq_u32 s5, 3'); I(f's_cbranch_scc1 {Lf3}')
            self.sleep(cfg['f_pre'] - cfg['f_pre3'])
            e.label(Lf3)
        else: self.sleep(cfg.get('f_pre', 0))
        I('s_lshl_b32 s6, s4, 3'); I('s_add_u32 s6, s6, s5'); I('s_lshr_b32 s56, s6, 5'); I('s_and_b32 s57, s6, 31'); I('s_add_u32 s57, s57, 16')
        def wo_dma():
            self.base(44, P_WO, [(4, 512*1024), (3, 64*1024), (5, 128)])
            self.dma_128(44, 1024, 8, [(3, 8192)], L_WO, 'wo')
        self.mod_tile(False, 64*K, 96*K, 98*K, mid2=wo_dma if cfg.get('wo_early', 0) else None)
        if not cfg.get('wo_early', 0): wo_dma()
        self.tr_base_128(12, [(3, 8192)], L_WO)
        e.wait_vm()
        for t in range(4):
            I(f'v_xor_b32 v13, {t<<5}, v12')
            for s in range(2):
                I(f'ds_read_b64_tr_b16 {vr(96+8*t+4*s,2)}, v13 offset:{s*4096}'); I(f'ds_read_b64_tr_b16 {vr(98+8*t+4*s,2)}, v13 offset:{s*4096+2048}')
        self.stamp(7)
        if cfg.get('h4dma', 0):
            I('v_lshrrev_b32 v10, 3, v1'); I('v_xor_b32 v9, v10, v1'); I('v_and_b32 v9, 7, v9'); I('v_lshlrev_b32 v9, 4, v9'); I('v_lshl_add_u32 v9, v10, 8, v9')
            I('v_and_b32 v10, 7, v2'); I('v_xor_b32 v16, v10, v3'); I('v_lshlrev_b32 v16, 4, v16'); I('v_lshl_add_u32 v16, v10, 7, v16')
            self.sval('s6', [(3, 1024)], 112*K); I('s_mov_b32 m0, s6'); I('v_add_u32 v16, s6, v16'); I('v_xor_b32 v17, 64, v16')
        else:
            I('v_and_b32 v9, 7, v2'); I('v_lshlrev_b32 v9, 8, v9'); I('v_lshl_add_u32 v9, v3, 4, v9')
        self.base(44, P_WS, [(4, 8192), (61, 2048), (62, 128)], WS_H4)
        I('v_and_b32 v10, 1, v2'); I('v_lshl_add_u32 v10, v3, 1, v10'); I('v_lshlrev_b32 v10, 9, v10')
        if cfg.get('cmp', 0) & 2:
            I('v_bfe_u32 v11, v2, 1, 2'); I('v_lshl_add_u32 v10, v11, 4, v10'); I('v_lshrrev_b32 v11, 3, v2'); I('v_lshl_add_u32 v10, v11, 13, v10')
        else:
            I('v_lshrrev_b32 v11, 1, v2'); I('v_lshl_add_u32 v10, v11, 4, v10')
        self.sval('s6', [(3, 64)], L_FRED); I('v_add_u32 v10, s6, v10')
        I('v_lshlrev_b32 v11, 9, v3'); I('v_lshl_add_u32 v11, v2, 4, v11'); self.sval('s6', [(3, 2048)], L_FRED); I('v_add_u32 v11, s6, v11')
        G2 = cfg.get('g2', 0)
        if G2:
            I('v_and_b32 v12, 1, v3'); I('v_lshlrev_b32 v12, 7, v12'); I('v_lshrrev_b32 v13, 1, v3'); I('v_lshl_add_u32 v12, v13, 3, v12'); self.sval('s6', [(3, 16)], L_OUT); I('v_add_u32 v12, s6, v12')
            I('v_lshrrev_b32 v13, 3, v2'); I('v_lshlrev_b32 v13, 10, v13'); I('v_and_b32 v14, 7, v2'); I('v_lshl_add_u32 v13, v14, 4, v13')
            self.base(46, P_WS, [(4, 2048), (5, 128)], WS_H5)
        elif cfg.get('publds', 1):
            I('v_and_b32 v12, 1, v3'); I('v_lshlrev_b32 v12, 8, v12'); I('v_lshrrev_b32 v13, 1, v3'); I('v_lshl_add_u32 v12, v13, 4, v12'); self.sval('s6', [(3, 32)], L_OUT); I('v_add_u32 v12, s6, v12')
            I('v_lshlrev_b32 v13, 11, v3'); I('v_lshl_add_u32 v13, v2, 4, v13')
            self.base(46, P_WS, [(4, 4096), (5, 256)], WS_H5)
        else:
            I('v_and_b32 v12, 1, v3'); I('v_lshlrev_b32 v12, 11, v12'); I('v_lshrrev_b32 v13, 1, v3'); I('v_lshl_add_u32 v12, v13, 4, v12')
            self.base(46, P_WS, [(4, 4096), (5, 256), (3, 32)], WS_H5)
        I('s_mov_b32 s56, 0x00ff00ff'); I('s_mov_b32 s57, 0x00ff00ff'); I('s_mov_b32 s58, 0x00010001'); I('s_mov_b32 s59, 0x00010001')
        I('s_lshl_b32 s97, s4, 3'); I('s_add_u32 s97, s97, s5')
        HS = cfg.get('hsplit', 0) and not cfg.get('hu5_early', 0)
        if HS: self.hu_prep(WS_HU5, 97, 38)
        if cfg.get('hu4m', 0) == 2: self.hu_wait_w(WS_HU4, [(4, 128)], 16, cfg['t_h4'])
        elif cfg.get('nohu4', 0): pass
        elif cfg.get('hu4m', 0): self.hu_wait_multi(WS_HU4, [(4, 128)], 15, 10, cfg['t_h4'], fwd=(WS_HU5, 97) if cfg.get('hu5_early', 0) == 2 else None)
        else: self.hu_wait(WS_HU4, 96, cfg['t_h4'])
        self.stamp(8)
        if cfg.get('hu5_early', 0) == 1: self.hu_set(WS_HU5, 97, wave=cfg.get('hu5_wave', 0))
        if cfg.get('h4dma', 0):
            Lp, Dp = self.lab('h4'), self.lab('h4d')
            I(f's_mov_b32 s54, {SPIN}')
            e.label(Lp)
            I('global_load_lds_dwordx4 v9, s[44:45] sc1'); e.wait_vm()
            I('ds_read_b128 v[64:67], v16'); I('ds_read_b128 v[68:71], v17'); e.wait_lg()
            r_ = self.maxtree(range(64, 72), 8)
            I(f'v_cmp_eq_u32 vcc, -1, v{r_}'); I(f's_cbranch_vccz {Dp}')
            I(f's_sleep {cfg.get("h4_loop", 4)}'); I('s_sub_u32 s54, s54, 1'); I(f's_cbranch_scc0 {Lp}')
            e.label(Dp, flush=False)
        else:
            self.poll('h4', ['global_load_dwordx4 v[64:67], v9, s[44:45] sc1', 'global_load_dwordx4 v[68:71], v9, s[44:45] offset:64 sc1'], range(64, 72), 0, loop_sleep=cfg.get('h4_loop', 4))
        if cfg.get('hu5m', 0) == 3: self.hu_set_w(WS_HU5, 97)
        elif HS: self.hu_clock()
        elif not cfg.get('hu5_early', 0): self.hu_set(WS_HU5, 97)
        self.stamp(9)
        for t in range(4): I(f'v_mfma_f32_16x16x32_bf16 {vr(72+4*t,4)}, {vr(96+8*t,4)}, v[64:67], 0')
        for t in range(4): I(f'v_mfma_f32_16x16x32_bf16 {vr(72+4*t,4)}, {vr(100+8*t,4)}, v[68:71], {vr(72+4*t,4)}')
        if HS: n0 = e.n; self.hu_store(38); e.n = n0 + 2
        if cfg.get('cmp', 0) & 2:
            I('s_not_b64 exec, s[56:57]')
            for k in range(4): I(f'v_mov_b64 {vr(72+2*k,2)}, {vr(80+2*k,2)}')
            self.exec_all()
            for t in range(2): I(f'ds_write_b128 v10, {vr(72+4*t,4)} offset:{t*4096}')
        else:
            self.exec_mask(56)
            for t in range(4): I(f'ds_write_b128 v10, {vr(72+4*t,4)} offset:{t*4096}')
            self.exec_all()
        e.barrier()
        I('ds_read_b128 v[64:67], v11'); I('ds_read_b128 v[68:71], v11 offset:256'); e.wait_lg()
        for k in range(4): I(f'v_add_f32 v{64+k}, v{64+k}, v{68+k}')
        self.ror_reduce(range(64, 68), [8, 4, 2, 1])
        if G2:
            I('v_cvt_pk_bf16_f32 v64, v64, v65'); I('v_cvt_pk_bf16_f32 v65, v66, v67')
            self.exec_mask(58); I('ds_write_b64 v12, v[64:65]'); self.exec_all()
            self.pub_lds(L_OUT, 13, 46, rd=68, lanes=16)
        elif cfg.get('publds', 1):
            self.exec_mask(58); I('ds_write_b128 v12, v[64:67]'); self.exec_all()
            self.pub_lds(L_OUT, 13, 46, rd=68)
        else:
            self.exec_mask(58); I('global_store_dwordx4 v12, v[64:67], s[46:47] sc1'); self.exec_all()
        self.stamp(10)
        e.branch('s_branch', 'L_FIN')

    def mod_tile(self, p1, lmt, lsc, lred, extra=None, early=False, after=None, mid=None, mid2=None):
        e, I, cfg = self.e, self.I, self.cfg
        ws = WS_MODP if p1 else WS_MODQ
        I('v_and_b32 v8, 1, v3'); I('v_lshlrev_b32 v8, 10, v8'); I('v_lshl_add_u32 v8, v2, 2, v8'); self.sval('s6', [(56, 512), (3, 64)]); I('v_add_u32 v8, s6, v8')
        I(f'global_load_dword v24, v8, {sp(P_C)} {self.spol}', tag='c')
        NT = 2 if p1 else 4
        if p1:
            self.base(44, P_WMOD, [(56, 256*6144), (3, 32*6144), (57, 64)])
            I('v_lshrrev_b32 v11, 2, v1'); I('v_mul_u32_u24 v11, 6144, v11'); I('v_and_b32 v9, 3, v1'); I('v_lshl_add_u32 v11, v9, 4, v11')
            self.sval('s53', [(3, 2048)], lmt)
            I('s_mov_b32 m0, s53'); I(f'v_add_u32 v12, {16*6144}, v11'); I('global_load_lds_dwordx4 v11, s[44:45] nt', tag='wmod')
            I('s_add_u32 m0, s53, 1024'); I('global_load_lds_dwordx4 v12, s[44:45] nt', tag='wmod')
        else:
            self.base(44, P_WMOD, [(56, 256*6144), (3, 32*6144), (57, 128)])
            self.dma_128(44, 6144, 4, [(3, 4096)], lmt, 'wmod')
        def wait2(tag):
            if not mid: e.wait_vm(tag); return
            idxs = [i for i, t in enumerate(e.vm) if t == tag]; n = len(e.vm) - 1 - idxs[-1]
            Lw = self.lab('w2')
            I(f's_waitcnt vmcnt({n+4})'); I('s_cmp_ge_u32 s3, 2'); I(f's_cbranch_scc1 {Lw}'); e.wait_vm(tag); e.label(Lw, flush=False)
        if mid: mid()
        if mid2: mid2()
        if early: e.cont()
        if p1 and cfg.get('p1st'): self.stamp(14)
        wait2('c')
        if p1 and cfg.get('p1st'): self.stamp(11)
        if extra: extra()
        I('v_lshlrev_b32 v28, 16, v24'); I('v_and_b32 v29, 0xffff0000, v24')
        I(f's_mov_b32 s6, {f32(-math.log2(math.e))}')
        for r in (28, 29): I(f'v_mul_f32 v{r+2}, s6, v{r}')
        for r in (30, 31): I(f'v_exp_f32 v{r}, v{r}')
        for r in (30, 31): I(f'v_add_f32 v{r}, 1.0, v{r}')
        for r in (30, 31): I(f'v_rcp_f32 v{r}, v{r}')
        for r in (28, 29): I(f'v_mul_f32 v{r}, v{r}, v{r+2}')
        I('v_cvt_pk_bf16_f32 v28, v28, v29')
        self.sval('s6', [(3, 256)], lsc); I('v_lshlrev_b32 v8, 2, v1'); I('v_add_u32 v8, s6, v8'); I('ds_write_b32 v8, v28')
        I('v_and_b32 v9, 1, v2'); I('v_lshlrev_b32 v9, 6, v9'); I('v_lshl_add_u32 v9, v3, 3, v9'); I('v_add_u32 v9, s6, v9')
        e.wait_lg()
        I('ds_read2_b64 v[48:51], v9 offset0:0 offset1:4')
        if p1:
            I('v_lshrrev_b32 v9, 2, v1'); I('v_lshlrev_b32 v12, 6, v9'); I('v_and_b32 v9, 3, v2'); I('v_lshl_add_u32 v12, v9, 3, v12'); I('v_add_u32 v12, s53, v12')
        else: self.tr_base_128(12, [(3, 4096)], lmt)
        I('v_lshlrev_b32 v14, 6, v2'); I('v_lshl_add_u32 v14, v3, 4, v14'); self.sval('s6', [(3, 512)], lred); I('v_add_u32 v14, s6, v14')
        I('v_lshrrev_b32 v15, 1, v2'); I('v_lshlrev_b32 v15, 9, v15'); I('v_and_b32 v10, 1, v2'); I('v_lshl_add_u32 v15, v10, 6, v15'); I('v_lshl_add_u32 v15, v3, 4, v15')
        self.sval('s6', [(55, 128)], lred); I('v_add_u32 v15, s6, v15')
        I('s_mov_b32 s6, 12288'); I('v_mul_lo_u32 v26, v2, s6'); I('v_lshl_add_u32 v26, v3, 4, v26')
        self.base(46, P_WS, [(56, 24576), (57, 128 if p1 else 256), (55, 64)], ws)
        if p1:
            self.sleep(cfg.get('ep_pre', 0))
            I('v_mov_b32 v27, 0')
            if mid:
                Lw = self.lab('w3')
                I('s_cmp_lt_u32 s3, 2'); I(f's_cbranch_scc1 {Lw}'); I('s_waitcnt vmcnt(4)'); I(f's_branch {Lw}x')
                e.label(Lw, flush=False)
            I(f'global_load_dwordx2 v[90:91], v27, {sp(P_DBG)} sc1', tag='ep')
        e.wait_vm('wmod')
        if mid: e.label(Lw + 'x', flush=False)
        if p1:
            self.stamp(13)
        nafter = after() if after else 0
        for t in range(NT):
            I(f'v_xor_b32 v13, {t<<5}, v12')
            I(f'ds_read_b64_tr_b16 {vr(56+4*t,2)}, v13', tag=f'mt{t}'); I(f'ds_read_b64_tr_b16 {vr(58+4*t,2)}, v13 offset:{1024 if p1 else 2048}', tag=f'mt{t}')
        for t in range(NT):
            e.wait_lg(f'mt{t}')
            I(f'v_mfma_f32_16x16x32_bf16 {vr(72+4*t,4)}, {vr(56+4*t,4)}, v[48:51], 0')
        self.exec_mask(48)
        for t in range(NT): I(f'ds_write_b128 v14, {vr(72+4*t,4)} offset:{t*128}')
        self.exec_all()
        e.barrier()
        L = self.lab('mw')
        I(f's_cmp_ge_u32 s3, {NT}'); e.branch('s_cbranch_scc1', L)
        I(f'ds_read_b128 v[72:75], v15'); e.wait_lg()
        self.ror_reduce(range(72, 76), [8, 4, 2])
        saved = list(e.vm)
        if p1:
            I('v_cvt_pk_bf16_f32 v88, v72, v73'); I('v_cvt_pk_bf16_f32 v89, v74, v75')
            Le, De = self.lab('epl'), self.lab('epd')
            I(f's_mov_b32 s54, {SPIN}'); I(f's_waitcnt vmcnt({nafter})')
            e.label(Le, flush=False)
            I('v_cmp_eq_u32 vcc, 0, v90'); I(f's_cbranch_vccz {De}'); I('s_sleep 2')
            I(f'global_load_dwordx2 v[90:91], v27, {sp(P_DBG)} sc1'); I('s_waitcnt vmcnt(0)'); I('s_sub_u32 s54, s54, 1'); I(f's_cbranch_scc0 {Le}')
            e.label(De, flush=False)
            self.exec_mask(48); I('global_store_dwordx4 v26, v[88:91], s[46:47] sc1'); self.exec_all()
        else:
            self.exec_mask(48); I('global_store_dwordx4 v26, v[72:75], s[46:47] sc1'); self.exec_all()
        e.label(L); e.vm = saved

    def p1_tile(self, lmt, lred, after=None, mid=None):
        e, I, cfg = self.e, self.I, self.cfg
        I('v_and_b32 v8, 1, v2'); I('v_lshlrev_b32 v8, 10, v8'); I('v_lshl_add_u32 v8, v3, 3, v8'); self.sval('s6', [(56, 256), (3, 32)]); I('v_add_u32 v8, s6, v8')
        if cfg.get('lazy', 0):
            def btw():
                self.kwait = True
                self.base(44, P_WMOD, [(56, 128*6144), (3, 16*6144), (57, 128)])
                I(f'global_load_dwordx2 v[24:25], v8, {sp(P_C)}', tag='c')
            self.dma_128(44, 6144, 2, [(3, 2048)], lmt, 'wmod', between=btw)
            self.ckv_base()
        else:
            I(f'global_load_dwordx2 v[24:25], v8, {sp(P_C)}', tag='c')
            self.base(44, P_WMOD, [(56, 128*6144), (3, 16*6144), (57, 128)])
            if cfg.get('p1bar', 0): I('s_barrier')
            self.dma_128(44, 6144, 2, [(3, 2048)], lmt, 'wmod')
        if mid: mid()
        e.cont()
        if cfg.get('pt', 0) & 4:
            Lp = self.lab('pt'); saved = list(e.vm)
            I('s_cmp_lg_u32 s3, 7'); e.branch('s_cbranch_scc1', Lp, flush=False)
            I('v_mov_b32 v9, 0xf000'); I(f'global_store_dword v9, v9, {sp(P_WS)}')
            e.label(Lp, flush=False); e.vm = saved
        if cfg.get('p1st'): self.stamp(14)
        self.tr_base_128(12, [(3, 2048)], lmt)
        I('v_lshlrev_b32 v14, 6, v2'); I('v_lshl_add_u32 v14, v3, 4, v14'); self.sval('s6', [(3, 512)], lred); I('v_add_u32 v14, s6, v14')
        I('v_lshrrev_b32 v15, 1, v2'); I('v_lshlrev_b32 v15, 9, v15'); I('v_and_b32 v10, 1, v2'); I('v_lshl_add_u32 v15, v10, 6, v15'); I('v_lshl_add_u32 v15, v3, 4, v15')
        FULL = cfg.get('p1full', 0)
        self.sval('s6', [(55, 256 if FULL else 128)], lred); I('v_add_u32 v15, s6, v15')
        if FULL:
            I('v_lshlrev_b32 v26, 12, v10'); I('v_bfe_u32 v10, v2, 1, 1'); I('v_lshl_add_u32 v26, v10, 6, v26'); I('v_lshl_add_u32 v26, v3, 4, v26')
            I('v_cmp_eq_u32 s[58:59], 1, v10')
            self.base(46, P_WS, [(56, 8192), (57, 256), (55, 128)], WS_MODP)
        else:
            I('v_lshlrev_b32 v26, 12, v10'); I('v_lshl_add_u32 v26, v3, 4, v26')
            self.base(46, P_WS, [(56, 8192), (57, 256), (55, 64)], WS_MODP)
        I('v_mov_b32 v27, 0')
        e.wait_vm('c')
        if cfg.get('p1st'): self.stamp(11)
        I('v_lshlrev_b32 v28, 16, v24'); I('v_and_b32 v29, 0xffff0000, v24'); I('v_lshlrev_b32 v30, 16, v25'); I('v_and_b32 v31, 0xffff0000, v25')
        I(f's_mov_b32 s6, {f32(-math.log2(math.e))}')
        for r in range(4): I(f'v_mul_f32 v{48+r}, s6, v{28+r}')
        for r in range(4): I(f'v_exp_f32 v{48+r}, v{48+r}')
        for r in range(4): I(f'v_add_f32 v{48+r}, 1.0, v{48+r}')
        for r in range(4): I(f'v_rcp_f32 v{48+r}, v{48+r}')
        for r in range(4): I(f'v_mul_f32 v{28+r}, v{28+r}, v{48+r}')
        I('v_cvt_pk_bf16_f32 v48, v28, v29'); I('v_cvt_pk_bf16_f32 v49, v30, v31')
        self.sleep(cfg.get('ep_pre', 0))
        SEP = cfg.get('sep', 0)
        if SEP == 0:
            if cfg.get('flag1', 0):
                Lx = self.lab('epx')
                I(f's_cmp_lt_u32 s3, {2 if FULL else 4}'); I(f's_cbranch_scc1 {Lx}'); I('s_waitcnt vmcnt(0)'); I(f's_branch {Lx}y'); e.label(Lx, flush=False)
            I(f'global_load_dwordx2 v[90:91], v27, {sp(P_DBG)} sc1', tag='ep')
        if SEP == 1: I(f's_load_dwordx2 s[52:53], {sp(P_DBG)}, 0'); e.lg.append('SMEM')
        e.wait_vm('wmod')
        if SEP == 0 and cfg.get('flag1', 0): e.label(Lx + 'y', flush=False)
        if SEP == 2: I(f's_load_dwordx2 s[52:53], {sp(P_DBG)}, 0'); e.lg.append('SMEM')
        self.stamp(13)
        nafter = after() if after else 0
        for t in range(4):
            I(f'v_xor_b32 v{8+t}, {t<<5}, v12')
            I(f'ds_read_b64_tr_b16 {vr(56+2*t,2)}, v{8+t}', tag=f'mt{t}')
        for t in range(4):
            e.wait_lg(f'mt{t}')
            I(f'v_mfma_f32_16x16x16_bf16 {vr(72+4*t,4)}, {vr(56+2*t,2)}, v[48:49], 0')
        if cfg.get('cmp', 0) & 4:
            for t in range(1, 4):
                I(f's_lshl_b64 exec, s[48:49], {2*t}'); I(f'v_mov_b64 v[72:73], {vr(72+4*t,2)}'); I(f'v_mov_b64 v[74:75], {vr(74+4*t,2)}')
            I('s_mov_b32 exec_lo, 0x00ff00ff'); I('s_mov_b32 exec_hi, 0x00ff00ff'); I('ds_write_b128 v14, v[72:75]')
        else:
            self.exec_mask(48)
            for t in range(4): I(f'ds_write_b128 v14, {vr(72+4*t,4)} offset:{t*128}')
        self.exec_all()
        e.barrier()
        L = self.lab('mw')
        I(f's_cmp_ge_u32 s3, {2 if FULL else 4}'); e.branch('s_cbranch_scc1', L)
        I(f'ds_read_b128 v[72:75], v15')
        if FULL: I(f'ds_read_b128 v[76:79], v15 offset:128')
        e.wait_lg()
        self.ror_reduce(range(72, 80 if FULL else 76), [8, 4, 2])
        saved = list(e.vm)
        I('v_cvt_pk_bf16_f32 v88, v72, v73'); I('v_cvt_pk_bf16_f32 v89, v74, v75')
        if FULL:
            I('v_cvt_pk_bf16_f32 v76, v76, v77'); I('v_cvt_pk_bf16_f32 v77, v78, v79')
            I('v_cndmask_b32 v88, v88, v76, s[58:59]'); I('v_cndmask_b32 v89, v89, v77, s[58:59]')
        Le, De = self.lab('epl'), self.lab('epd')
        I(f's_mov_b32 s54, {SPIN}')
        if SEP: I('v_mov_b32 v90, s52'); I('v_mov_b32 v91, s53')
        else: I(f's_waitcnt vmcnt({nafter})')
        e.label(Le, flush=False)
        I('v_cmp_eq_u32 vcc, 0, v90'); I(f's_cbranch_vccz {De}'); I('s_sleep 2')
        I(f'global_load_dwordx2 v[90:91], v27, {sp(P_DBG)} sc1'); I('s_waitcnt vmcnt(0)'); I('s_sub_u32 s54, s54, 1'); I(f's_cbranch_scc0 {Le}')
        e.label(De, flush=False)
        if FULL: I('s_mov_b32 exec_lo, 0x000f000f'); I('s_mov_b32 exec_hi, 0x000f000f')
        else: self.exec_mask(48)
        I('global_store_dwordx4 v26, v[88:91], s[46:47] sc1'); self.exec_all()
        e.label(L); e.vm = saved

    def hu_wait(self, ws, sidx, dticks):
        e, I = self.e, self.I
        L, LW = self.lab('hus'), self.lab('huw')
        I('s_cmp_lg_u32 s3, 0'); e.branch('s_cbranch_scc1', L)
        self.base(98, P_WS, [(sidx, 128)], ws)
        I('v_mov_b32 v15, 0')
        self.poll('hu', ['global_load_dword v14, v15, s[98:99] sc1'], [14], 0, loop_sleep=self.cfg.get('hu_loop', 1))
        I('v_readfirstlane_b32 s7, v14')
        e.label(LW)
        I('s_memrealtime s[100:101]'); I('s_waitcnt lgkmcnt(0)')
        I('s_sub_u32 s6, s100, s7'); I(f's_cmp_lt_u32 s6, {dticks}'); I(f's_cbranch_scc1 {LW}')
        e.label(L)
        e.barrier()
    def hu_pre(self, ws, terms, mask, sh):
        e, I = self.e, self.I
        L = self.lab('hpr'); saved = list(e.vm)
        I('s_cmp_lg_u32 s3, 0'); e.branch('s_cbranch_scc1', L, flush=False)
        self.base(98, P_WS, terms, ws)
        I(f'v_and_b32 v15, {mask}, v1'); I(f'v_lshlrev_b32 v15, {sh}, v15'); I('global_load_dword v14, v15, s[98:99] sc1')
        e.label(L, flush=False); e.vm = saved
    def hu_wait_multi(self, ws, terms, mask, sh, dticks, pre=0, fwd=None, early=False):
        e, I = self.e, self.I
        L, LW = self.lab('hms'), self.lab('hmw')
        I('s_cmp_lg_u32 s3, 0'); e.branch('s_cbranch_scc1', L)
        if early:
            Dq = self.lab('hok')
            I('s_waitcnt vmcnt(0)'); I('v_cmp_eq_u32 vcc, -1, v14'); I(f's_cbranch_vccz {Dq}')
        else:
            self.base(98, P_WS, terms, ws)
            I(f'v_and_b32 v15, {mask}, v1'); I(f'v_lshlrev_b32 v15, {sh}, v15')
        self.poll('hm', ['global_load_dword v14, v15, s[98:99] sc1'], [14], pre, loop_sleep=self.cfg.get('hm_loop', 2))
        if early: e.label(Dq, flush=False)
        if fwd:
            I('s_memrealtime s[100:101]'); self.base(98, P_WS, [(fwd[1], 128)], fwd[0]); I('s_waitcnt lgkmcnt(0)')
            I('s_add_u32 s100, s100, 64'); I('v_sub_u32 v15, s100, v14')
            for sft in (8, 4, 2, 1): I(f'v_min_u32_dpp v15, v15, v15 row_ror:{sft} {DPPM}')
            I('v_sub_u32 v250, s100, v15'); I('v_mov_b32 v251, 0'); I('s_mov_b64 exec, 1'); I('global_store_dword v251, v250, s[98:99] sc1'); self.exec_all()
        I(f'v_mov_b32 v8, {dticks}')
        e.label(LW)
        I('s_memrealtime s[100:101]'); I('s_waitcnt lgkmcnt(0)')
        I('v_sub_u32 v15, s100, v14'); I('v_cmp_lt_u32 vcc, v15, v8'); I(f's_cbranch_vccnz {LW}')
        e.label(L); e.vm = []
        e.barrier()
    def hu_set_w(self, ws, sidx):
        e, I = self.e, self.I
        I('s_memrealtime s[100:101]')
        self.base(98, P_WS, [(sidx, 128), (3, 4)], ws)
        I('s_waitcnt lgkmcnt(0)'); I('s_and_b32 s100, s100, 0xfffffffe'); e.lg = []
        I('v_mov_b32 v251, 0'); I('v_mov_b32 v250, s100'); I('s_mov_b64 exec, 1'); I('global_store_dword v251, v250, s[98:99] sc1'); self.exec_all()
    def hu_wait_w(self, ws, terms, nl, dticks, pre=0):
        e, I = self.e, self.I
        L, LW = self.lab('hws'), self.lab('hww')
        I('s_cmp_lg_u32 s3, 0'); e.branch('s_cbranch_scc1', L)
        self.base(98, P_WS, terms, ws)
        if nl == 16:
            I('v_lshlrev_b32 v15, 10, v2'); I('v_lshl_add_u32 v15, v3, 3, v15')
            regs = [240, 241]
            self.poll('hw', ['global_load_dwordx2 v[240:241], v15, s[98:99] sc1'], regs, pre, loop_sleep=self.cfg.get('hm_loop', 2))
        else:
            I('v_lshlrev_b32 v15, 7, v1')
            regs = list(range(240, 248))
            self.poll('hw', ['global_load_dwordx4 v[240:243], v15, s[98:99] sc1', 'global_load_dwordx4 v[244:247], v15, s[98:99] offset:16 sc1'], regs, pre, loop_sleep=self.cfg.get('hm_loop', 2))
        I('s_memrealtime s[100:101]'); I('s_waitcnt lgkmcnt(0)')
        for r in regs: I(f'v_sub_u32 v{r}, s100, v{r}')
        if nl == 16: I('v_min_u32 v14, v240, v241')
        else:
            I('v_min3_u32 v14, v240, v241, v242'); I('v_min3_u32 v14, v14, v243, v244'); I('v_min3_u32 v14, v14, v245, v246'); I('v_min_u32 v14, v14, v247')
        I('v_sub_u32 v14, s100, v14')
        I(f'v_mov_b32 v8, {dticks}')
        e.label(LW)
        I('s_memrealtime s[100:101]'); I('s_waitcnt lgkmcnt(0)')
        I('v_sub_u32 v15, s100, v14'); I('v_cmp_lt_u32 vcc, v15, v8'); I(f's_cbranch_vccnz {LW}')
        e.label(L)
        e.barrier()
    def hu_prep(self, ws, sidx, sreg):
        self.base(sreg, P_WS, [(sidx, 128)], ws); self.I('v_mov_b32 v251, 0')
    def hu_clock(self):
        self.I('s_memrealtime s[100:101]'); self.e.lg.append('SMEM')
    def hu_store(self, sreg, wave=0, pol='sc1'):
        e, I = self.e, self.I
        L = self.lab('hst'); saved = list(e.vm)
        I(f's_cmp_lg_u32 s3, {wave}'); I(f's_cbranch_scc1 {L}')
        I('s_waitcnt lgkmcnt(0)'); I('s_and_b32 s100, s100, 0xfffffffe')
        I('v_mov_b32 v250, s100'); I('s_mov_b64 exec, 1'); I(f'global_store_dword v251, v250, s[{sreg}:{sreg+1}] {pol}'); self.exec_all()
        e.label(L, flush=False); e.vm = saved
    def hu_set(self, ws, sidx, wave=0):
        e, I = self.e, self.I
        L = self.lab('hset')
        saved = list(e.vm)
        I(f's_cmp_lg_u32 s3, {wave}'); e.branch('s_cbranch_scc1', L, flush=False)
        I('s_memrealtime s[100:101]')
        self.base(98, P_WS, [(sidx, 128)], ws)
        I('s_waitcnt lgkmcnt(0)'); I('s_and_b32 s100, s100, 0xfffffffe')
        I('v_mov_b32 v251, 0'); I('v_mov_b32 v250, s100'); I('s_mov_b64 exec, 1'); I('global_store_dword v251, v250, s[98:99] sc1'); self.exec_all()
        e.label(L, flush=False); e.vm = saved

    def pub_lds(self, lout, vaddr_g, sbase, rd=64, lanes=32, pol='sc1'):
        e, I = self.e, self.I
        L = self.lab('pub')
        e.barrier()
        I('s_cmp_lg_u32 s3, 0'); e.branch('s_cbranch_scc1', L, flush=False)
        I('s_mov_b32 exec_hi, 0' if lanes == 32 else 's_mov_b64 exec, 0xffff')
        I(f'ds_read_b128 {vr(rd,4)}, v253'); I('s_waitcnt lgkmcnt(0)')
        I(f'global_store_dwordx4 v{vaddr_g}, {vr(rd,4)}, s[{sbase}:{sbase+1}] {pol}'); self.exec_all()
        e.label(L, flush=False); e.lg = ['SMEM']
    def go_arrive(self, late=False):
        e, I = self.e, self.I
        L = self.lab('ga'); saved = list(e.vm)
        I('s_cmp_lg_u32 s3, 7'); e.branch('s_cbranch_scc1', L)
        I('s_cmp_eq_u64 s[38:39], 0'); e.branch('s_cbranch_scc1' if late else 's_cbranch_scc0', L)
        self.base(98, P_WS, [(4, 128)], WS_GOC)
        I('v_mov_b32 v248, 0'); I('v_mov_b32 v249, 1'); I('s_mov_b64 exec, 1')
        I(f'global_atomic_add v247, v248, v249, s[98:99] sc0 sc1'); self.exec_all()
        if late: I('s_waitcnt vmcnt(0)')
        e.label(L); e.vm = saved
    def go_finish(self):
        e, I = self.e, self.I
        L = self.lab('gf'); saved = list(e.vm)
        I('s_cmp_lg_u32 s3, 7'); e.branch('s_cbranch_scc1', L, flush=False)
        I('v_readfirstlane_b32 s6, v247'); I('s_memrealtime s[100:101]'); I('s_cmp_lg_u32 s6, 14'); I('s_waitcnt lgkmcnt(0)'); I(f's_cbranch_scc1 {L}')
        self.base(98, P_WS, [(4, 128)], WS_HU2)
        I('s_and_b32 s100, s100, 0xfffffffe')
        I('v_mov_b32 v251, 0'); I('v_mov_b32 v250, s100'); I('s_mov_b64 exec, 1'); I('global_store_dword v251, v250, s[98:99] sc1'); self.exec_all()
        e.label(L, flush=False); e.vm = saved
    def go_wait(self, dticks, mask=7, nobar=False):
        e, I = self.e, self.I
        L, LW = self.lab('gws'), self.lab('gww')
        I('s_cmp_lg_u32 s3, 0'); e.branch('s_cbranch_scc1', L)
        self.base(98, P_WS, [], WS_HU2)
        I(f'v_and_b32 v15, {mask}, v1'); I('v_lshlrev_b32 v15, 7, v15')
        GE = self.cfg.get('go_early', 0)
        if GE:
            Dg = self.lab('goe')
            I('v_cmp_eq_u32 vcc, -1, v14'); I(f's_cbranch_vccz {Dg}')
        self.poll('go', ['global_load_dword v14, v15, s[98:99] sc1'], [14], 0, loop_sleep=self.cfg.get('go_loop', 2))
        if GE: e.label(Dg, flush=False)
        I(f'v_mov_b32 v13, {dticks}')
        e.label(LW)
        I('s_memrealtime s[100:101]'); I('s_waitcnt lgkmcnt(0)')
        I('v_sub_u32 v15, s100, v14'); I('v_cmp_lt_u32 vcc, v15, v13'); I(f's_cbranch_vccnz {LW}')
        e.label(L)
        if not nobar: e.barrier()

    def x1_side(self, issue_only):
        e, I, cfg = self.e, self.I, self.cfg
        if cfg.get('g2', 0) >= 2:
            I('v_and_b32 v244, 7, v2'); I('v_lshlrev_b32 v244, 5, v244'); I('v_lshl_add_u32 v244, v3, 3, v244'); I('v_lshrrev_b32 v245, 1, v244')
            I('v_lshrrev_b32 v246, 3, v2'); I('v_lshl_add_u32 v245, v246, 10, v245'); I('v_mul_u32_u24 v246, 12288, v246'); I('v_add_u32 v244, v244, v246')
            self.base(56, P_X, [(3, 128)])
            I('global_load_dword v16, v245, s[56:57]')
            self.base(56, P_WS, [(3, 256)], WS_MODQ + 4096)
        else:
            if cfg.get('g2', 0): I('v_lshlrev_b32 v244, 5, v2'); I('v_lshl_add_u32 v244, v3, 3, v244')
            else: I('v_lshlrev_b32 v244, 4, v4'); I('v_lshl_add_u32 v244, v5, 3, v244')
            I('v_lshrrev_b32 v245, 1, v244')
            self.base(56, P_X, [(60, 1024), (55, 256)])
            I('global_load_dword v16, v245, s[56:57]')
            self.base(56, P_WS, [(60, 12288), (55, 512)], WS_MODQ + 4096)
        I('v_add_u32 v245, 4096, v244'); I('v_add_u32 v246, 24576, v244'); I('v_add_u32 v247, 28672, v244')
        self.mr_loads = ['global_load_dwordx2 v[18:19], v244, s[56:57] sc1', 'global_load_dwordx2 v[20:21], v244, s[56:57] offset:2048 sc1', 'global_load_dwordx2 v[22:23], v245, s[56:57] sc1',
                         'global_load_dwordx2 v[26:27], v246, s[56:57] sc1', 'global_load_dwordx2 v[28:29], v246, s[56:57] offset:2048 sc1', 'global_load_dwordx2 v[30:31], v247, s[56:57] sc1']
        if issue_only:
            for ld in self.mr_loads: I(ld)
        else:
            self.poll('mr', self.mr_loads, [18, 19, 20, 21, 22, 23, 26, 27, 28, 29, 30, 31], 0)
    def stage_x1(self):
        e, I, cfg = self.e, self.I, self.cfg
        self.stamp(7)
        if cfg.get('gside', 0):
            Dm = self.lab('mrok')
            e.wait_vm()
            r_ = self.maxtree([18, 19, 20, 21, 22, 23, 26, 27, 28, 29, 30, 31], 8)
            I(f'v_cmp_eq_u32 vcc, -1, v{r_}'); I(f's_cbranch_vccz {Dm}')
            self.poll('mr', self.mr_loads, [18, 19, 20, 21, 22, 23, 26, 27, 28, 29, 30, 31], 0)
            e.label(Dm, flush=False)
        else:
            self.x1_side(False)
        for k in range(6): I(f'v_add_f32 v{18+k}, v{18+k}, v{26+k}')
        I('v_add_f32 v22, 1.0, v22'); I('v_add_f32 v23, 1.0, v23')
        I('v_and_b32 v17, 0xffff0000, v16'); I('v_lshlrev_b32 v16, 16, v16')
        if cfg.get('g2', 0) == 2: return self.stage_g3()
        if cfg.get('g2', 0): return self.stage_g2()
        I('v_lshlrev_b32 v9, 14, v5'); I('v_lshl_add_u32 v9, v4, 4, v9')
        for k in range(1, 4): I(f'v_add_u32 v{9+k}, {k*4096}, v9')
        self.base(44, P_WS, [(60, 2048), (55, 512)], WS_H5)
        I('v_lshrrev_b32 v13, 3, v4'); I('v_lshlrev_b32 v13, 6, v13'); I('v_and_b32 v26, 3, v4'); I('v_lshl_add_u32 v13, v26, 4, v13')
        I('v_bfe_u32 v26, v4, 2, 1'); I('v_lshl_add_u32 v13, v26, 3, v13'); I('v_lshl_add_u32 v13, v5, 2, v13')
        self.sval('s6', [(3, 256), (60, 64)], L_H2V); I('v_add_u32 v13, s6, v13')
        I('v_lshlrev_b32 v26, 4, v4'); I('v_lshl_add_u32 v26, v5, 3, v26'); self.sval('s6', [(3, 512)], L_X1); I('v_add_u32 v26, s6, v26')
        I('v_and_b32 v27, 1, v2'); I('v_mul_u32_u24 v27, 1088, v27'); I('v_lshl_add_u32 v27, v3, 4, v27'); I(f'v_add_u32 v27, {L_H2V}, v27')
        self.sval('s6', [(3, 8)], L_XST); I('v_mov_b32 v24, s6'); self.sval('s6', [(60, 32)], L_XST); I('v_mov_b32 v25, s6')
        I('v_mul_u32_u24 v28, 192, v2'); I('v_lshl_add_u32 v28, v3, 4, v28')
        I('s_bfe_u32 s58, s3, 0x10001')
        self.sval('s6', [(60, 64), (62, 32), (58, 8)], L_GRED); I('v_add_u32 v28, s6, v28')
        I('v_and_b32 v29, 1, v2'); I('v_mul_u32_u24 v29, 192, v29'); I('v_lshl_add_u32 v29, v3, 4, v29'); I(f'v_add_u32 v29, {L_GRED}, v29')
        if cfg.get('publds', 1):
            I('v_lshlrev_b32 v30, 8, v2'); I('v_lshl_add_u32 v30, v3, 4, v30'); self.sval('s6', [(3, 512)], L_X1); I('v_add_u32 v30, s6, v30'); I('v_add_u32 v31, s6, v6')
            I('v_lshlrev_b32 v26, 11, v3'); I('v_lshl_add_u32 v26, v2, 4, v26')
        else:
            I('v_lshlrev_b32 v30, 11, v2'); I('v_lshl_add_u32 v30, v3, 4, v30')
        self.base(46, P_WS, [(43, 4096), (3, 256)], WS_H7)
        I('s_lshl_b32 s97, s4, 3'); I('s_add_u32 s97, s97, s5'); I('s_sub_u32 s97, s97, 8')
        if cfg.get('hu5m', 0) == 3: self.hu_wait_w(WS_HU5, [], 64, cfg['t_h5'])
        elif cfg.get('hu5m', 0) == 1: self.hu_wait_multi(WS_HU5, [], 63, 7, cfg['t_h5'])
        elif cfg.get('hu5m', 0) == 2: self.hu_wait_multi(WS_HU5, [(41, 128)], 7, 10, cfg['t_h5'])
        else: self.hu_wait(WS_HU5, 97, cfg['t_h5'])
        self.stamp(8)
        self.poll('h5', [f'global_load_dwordx4 {vr(64+4*k,4)}, v{9+k}, s[44:45] sc1' for k in range(4)], range(64, 80), 0, loop_sleep=cfg.get('h5_loop', 4))
        self.stamp(11)
        for k in range(4): I(f'v_add_f32 v{64+k}, v{64+k}, v{68+k}')
        for k in range(4): I(f'v_add_f32 v{72+k}, v{72+k}, v{76+k}')
        for k in range(4): I(f'v_add_f32 v{64+k}, v{64+k}, v{72+k}')
        I('v_permlane32_swap_b32 v64, v66'); I('v_permlane32_swap_b32 v65, v67')
        I('v_add_f32 v64, v64, v66'); I('v_add_f32 v65, v65, v67')
        I('v_fma_f32 v64, v18, v64, v16'); I('v_fma_f32 v65, v19, v65, v17')
        I('v_readfirstlane_b32 s56, v64')
        I('v_subrev_f32 v66, s56, v64'); I('v_subrev_f32 v67, s56, v65')
        I('v_add_f32 v68, v66, v67'); I('v_mul_f32 v69, v66, v66'); I('v_fmac_f32 v69, v67, v67')
        self.ror_reduce([68, 69], [8, 4, 2, 1])
        for w in (16, 32):
            I('v_mov_b32 v70, v68'); I('v_mov_b32 v71, v69'); I(f'v_permlane{w}_swap_b32 v68, v70'); I(f'v_permlane{w}_swap_b32 v69, v71'); I('v_add_f32 v68, v68, v70'); I('v_add_f32 v69, v69, v71')
        I(f'v_mul_f32 v70, {f32(1/128)}, v68'); I('v_fma_f32 v71, -v70, v68, v69'); I('v_add_f32 v70, s56, v70')
        I('ds_write_b64 v24, v[70:71]')
        e.barrier()
        I('ds_read_b128 v[68:71], v25'); I('ds_read_b128 v[72:75], v25 offset:16'); e.wait_lg()
        I('v_add_f32 v76, v68, v70'); I('v_add_f32 v77, v72, v74'); I('v_add_f32 v76, v76, v77'); I(f'v_mul_f32 v76, {f32(0.25)}, v76')
        I('v_add_f32 v77, v69, v71'); I('v_add_f32 v78, v73, v75'); I('v_add_f32 v77, v77, v78')
        for k in range(4): I(f'v_sub_f32 v{68+2*k}, v{68+2*k}, v76')
        I('v_mul_f32 v78, v68, v68')
        for k in range(1, 4): I(f'v_fmac_f32 v78, v{68+2*k}, v{68+2*k}')
        I(f'v_mov_b32 v79, {f32(1e-5)}'); I(f'v_fmac_f32 v79, {f32(1/512)}, v77'); I(f'v_fmac_f32 v79, {f32(128/512)}, v78'); I('v_rsq_f32 v79, v79')
        I('v_sub_f32 v64, v64, v76'); I('v_sub_f32 v65, v65, v76')
        I('v_mul_f32 v66, v79, v22'); I('v_mul_f32 v67, v79, v23')
        I('v_fma_f32 v64, v64, v66, v20'); I('v_fma_f32 v65, v65, v67, v21')
        I('v_cvt_pk_bf16_f32 v64, v64, v65'); I('ds_write_b32 v13, v64')
        e.barrier()
        for s in range(16): I(f'ds_read_b128 {vr(160+4*s,4)}, v27 offset:{s*64}', tag=f'h2{s}')
        for s in range(16):
            e.wait_lg(f'h2{s}')
            I(f'v_mfma_f32_16x16x32_bf16 {vr(72+4*(s&1),4)}, {vr(96+4*s,4)}, {vr(160+4*s,4)}, {"0" if s < 2 else vr(72+4*(s&1),4)}')
        c1 = -2*math.sqrt(2/math.pi)*math.log2(math.e)
        I(f's_mov_b32 s6, {f32(c1*0.044715)}'); I(f'v_mov_b32 v84, {f32(c1)}')
        for k in range(4): I(f'v_add_f32 v{72+k}, v{72+k}, v{76+k}')
        for k in range(4): I(f'v_mov_b32 v{76+k}, v{72+k}')
        for k in range(4): I(f'v_permlane32_swap_b32 v{72+k}, v{76+k}')
        for k in range(4): I(f'v_mul_f32 v{80+k}, v{72+k}, v{72+k}')
        for k in range(4): I(f'v_fma_f32 v{80+k}, v{80+k}, s6, v84')
        for k in range(4): I(f'v_mul_f32 v{80+k}, v{80+k}, v{72+k}')
        for k in range(4): I(f'v_exp_f32 v{80+k}, v{80+k}')
        for k in range(4): I(f'v_add_f32 v{80+k}, 1.0, v{80+k}')
        for k in range(4): I(f'v_rcp_f32 v{80+k}, v{80+k}')
        for k in range(4): I(f'v_mul_f32 v{72+k}, v{72+k}, v{76+k}')
        for k in range(4): I(f'v_mul_f32 v{72+k}, v{72+k}, v{80+k}')
        I('v_cvt_pk_bf16_f32 v72, v72, v73'); I('v_cvt_pk_bf16_f32 v73, v74, v75')
        I('s_mov_b32 exec_lo, 0x00030003'); I('s_mov_b32 exec_hi, 0')
        I('ds_write_b64 v28, v[72:73]'); self.exec_all()
        e.barrier()
        self.stamp(12)
        I('ds_read_b128 v[64:67], v29'); I('ds_read_b128 v[68:71], v29 offset:64'); e.wait_lg()
        for t in range(4): I(f'v_mfma_f32_16x16x32_bf16 {vr(72+4*t,4)}, {vr(32+8*t,4)}, v[64:67], 0')
        for t in range(4): I(f'v_mfma_f32_16x16x32_bf16 {vr(72+4*t,4)}, {vr(36+8*t,4)}, v[68:71], {vr(72+4*t,4)}')
        self.exec_mask(48)
        if cfg.get('publds', 1):
            for t in range(4): I(f'ds_write_b128 v30, {vr(72+4*t,4)} offset:{t*64}')
            I('s_mov_b32 exec_lo, -1'); I('s_mov_b32 exec_hi, 0'); e.wait_lg()
            I('ds_read_b128 v[64:67], v31'); e.wait_lg()
            I('global_store_dwordx4 v26, v[64:67], s[46:47] sc1')
        else:
            for t in range(4): I(f'global_store_dwordx4 v30, {vr(72+4*t,4)}, s[46:47] offset:{t*64} sc1')
        self.exec_all()
        self.stamp(13)
        e.branch('s_branch', 'L_FIN')

    def stage_g2(self):
        e, I, cfg = self.e, self.I, self.cfg
        L_PRE, L_ST2 = 64*K, 80*K
        I('v_lshrrev_b32 v13, 2, v2'); I('v_lshlrev_b32 v13, 6, v13'); I('v_and_b32 v26, 1, v2'); I('v_lshl_add_u32 v13, v26, 5, v13')
        I('v_lshrrev_b32 v26, 1, v3'); I('v_lshl_add_u32 v13, v26, 4, v13'); I('v_bfe_u32 v26, v2, 1, 1'); I('v_lshl_add_u32 v13, v26, 3, v13')
        I('v_and_b32 v26, 1, v3'); I('v_lshl_add_u32 v13, v26, 2, v13')
        self.sval('s6', [(55, 256), (60, 1088)], L_PRE); I('v_add_u32 v14, s6, v13')
        self.sval('s6', [(55, 256), (60, 1088)], L_H2V); I('v_add_u32 v13, s6, v13')
        for (src, row) in ((22, 0), (20, 4)):
            I(f'v_cvt_pk_bf16_f32 v64, v{src}, v{src+1}')
            I('v_lshlrev_b32 v65, 16, v64'); I('v_and_b32 v66, 0xffff0000, v64')
            I(f'v_sub_f32 v65, v{src}, v65'); I(f'v_sub_f32 v66, v{src+1}, v66')
            I('v_cvt_pk_bf16_f32 v65, v65, v66')
            I(f'ds_write_b32 v14, v64 offset:{row*1088}'); I(f'ds_write_b32 v14, v65 offset:{(row+2)*1088}')
        I('v_and_b32 v27, 7, v2'); I('v_mul_u32_u24 v27, 1088, v27'); I('v_lshl_add_u32 v27, v3, 4, v27'); I(f'v_add_u32 v27, {L_PRE}, v27')
        e.barrier()
        def matmul(extra=None):
            for s in range(16): I(f'ds_read_b128 {vr(160+4*s,4)}, v27 offset:{s*64}', tag=f'h2{s}')
            for s in range(16):
                e.wait_lg(f'h2{s}')
                I(f'v_mfma_f32_16x16x32_bf16 {vr(72+4*(s&1),4)}, {vr(96+4*s,4)}, {vr(160+4*s,4)}, {"0" if s < 2 else vr(72+4*(s&1),4)}')
                if extra: extra(s)
        matmul()
        for k in range(4): I(f'v_add_f32 v{72+k}, v{72+k}, v{76+k}')
        for k in range(4): I(f'v_add_f32_dpp v{88+k}, v{72+k}, v{72+k} row_shl:2 {DPPM}')
        for k in range(4): I(f'v_mov_b32_dpp v{92+k}, v{88+k} row_shl:4 {DPPM}')
        I('v_lshlrev_b32 v9, 11, v3'); I('v_lshl_add_u32 v9, v2, 4, v9'); I('v_add_u32 v10, 8192, v9')
        self.base(44, P_WS, [(60, 1024), (55, 256)], WS_H5)
        I('v_and_b32 v27, 1, v2'); I('v_lshlrev_b32 v25, 11, v27'); I('v_mul_u32_u24 v27, 1088, v27'); I('v_lshl_add_u32 v27, v3, 4, v27'); I(f'v_add_u32 v27, {L_H2V}, v27')
        self.sval('s6', [(3, 512)], L_ST2); I('v_add_u32 v24, s6, v7')
        I('v_lshrrev_b32 v26, 1, v1'); I('v_lshl_add_u32 v25, v26, 4, v25'); I(f'v_add_u32 v25, {L_ST2}, v25')
        I('v_mul_u32_u24 v28, 192, v2'); I('v_lshl_add_u32 v28, v3, 4, v28')
        I('s_bfe_u32 s58, s3, 0x10001')
        self.sval('s6', [(60, 64), (62, 32), (58, 8)], L_GRED); I('v_add_u32 v28, s6, v28')
        I('v_and_b32 v29, 1, v2'); I('v_mul_u32_u24 v29, 192, v29'); I('v_lshl_add_u32 v29, v3, 4, v29'); I(f'v_add_u32 v29, {L_GRED}, v29')
        I('v_lshlrev_b32 v30, 8, v2'); I('v_lshl_add_u32 v30, v3, 4, v30'); self.sval('s6', [(3, 512)], L_X1); I('v_add_u32 v30, s6, v30'); I('v_add_u32 v31, s6, v6')
        I('v_lshlrev_b32 v26, 11, v3'); I('v_lshl_add_u32 v26, v2, 4, v26')
        self.base(46, P_WS, [(43, 4096), (3, 256)], WS_H7)
        I('v_mov_b32 v11, 0x00003f80'); I('v_mov_b32 v12, 0x3f800000')
        c1 = -2*math.sqrt(2/math.pi)*math.log2(math.e)
        I(f's_mov_b32 s56, {f32(c1*0.044715)}'); I(f'v_mov_b32 v20, {f32(c1)}'); I(f'v_mov_b32 v21, {f32(1e-5)}')
        self.hu_wait_multi(WS_HU5, [(41, 128)], 7, 10, cfg['t_h5'])
        self.stamp(8)
        self.poll('h5', [f'global_load_dwordx4 {vr(64+4*k,4)}, v{9+k}, s[44:45] sc1' for k in range(2)], range(64, 72), 0, loop_sleep=cfg.get('h5_loop', 4))
        self.stamp(11)
        for k in range(8): I(f'v_dot2_f32_bf16 v{72+k}, v{64+(k>>1)}, v{11+(k&1)}, 0')
        for k in range(8): I(f'v_dot2_f32_bf16 v{72+k}, v{68+(k>>1)}, v{11+(k&1)}, v{72+k}')
        for k in range(4): I(f'v_permlane32_swap_b32 v{72+k}, v{76+k}')
        for k in range(4): I(f'v_add_f32 v{72+k}, v{72+k}, v{76+k}')
        for k in range(2): I(f'v_permlane16_swap_b32 v{72+k}, v{74+k}')
        for k in range(2): I(f'v_add_f32 v{72+k}, v{72+k}, v{74+k}')
        I('v_fma_f32 v64, v18, v72, v16'); I('v_fma_f32 v65, v19, v73, v17')
        I('v_mul_f32 v66, v64, v22'); I('v_mul_f32 v67, v65, v23')
        I('v_cvt_pk_bf16_f32 v66, v66, v67'); I('ds_write_b32 v13, v66')
        I('v_add_f32 v68, v64, v65'); I('v_mul_f32 v69, v64, v64'); I('v_fmac_f32 v69, v65, v65')
        I('ds_write_b64 v24, v[68:69]')
        e.barrier()
        for k in range(4): I(f'ds_read_b128 {vr(224+4*k,4)}, v25 offset:{k*512}', tag='st')
        steps = []
        steps.append(lambda: [I(f'v_add_f32 v{224+k}, v{224+k}, v{232+k}') for k in range(8)])
        steps.append(lambda: [I(f'v_add_f32 v{224+k}, v{224+k}, v{228+k}') for k in range(4)])
        steps.append(lambda: [I(f'v_add_f32 v{224+k}, v{224+k}, v{226+k}') for k in range(2)])
        for sft in (2, 4, 8): steps.append(lambda sft=sft: self.ror_reduce([224, 225], [sft]))
        for w in (16, 32):
            steps.append(lambda: [I('v_mov_b32 v226, v224'), I('v_mov_b32 v227, v225')])
            steps.append(lambda w=w: [I(f'v_permlane{w}_swap_b32 v224, v226'), I(f'v_permlane{w}_swap_b32 v225, v227')])
            steps.append(lambda: [I('v_add_f32 v224, v224, v226'), I('v_add_f32 v225, v225, v227')])
        steps.append(lambda: [I(f'v_mul_f32 v224, {f32(-1/512)}, v224'), I(f'v_fmac_f32 v21, {f32(1/512)}, v225')])
        steps.append(lambda: [I('v_fma_f32 v21, -v224, v224, v21')])
        steps.append(lambda: [I('v_rsq_f32 v225, v21')])
        matmul(lambda s: steps[s]() if s < len(steps) else None)
        for k in range(4): I(f'v_fma_f32 v{80+k}, v224, v{88+k}, v{72+k}')
        for k in range(4): I(f'v_add_f32 v{80+k}, v{80+k}, v{76+k}')
        for k in range(4): I(f'v_fma_f32 v{72+k}, v225, v{80+k}, v{92+k}')
        for k in range(4): I(f'v_mov_b32 v{76+k}, v{72+k}')
        for k in range(4): I(f'v_permlane32_swap_b32 v{72+k}, v{76+k}')
        for k in range(4): I(f'v_mul_f32 v{80+k}, v{72+k}, v{72+k}')
        for k in range(4): I(f'v_fma_f32 v{80+k}, v{80+k}, s56, v20')
        for k in range(4): I(f'v_mul_f32 v{80+k}, v{80+k}, v{72+k}')
        for k in range(4): I(f'v_exp_f32 v{80+k}, v{80+k}')
        for k in range(4): I(f'v_mul_f32 v{72+k}, v{72+k}, v{76+k}')
        for k in range(4): I(f'v_add_f32 v{80+k}, 1.0, v{80+k}')
        for k in range(4): I(f'v_rcp_f32 v{80+k}, v{80+k}')
        for k in range(4): I(f'v_mul_f32 v{72+k}, v{72+k}, v{80+k}')
        I('v_cvt_pk_bf16_f32 v72, v72, v73'); I('v_cvt_pk_bf16_f32 v73, v74, v75')
        I('s_mov_b32 exec_lo, 0x00030003'); I('s_mov_b32 exec_hi, 0')
        I('ds_write_b64 v28, v[72:73]'); self.exec_all()
        e.barrier()
        self.stamp(12)
        I('ds_read_b128 v[64:67], v29'); I('ds_read_b128 v[68:71], v29 offset:64'); e.wait_lg()
        for t in range(4): I(f'v_mfma_f32_16x16x32_bf16 {vr(72+4*t,4)}, {vr(32+8*t,4)}, v[64:67], 0')
        for t in range(4): I(f'v_mfma_f32_16x16x32_bf16 {vr(72+4*t,4)}, {vr(36+8*t,4)}, v[68:71], {vr(72+4*t,4)}')
        self.exec_mask(48)
        for t in range(4): I(f'ds_write_b128 v30, {vr(72+4*t,4)} offset:{t*64}')
        I('s_mov_b32 exec_lo, -1'); I('s_mov_b32 exec_hi, 0'); e.wait_lg()
        I('ds_read_b128 v[64:67], v31'); e.wait_lg()
        I('global_store_dwordx4 v26, v[64:67], s[46:47] sc1')
        self.exec_all()
        self.stamp(13)
        e.branch('s_branch', 'L_FIN')

    def stage_g3(self):
        e, I, cfg = self.e, self.I, self.cfg
        L_PV, L_RED, L_STW, L_RED2 = L_S, L_S + 10*K, L_S + 18*K, L_S + 22*K
        PIT = 144
        I('v_bfe_u32 v13, v2, 2, 1'); I('v_lshlrev_b32 v13, 6, v13'); I('v_and_b32 v26, 1, v2'); I('v_lshl_add_u32 v13, v26, 5, v13')
        I('v_lshrrev_b32 v26, 1, v3'); I('v_lshl_add_u32 v13, v26, 4, v13'); I('v_bfe_u32 v26, v2, 1, 1'); I('v_lshl_add_u32 v13, v26, 3, v13')
        I('v_and_b32 v26, 1, v3'); I('v_lshl_add_u32 v13, v26, 2, v13')
        I('v_lshrrev_b32 v26, 3, v2'); I(f'v_mul_u32_u24 v27, {PIT}, v26'); I('v_add_u32 v13, v13, v27')
        self.sval('s6', [(3, 1280)], L_PV); I('v_add_u32 v13, s6, v13')
        I('v_and_b32 v27, 7, v2'); I(f'v_mul_u32_u24 v27, {PIT}, v27'); I('v_lshl_add_u32 v27, v3, 4, v27'); I('v_add_u32 v27, s6, v27')
        self.sval('s6', [(3, 8)], L_STW); I('v_lshlrev_b32 v24, 6, v26'); I('v_add_u32 v24, s6, v24')
        I('v_and_b32 v26, 1, v3'); I('v_and_b32 v25, 7, v2'); I('v_lshlrev_b32 v25, 3, v25'); I('v_lshl_add_u32 v25, v26, 6, v25'); I(f'v_add_u32 v25, {L_STW}, v25')
        I('v_and_b32 v28, 1, v2'); I('v_lshlrev_b32 v28, 6, v28'); I('v_lshl_add_u32 v28, v3, 4, v28'); I('v_bfe_u32 v29, v2, 2, 1'); I(f'v_mul_u32_u24 v29, {L_RED2-L_RED}, v29'); I('v_add_u32 v28, v28, v29')
        self.sval('s6', [(3, 1024)], L_RED); I('v_add_u32 v30, s6, v28')
        self.sval('s6', [(3, 128)], L_RED); I('v_lshlrev_b32 v31, 2, v4'); I('v_add_u32 v31, s6, v31'); I(f'v_add_u32 v29, {L_RED2-L_RED}, v31')
        for (src, row) in ((22, 0), (20, 4)):
            I(f'v_cvt_pk_bf16_f32 v64, v{src}, v{src+1}')
            I('v_lshlrev_b32 v65, 16, v64'); I('v_and_b32 v66, 0xffff0000, v64')
            I(f'v_sub_f32 v65, v{src}, v65'); I(f'v_sub_f32 v66, v{src+1}, v66')
            I('v_cvt_pk_bf16_f32 v65, v65, v66')
            I(f'ds_write_b32 v13, v64 offset:{row*PIT}'); I(f'ds_write_b32 v13, v65 offset:{(row+2)*PIT}')
        def matmul(extra=None, pre=None):
            I('ds_read_b128 v[64:67], v27', tag='b0'); I('ds_read_b128 v[68:71], v27 offset:64', tag='b1')
            if pre: pre()
            n = 0
            for s2 in range(2):
                e.wait_lg(f'b{s2}')
                for t in range(8):
                    I(f'v_mfma_f32_16x16x32_bf16 {vr(160+4*t,4)}, {vr(96+8*t+4*s2,4)}, {vr(64+4*s2,4)}, {"0" if s2 == 0 else vr(160+4*t,4)}')
                    if extra: extra(n)
                    n += 1
        def gather(va, dst, tmp):
            for k in range(4): I(f'ds_read2st64_b32 {vr(tmp+2*k,2)}, v{va} offset0:{8*k} offset1:{8*k+4}')
        def sum8(dst, tmp, fill=None):
            for k in range(4): I(f'v_add_f32 v{tmp+k}, v{tmp+k}, v{tmp+4+k}')
            if fill: fill(0)
            for k in range(2): I(f'v_add_f32 v{tmp+k}, v{tmp+k}, v{tmp+2+k}')
            if fill: fill(1)
            I(f'v_add_f32 v{dst}, v{tmp}, v{tmp+1}')
            if fill: fill(2)
        matmul()
        for k in range(32): I(f'v_add_f32_dpp v{192+k}, v{160+k}, v{160+k} row_shl:2 {DPPM}')
        I('s_mov_b32 exec_lo, 0x00330033'); I('s_mov_b32 exec_hi, 0x00330033')
        for t in range(8): I(f'ds_write_b128 v30, {vr(192+4*t,4)} offset:{t*128}')
        self.exec_all()
        e.barrier()
        gather(31, 88, 72); gather(29, 89, 80); e.wait_lg()
        sum8(88, 72); sum8(89, 80)
        I('v_lshlrev_b32 v9, 11, v3'); I('v_lshrrev_b32 v10, 3, v2'); I('v_lshl_add_u32 v9, v10, 10, v9'); I('v_and_b32 v10, 7, v2'); I('v_lshl_add_u32 v9, v10, 4, v9'); I('v_add_u32 v10, 8192, v9')
        self.base(44, P_WS, [(3, 128)], WS_H5)
        I('v_and_b32 v27, 1, v2'); I(f'v_mul_u32_u24 v27, {PIT}, v27'); I('v_lshl_add_u32 v27, v3, 4, v27'); self.sval('s6', [(3, 1280)], L_PV); I('v_add_u32 v27, s6, v27')
        I('v_and_b32 v28, 1, v3'); I('v_mul_u32_u24 v28, 192, v28'); I('v_lshrrev_b32 v29, 2, v2'); I('v_lshl_add_u32 v28, v29, 4, v28'); I('v_and_b32 v29, 3, v2'); I('v_lshl_add_u32 v28, v29, 1, v28')
        I('s_bfe_u32 s58, s3, 0x10001')
        self.sval('s6', [(60, 64), (62, 32), (58, 8)], L_GRED); I('v_add_u32 v28, s6, v28')
        I('v_and_b32 v29, 1, v2'); I('v_mul_u32_u24 v29, 192, v29'); I('v_lshl_add_u32 v29, v3, 4, v29'); I(f'v_add_u32 v29, {L_GRED}, v29')
        I('v_lshlrev_b32 v90, 8, v2'); I('v_lshl_add_u32 v90, v3, 4, v90'); self.sval('s6', [(3, 512)], L_X1); I('v_add_u32 v90, s6, v90'); I('v_add_u32 v91, s6, v6')
        I('v_lshlrev_b32 v26, 11, v3'); I('v_lshl_add_u32 v26, v2, 4, v26')
        if cfg.get('cmp', 0):
            I('v_lshlrev_b32 v92, 6, v2'); I('v_lshl_add_u32 v92, v3, 4, v92'); self.sval('s6', [(3, 1024)], L_RED); I('v_add_u32 v92, s6, v92')
            I('v_and_b32 v90, 1, v2'); I('v_lshlrev_b32 v90, 8, v90'); I('v_lshrrev_b32 v93, 1, v2'); I('v_lshl_add_u32 v90, v93, 6, v90'); I('v_lshl_add_u32 v90, v3, 4, v90')
            self.sval('s6', [(3, 512)], L_X1); I('v_add_u32 v90, s6, v90')
        self.base(46, P_WS, [(43, 4096), (3, 256)], WS_H7)
        I('v_mov_b32 v11, 0x00003f80'); I('v_mov_b32 v12, 0x3f800000')
        c1 = -2*math.sqrt(2/math.pi)*math.log2(math.e)
        I(f's_mov_b32 s56, {f32(c1*0.044715)}'); I(f'v_mov_b32 v20, {f32(c1)}'); I(f'v_mov_b32 v21, {f32(1e-5)}')
        WARM = cfg.get('warm', 0)
        if cfg.get('gprio', 0):
            Lp = self.lab('gp'); I('s_cmp_lt_u32 s3, 4'); I(f's_cbranch_scc1 {Lp}'); I('s_setprio 2'); e.label(Lp, flush=False)
        LPS, LSK, LNS = self.lab('pass'), self.lab('skip'), self.lab('nost')
        if WARM:
            I('s_mov_b32 s59, 0'); e.branch('s_branch', LSK)
            e.label(LPS)
            I(f'v_mov_b32 v21, {f32(1e-5)}')
        self.hu_wait_multi(WS_HU5, [(41, 128)], 7, 10, cfg['t_h5'])
        self.stamp(8)
        self.poll('h5', [f'global_load_dwordx4 {vr(64+4*k,4)}, v{9+k}, s[44:45] sc1' for k in range(2)], range(64, 72), 0, loop_sleep=cfg.get('h5_loop', 4))
        self.stamp(11)
        if WARM: e.label(LSK, flush=False)
        for k in range(8): I(f'v_dot2_f32_bf16 v{72+k}, v{64+(k>>1)}, v{11+(k&1)}, 0')
        for k in range(8): I(f'v_dot2_f32_bf16 v{72+k}, v{68+(k>>1)}, v{11+(k&1)}, v{72+k}')
        for k in range(4): I(f'v_permlane32_swap_b32 v{72+k}, v{76+k}')
        for k in range(4): I(f'v_add_f32 v{72+k}, v{72+k}, v{76+k}')
        for k in range(2): I(f'v_permlane16_swap_b32 v{72+k}, v{74+k}')
        for k in range(2): I(f'v_add_f32 v{72+k}, v{72+k}, v{74+k}')
        I('v_fma_f32 v76, v18, v72, v16'); I('v_fma_f32 v77, v19, v73, v17')
        I('v_mul_f32 v78, v76, v22'); I('v_mul_f32 v79, v77, v23')
        if cfg.get('gfine'): I('s_memrealtime s[66:67]')
        I('v_cvt_pk_bf16_f32 v78, v78, v79'); e.lg = []; I('ds_write_b32 v13, v78')
        steps = []
        steps.append(lambda: [I('v_add_f32 v80, v76, v77'), I('v_mul_f32 v81, v76, v76')])
        steps.append(lambda: [I('v_fmac_f32 v81, v77, v77')])
        for qp in ('quad_perm:[1,0,3,2]', 'quad_perm:[2,3,0,1]', 'row_half_mirror'):
            steps.append(lambda qp=qp: [I(f'v_add_f32_dpp v{r}, v{r}, v{r} {qp} {DPPM}') for r in (80, 81)])
        for w in (16, 32):
            steps.append(lambda: [I('v_mov_b32 v82, v80'), I('v_mov_b32 v83, v81')])
            steps.append(lambda w=w: [I(f'v_permlane{w}_swap_b32 v80, v82'), I(f'v_permlane{w}_swap_b32 v81, v83')])
            steps.append(lambda: [I('v_add_f32 v80, v80, v82'), I('v_add_f32 v81, v81, v83')])
        steps.append(lambda: [I('s_mov_b64 exec, 0x101'), I('ds_write_b64 v24, v[80:81]'), self.exec_mask(48)])
        def ex(n):
            if n < len(steps): steps[n]()
            elif n >= 12: I(f'ds_write_b128 v30, {vr(160+4*(n-12),4)} offset:{(n-12)*128}')
        CMP = cfg.get('cmp', 0)
        def pick(dst, src, t, base=48):
            I(f's_lshl_b64 exec, s[{base}:{base+1}], {2*t}'); I(f'v_mov_b64 {vr(dst,2)}, {vr(src,2)}'); I(f'v_mov_b64 {vr(dst+2,2)}, {vr(src+2,2)}')
        if CMP:
            steps[-1] = lambda: [I('s_mov_b64 exec, 0x101'), I('ds_write_b64 v24, v[80:81]'), self.exec_all()]
            def ex3(n):
                if n < len(steps): steps[n]()
                elif n >= 13: pick(160, 160+4*(n-12), n-12)
            matmul(ex3)
            for t in range(4, 8): pick(160, 160+4*t, t)
            self.exec_all(); I('ds_write_b128 v92, v[160:163]')
        elif cfg.get('g3o', 0):
            NP = cfg.get('g3o')
            def pre():
                for st_ in steps[:NP]: st_()
            rest = steps[NP:]
            def ex2(n):
                if n < len(rest): rest[n]()
                elif n >= 12: I(f'ds_write_b128 v30, {vr(160+4*(n-12),4)} offset:{(n-12)*128}')
            matmul(ex2, pre)
        else: matmul(ex)
        if cfg.get('gfine'): I('s_memrealtime s[68:69]')
        if not CMP:
            for t in range(4, 8): I(f'ds_write_b128 v30, {vr(160+4*t,4)} offset:{t*128}')
        I('s_mov_b32 exec_lo, -1'); I('s_mov_b32 exec_hi, 0')
        e.barrier()
        if cfg.get('gfine'): I('s_memrealtime s[70:71]')
        if cfg.get('gfine'): I('s_waitcnt lgkmcnt(0)')
        I('ds_read_b64 v[80:81], v25', tag='st'); gather(31, 72, 72)
        e.wait_lg('st')
        for qp in ('quad_perm:[1,0,3,2]', 'quad_perm:[2,3,0,1]', 'row_half_mirror'):
            for r in (80, 81): I(f'v_add_f32_dpp v{r}, v{r}, v{r} {qp} {DPPM}')
        I(f'v_mul_f32 v80, {f32(-1/512)}, v80'); I(f'v_fmac_f32 v21, {f32(1/512)}, v81')
        I('v_fma_f32 v21, -v80, v80, v21'); I('v_rsq_f32 v81, v21')
        e.wait_lg()
        if cfg.get('gfine'): I('s_memrealtime s[72:73]')
        I('v_fmac_f32 v72, v80, v88')
        sum8(72, 72)
        I('v_fma_f32 v72, v81, v72, v89')
        I('v_mul_f32 v73, v72, v72'); I('v_fma_f32 v73, v73, s56, v20'); I('v_mul_f32 v73, v73, v72'); I('v_exp_f32 v73, v73')
        I(f'v_mul_f32_dpp v74, v72, v72 row_ror:8 {DPPM}')
        I('v_add_f32 v73, 1.0, v73'); I('v_rcp_f32 v73, v73'); I('v_mul_f32 v74, v74, v73')
        I('v_cvt_pk_bf16_f32 v74, v74, v74')
        if cfg.get('gfine'): I('s_memrealtime s[74:75]')
        I('s_mov_b32 exec_lo, 0x00ff00ff')
        I('ds_write_b16 v28, v74'); self.exec_all()
        e.barrier()
        self.stamp(12)
        I('ds_read_b128 v[64:67], v29'); I('ds_read_b128 v[68:71], v29 offset:64'); e.wait_lg()
        for t in range(4): I(f'v_mfma_f32_16x16x32_bf16 {vr(72+4*t,4)}, {vr(32+8*t,4)}, v[64:67], 0')
        for t in range(4): I(f'v_mfma_f32_16x16x32_bf16 {vr(72+4*t,4)}, {vr(36+8*t,4)}, v[68:71], {vr(72+4*t,4)}')
        if CMP:
            for t in range(1, 4): pick(72, 72+4*t, t)
            I('s_mov_b32 exec_lo, 0x00ff00ff'); I('s_mov_b32 exec_hi, 0x00ff00ff'); I('ds_write_b128 v90, v[72:75]')
        else:
            self.exec_mask(48)
            for t in range(4): I(f'ds_write_b128 v90, {vr(72+4*t,4)} offset:{t*64}')
        I('s_mov_b32 exec_lo, -1'); I('s_mov_b32 exec_hi, 0'); e.wait_lg()
        I('ds_read_b128 v[64:67], v91'); e.wait_lg()
        if WARM:
            I('s_xor_b32 s59, s59, 1'); self.exec_all(); I(f's_cbranch_scc1 {LPS}'); I('s_mov_b32 exec_hi, 0')
        I('global_store_dwordx4 v26, v[64:67], s[46:47] sc1')
        self.exec_all()
        self.stamp(13)
        e.branch('s_branch', 'L_FIN')

    def stage_g4(self):
        e, I, cfg = self.e, self.I, self.cfg
        PIT = 144
        e.vm = []
        self.base(44, P_WD, [(43, 64*1024), (3, 128)])
        I('v_lshlrev_b32 v12, 1, v3'); I('v_and_b32 v9, 7, v1'); I('v_xor_b32 v12, v12, v9'); I('v_lshlrev_b32 v12, 4, v12'); I('v_lshrrev_b32 v9, 3, v1'); I('v_lshl_add_u32 v12, v9, 10, v12')
        for q in range(1 if cfg.get('noload') else 8):
            I(f'global_load_dwordx4 {vr(160+4*q,4)}, v12, s[44:45] nt', tag='wd')
            if q < 7: I('v_add_u32 v12, 8192, v12')
        self.base(44, P_WG, [(3, 64*3584), (43, 128)])
        self.dma_128(44, 3584, 8, [(3, 8192)], L_WG, 'ga')
        ALL = cfg.get('g4all', 0)
        if ALL:
            self.base(44, P_WU, [(3, 64*3584), (43, 128)])
            self.dma_128(44, 3584, 8, [(3, 8192)], L_WU, 'up')
            e.wait_vm('wd')
            if ALL == 1: self.x1_side(True); e.vm[-1] = 'side'
        else:
            e.wait_vm('wd')
            self.x1_side(True); e.vm[-1] = 'side'
            self.base(44, P_WU, [(3, 64*3584), (43, 128)])
            self.dma_128(44, 3584, 8, [(3, 8192)], L_WU, 'up')
        self.sval('s6', [(3, 4096)], L_S); I('v_add_u32 v13, s6, v6')
        self.tr_base_128(12, [(3, 4096)], L_S)
        for s2 in range(2):
            for q in range(4): I(f'ds_write_b128 v13, {vr(160+16*s2+4*q,4)} offset:{q*1024}')
            for t in range(4):
                I(f'v_xor_b32 v{8+(t&1)}, {t<<5}, v12')
                I(f'ds_read_b64_tr_b16 {vr(32+8*t+4*s2,2)}, v{8+(t&1)}'); I(f'ds_read_b64_tr_b16 {vr(34+8*t+4*s2,2)}, v{8+(t&1)} offset:2048')
        I('v_bfe_u32 v13, v2, 2, 1'); I('v_lshlrev_b32 v13, 6, v13'); I('v_and_b32 v24, 1, v2'); I('v_lshl_add_u32 v13, v24, 5, v13')
        I('v_lshrrev_b32 v24, 1, v3'); I('v_lshl_add_u32 v13, v24, 4, v13'); I('v_bfe_u32 v24, v2, 1, 1'); I('v_lshl_add_u32 v13, v24, 3, v13')
        I('v_and_b32 v24, 1, v3'); I('v_lshl_add_u32 v13, v24, 2, v13')
        I('v_lshrrev_b32 v24, 3, v2'); I(f'v_mul_u32_u24 v25, {PIT}, v24'); I('v_add_u32 v13, v13, v25')
        self.sval('s6', [(3, 4096)], L_S); I('v_add_u32 v13, s6, v13')
        I('v_and_b32 v84, 3, v2'); I(f'v_mul_u32_u24 v84, {PIT}, v84'); I('v_lshl_add_u32 v84, v3, 4, v84'); I('v_add_u32 v84, s6, v84')
        I('v_and_b32 v85, 1, v2'); I(f'v_mul_u32_u24 v85, {PIT}, v85'); I('v_lshl_add_u32 v85, v3, 4, v85'); I('v_add_u32 v85, s6, v85')
        I('v_and_b32 v90, 1, v2'); I('v_lshlrev_b32 v90, 8, v90'); I('v_lshrrev_b32 v93, 1, v2'); I('v_lshl_add_u32 v90, v93, 6, v90'); I('v_lshl_add_u32 v90, v3, 4, v90')
        I('s_add_u32 s6, s6, 1024'); I('v_add_u32 v90, s6, v90'); I('v_add_u32 v91, s6, v6')
        I('s_lshl_b32 s6, s3, 13')
        I('v_lshlrev_b32 v24, 3, v24'); I('v_add_u32 v24, s6, v24')
        I('v_and_b32 v93, 1, v3'); I('v_and_b32 v25, 7, v2'); I('v_lshlrev_b32 v25, 13, v25'); I('v_lshl_add_u32 v25, v93, 3, v25')
        I('v_lshlrev_b32 v92, 6, v2'); I('v_lshl_add_u32 v92, v3, 4, v92'); I('v_add_u32 v92, s6, v92')
        I('v_and_b32 v94, 1, v2'); I('v_lshlrev_b32 v94, 6, v94'); I('v_bfe_u32 v95, v2, 1, 1'); I('v_lshl_add_u32 v94, v95, 10, v94')
        I('v_lshrrev_b32 v95, 2, v2'); I('v_lshl_add_u32 v94, v95, 7, v94'); I('v_lshl_add_u32 v94, v3, 4, v94'); I('v_add_u32 v94, s6, v94')
        I('v_lshrrev_b32 v95, 3, v2'); I('v_lshlrev_b32 v95, 9, v95'); I('v_lshl_add_u32 v95, v93, 6, v95'); I('v_and_b32 v93, 7, v2'); I('v_lshl_add_u32 v95, v93, 2, v95')
        self.sval('s6', [(61, 128), (62, 32)]); I('v_add_u32 v95, s6, v95'); I('v_add_u32 v93, 1024, v95')
        I('v_lshlrev_b32 v86, 11, v3'); I('v_lshrrev_b32 v10, 3, v2'); I('v_lshl_add_u32 v86, v10, 10, v86'); I('v_and_b32 v10, 7, v2'); I('v_lshl_add_u32 v86, v10, 4, v86'); I('v_add_u32 v87, 8192, v86')
        self.base(44, P_WS, [(3, 128)], WS_H5)
        self.base(46, P_WS, [(43, 4096), (3, 256)], WS_H7)
        self.tr_base_128(12, [(3, 8192)], L_WG)
        I('s_mov_b32 s58, 0x000f000f'); I('s_mov_b32 s59, 0x000f000f')
        def pick(dst, src, sh, base=48):
            I(f's_lshl_b64 exec, s[{base}:{base+1}], {sh}'); I(f'v_mov_b64 {vr(dst,2)}, {vr(src,2)}'); I(f'v_mov_b64 {vr(dst+2,2)}, {vr(src+2,2)}')
        def frags(h):
            for t in range(4):
                I(f'v_xor_b32 v{8+(t&1)}, {t<<5}, v12')
                for s2 in range(2):
                    r = 96 + 32*h + 8*t + 4*s2
                    I(f'ds_read_b64_tr_b16 {vr(r,2)}, v{8+(t&1)} offset:{s2*4096}'); I(f'ds_read_b64_tr_b16 {vr(r+2,2)}, v{8+(t&1)} offset:{s2*4096+2048}')
        def gather(va, tmp):
            for k in range(4): I(f'ds_read2st64_b32 {vr(tmp+2*k,2)}, v{va} offset0:{64*k} offset1:{64*k+32}')
        def sum8(dst, tmp):
            for k in range(4): I(f'v_add_f32 v{tmp+k}, v{tmp+k}, v{tmp+4+k}')
            for k in range(2): I(f'v_add_f32 v{tmp+k}, v{tmp+k}, v{tmp+2+k}')
            I(f'v_add_f32 v{dst}, v{tmp}, v{tmp+1}')
        if ALL:
            e.wait_vm('ga')
            if ALL == 2: self.x1_side(True); e.vm[-1] = 'side'
            frags(0); I(f'v_add_u32 v12, {L_WU}, v12'); e.wait_vm('up'); frags(1); e.wait_vm('side'); self.stamp(7)
        else:
            e.wait_vm('side')
            frags(0)
        Dm = self.lab('mrok'); saved = list(e.vm)
        r_ = self.maxtree([18, 19, 20, 21, 22, 23, 26, 27, 28, 29, 30, 31], 10)
        I(f'v_cmp_eq_u32 vcc, -1, v{r_}'); I(f's_cbranch_vccz {Dm}')
        self.poll('mr', self.mr_loads, [18, 19, 20, 21, 22, 23, 26, 27, 28, 29, 30, 31], 0, t=10)
        e.label(Dm, flush=False); e.vm = saved
        for k in range(6): I(f'v_add_f32 v{18+k}, v{18+k}, v{26+k}')
        I('v_add_f32 v22, 1.0, v22'); I('v_add_f32 v23, 1.0, v23')
        I('v_and_b32 v17, 0xffff0000, v16'); I('v_lshlrev_b32 v16, 16, v16')
        I('v_cvt_pk_bf16_f32 v64, v22, v23'); I('v_cvt_pk_bf16_f32 v65, v20, v21')
        I('ds_write_b32 v13, v64'); I(f'ds_write_b32 v13, v65 offset:{2*PIT}')
        I('ds_read_b128 v[64:67], v84'); I('ds_read_b128 v[68:71], v84 offset:64')
        I('v_and_b32 v28, 1, v3'); I('v_mul_u32_u24 v28, 192, v28'); I('v_lshrrev_b32 v29, 2, v2'); I('v_lshl_add_u32 v28, v29, 4, v28'); I('v_and_b32 v29, 3, v2'); I('v_lshl_add_u32 v28, v29, 1, v28')
        I('s_bfe_u32 s57, s3, 0x10001')
        self.sval('s6', [(60, 64), (62, 32), (57, 8)], 4096); I('v_add_u32 v28, s6, v28')
        I('v_and_b32 v29, 1, v2'); I('v_mul_u32_u24 v29, 192, v29'); I('v_lshl_add_u32 v29, v3, 4, v29'); I('v_add_u32 v29, 4096, v29')
        I('v_lshlrev_b32 v26, 11, v3'); I('v_lshl_add_u32 v26, v2, 4, v26')
        I('v_mov_b32 v30, 0x00003f80'); I('v_mov_b32 v31, 0x3f800000')
        c1 = -2*math.sqrt(2/math.pi)*math.log2(math.e)
        I(f's_mov_b32 s56, {f32(c1*0.044715)}'); I(f'v_mov_b32 v20, {f32(c1)}'); I(f'v_mov_b32 v21, {f32(1e-5)}')
        def cpass(h):
            e.wait_lg()
            for s2 in range(2):
                for t in range(4):
                    I(f'v_mfma_f32_16x16x32_bf16 {vr(160+4*t,4)}, {vr(96+32*h+8*t+4*s2,4)}, {vr(64+4*s2,4)}, {"0" if s2 == 0 else vr(160+4*t,4)}')
            for t in range(1, 4): pick(160, 160+4*t, 4*t, 58)
            self.exec_all(); I(f'ds_write_b128 v94, v[160:163] offset:{512*h}')
        cpass(0)
        if not ALL:
            I(f'v_add_u32 v12, {L_WU}, v12')
            e.wait_vm()
            self.stamp(7)
            frags(1)
        cpass(1)
        HE = cfg.get('hu_early', 0)
        if not HE:
            e.barrier()
            gather(95, 72); gather(93, 160); e.wait_lg()
            sum8(88, 72); sum8(89, 160)
        HU7 = cfg.get('t_h7b', 0)
        if HU7: self.hu_prep(WS_HU2 + 4096, 43, 38)
        if cfg.get('nohu5', 0): e.barrier()
        else: self.hu_wait_multi(WS_HU5, [(41, 128)], 7, 10, cfg['t_h5'])
        self.stamp(8)
        h5l = [f'global_load_dwordx4 {vr(64+4*k,4)}, v{86+k}, s[44:45] sc1' for k in range(2)]
        if HE:
            Dh = self.lab('h5k')
            for ld in h5l: I(ld.replace(' sc1', '') if cfg.get('h5plain', 0) else ld)
            gather(95, 72); gather(93, 160); e.wait_lg()
            sum8(88, 72); sum8(89, 160)
            I('v_add_u32 v95, 3072, v95'); I('v_add_u32 v92, 3072, v92')
            e.wait_vm()
            r_ = self.maxtree(range(64, 72), 8)
            I(f'v_cmp_eq_u32 vcc, -1, v{r_}'); I(f's_cbranch_vccz {Dh}')
        self.poll('h5', h5l, range(64, 72), 0, loop_sleep=cfg.get('h5_loop', 4))
        if HE: e.label(Dh, flush=False)
        self.stamp(11)
        if HU7: self.hu_clock()
        if cfg.get('nodot', 0):
            for k in range(4): I(f'v_lshlrev_b32 v{72+2*k}, 16, v{64+k}'); I(f'v_and_b32 v{73+2*k}, 0xffff0000, v{64+k}')
            for k in range(4): I(f'v_lshlrev_b32 v{64+k}, 16, v{68+k}'); I(f'v_and_b32 v{68+k}, 0xffff0000, v{68+k}')
            for k in range(4): I(f'v_add_f32 v{72+2*k}, v{72+2*k}, v{64+k}'); I(f'v_add_f32 v{73+2*k}, v{73+2*k}, v{68+k}')
        else:
            for k in range(8): I(f'v_dot2_f32_bf16 v{72+k}, v{64+(k>>1)}, v{30+(k&1)}, 0')
            for k in range(8): I(f'v_dot2_f32_bf16 v{72+k}, v{68+(k>>1)}, v{30+(k&1)}, v{72+k}')
        for k in range(4): I(f'v_permlane32_swap_b32 v{72+k}, v{76+k}')
        for k in range(4): I(f'v_add_f32 v{72+k}, v{72+k}, v{76+k}')
        if HU7: n0 = e.n; self.hu_store(38, wave=cfg.get('hu7_wave', 7)); e.n = n0 + 2
        for k in range(2): I(f'v_permlane16_swap_b32 v{72+k}, v{74+k}')
        for k in range(2): I(f'v_add_f32 v{72+k}, v{72+k}, v{74+k}')
        I('v_fma_f32 v76, v18, v72, v16'); I('v_fma_f32 v77, v19, v73, v17')
        I('v_mul_f32 v78, v76, v22'); I('v_mul_f32 v79, v77, v23')
        I('v_cvt_pk_bf16_f32 v78, v78, v79'); e.lg = []; I('ds_write_b32 v13, v78')
        steps = []
        steps.append(lambda: [I('v_add_f32 v80, v76, v77'), I('v_mul_f32 v81, v76, v76')])
        steps.append(lambda: [I('v_fmac_f32 v81, v77, v77')])
        for qp in ('quad_perm:[1,0,3,2]', 'quad_perm:[2,3,0,1]', 'row_half_mirror'):
            steps.append(lambda qp=qp: [I(f'v_add_f32_dpp v{r}, v{r}, v{r} {qp} {DPPM}') for r in (80, 81)])
        for w in (16, 32):
            steps.append(lambda: [I('v_mov_b32 v82, v80'), I('v_mov_b32 v83, v81')])
            steps.append(lambda w=w: [I(f'v_permlane{w}_swap_b32 v80, v82'), I(f'v_permlane{w}_swap_b32 v81, v83')])
            steps.append(lambda: [I('v_add_f32 v80, v80, v82'), I('v_add_f32 v81, v81, v83')])
        steps.append(lambda: [I('s_mov_b64 exec, 0x101'), I('ds_write_b64 v24, v[80:81] offset:2048'), self.exec_all()])
        I('ds_read_b128 v[64:67], v85', tag='b0'); I('ds_read_b128 v[68:71], v85 offset:64', tag='b1')
        NP = cfg.get('g3o', 0)
        for st_ in steps[:NP]: st_()
        steps = steps[NP:]
        n = 0
        for s2 in range(2):
            e.wait_lg(f'b{s2}')
            for t in range(8):
                I(f'v_mfma_f32_16x16x32_bf16 {vr(160+4*t,4)}, {vr(96+8*t+4*s2,4)}, {vr(64+4*s2,4)}, {"0" if s2 == 0 else vr(160+4*t,4)}')
                if n < len(steps): steps[n]()
                elif n >= 13: pick(160, 160+4*(n-12), 2*(n-12))
                n += 1
        for t in range(4, 8): pick(160, 160+4*t, 2*t)
        self.exec_all(); I('ds_write_b128 v92, v[160:163]')
        I('s_mov_b32 exec_hi, 0')
        e.barrier()
        I('ds_read_b64 v[80:81], v25 offset:2048', tag='st'); gather(95, 72)
        e.wait_lg('st')
        for qp in ('quad_perm:[1,0,3,2]', 'quad_perm:[2,3,0,1]', 'row_half_mirror'):
            for r in (80, 81): I(f'v_add_f32_dpp v{r}, v{r}, v{r} {qp} {DPPM}')
        I(f'v_mul_f32 v80, {f32(-1/512)}, v80'); I(f'v_fmac_f32 v21, {f32(1/512)}, v81')
        I('v_fma_f32 v21, -v80, v80, v21'); I('v_rsq_f32 v81, v21')
        e.wait_lg()
        I('v_fmac_f32 v72, v80, v88')
        sum8(72, 72)
        I('v_fma_f32 v72, v81, v72, v89')
        I('v_mul_f32 v73, v72, v72'); I('v_fma_f32 v73, v73, s56, v20'); I('v_mul_f32 v73, v73, v72'); I('v_exp_f32 v73, v73')
        I(f'v_mul_f32_dpp v74, v72, v72 row_ror:8 {DPPM}')
        I('v_add_f32 v73, 1.0, v73'); I('v_rcp_f32 v73, v73'); I('v_mul_f32 v74, v74, v73')
        I('v_cvt_pk_bf16_f32 v74, v74, v74')
        I('s_mov_b32 exec_lo, 0x00ff00ff')
        I('ds_write_b16 v28, v74'); self.exec_all()
        e.barrier()
        self.stamp(12)
        I('ds_read_b128 v[64:67], v29'); I('ds_read_b128 v[68:71], v29 offset:64'); e.wait_lg()
        for t in range(4): I(f'v_mfma_f32_16x16x32_bf16 {vr(72+4*t,4)}, {vr(32+8*t,4)}, v[64:67], 0')
        for t in range(4): I(f'v_mfma_f32_16x16x32_bf16 {vr(72+4*t,4)}, {vr(36+8*t,4)}, v[68:71], {vr(72+4*t,4)}')
        for t in range(1, 4): pick(72, 72+4*t, 2*t)
        I('s_mov_b32 exec_lo, 0x00ff00ff'); I('s_mov_b32 exec_hi, 0x00ff00ff'); I('ds_write_b128 v90, v[72:75]')
        I('s_mov_b32 exec_lo, -1'); I('s_mov_b32 exec_hi, 0')
        I('ds_read_b128 v[64:67], v91'); e.wait_lg()
        I('global_store_dwordx4 v26, v[64:67], s[46:47] sc1')
        self.exec_all()
        self.stamp(13)
        e.branch('s_branch', 'L_FIN')

    def stage_fin(self):
        e, I, cfg = self.e, self.I, self.cfg
        if cfg.get('gpf', 1):
            Lp = self.lab('gpf'); pol = '' if cfg.get('gpf', 1) == 2 else 'nt'
            I('s_cmp_ge_u32 s43, 28'); e.branch('s_cbranch_scc1', Lp)
            if cfg.get('gpf3', 0): I('s_cmp_lg_u32 s41, 3'); e.branch('s_cbranch_scc1', Lp)
            self.sleep(cfg.get('gpf_pre', 0))
            self.base(44, P_WU, [(3, 64*3584), (43, 128)])
            self.dma_128(44, 3584, 8, [(3, 8192)], 0, 'pf', pol=pol)
            if cfg.get('gpf_what', 0) == 0:
                self.base(44, P_WD, [(43, 64*1024), (3, 128)])
                self.dma_128(44, 1024, 8, [(3, 8192)], 64*K, 'pf', pol=pol)
            elif cfg.get('gpf_what', 0) == 2:
                self.base(44, P_WG, [(3, 64*3584), (43, 128)], 32*3584)
                self.dma_128(44, 3584, 4, [(3, 8192)], 64*K, 'pf', pol=pol)
            e.wait_vm()
            e.label(Lp); e.vm = []
        if cfg.get('uvpf', 0):
            self.sleep(cfg.get('uvpf_pre', 0))
            for qq in range(4):
                self.base(44, P_WUV, [(3, 16*8192), (43, 256)], qq*128*8192)
                self.dma_256(44, 8192, qq*32768, 'pf', '32', pol='' if cfg['uvpf'] == 2 else 'nt')
            e.wait_vm()
            self.stamp(7)
        I('s_cmp_lg_u32 s3, 0'); e.branch('s_cbranch_scc1', 'L_FIN')
        if cfg.get('pt', 0) & 1: I('v_mov_b32 v9, 0'); I(f'global_load_dword v250, v9, {sp(P_OUT)}')
        I('v_lshrrev_b32 v9, 3, v1'); I('v_bfe_u32 v10, v1, 2, 1'); I('v_and_b32 v11, 3, v1')
        I('v_lshlrev_b32 v12, 12, v9'); I('v_lshl_add_u32 v12, v10, 11, v12'); I('v_lshl_add_u32 v12, v11, 4, v12')
        for k in range(1, 3): I(f'v_add_u32 v{12+k}, {k*32768}, v12')
        I('v_and_b32 v15, 3, v9'); I('v_lshlrev_b32 v15, 12, v15'); I('v_lshl_add_u32 v15, v10, 11, v15'); I('v_lshl_add_u32 v15, v11, 4, v15'); I(f'v_add_u32 v15, {3*32768}, v15')
        I('v_and_b32 v16, 1, v9'); I('v_lshl_add_u32 v16, v16, 1, v10'); I('v_mul_u32_u24 v16, 12288, v16'); I('v_lshl_add_u32 v16, v11, 4, v16'); I(f'v_add_u32 v17, {1536*4}, v16')
        self.base(44, P_WS, [(43, 64)], WS_MODQ + 1024*4)
        I('v_lshlrev_b32 v18, 10, v10'); I('v_lshl_add_u32 v18, v11, 3, v18')
        self.base(46, P_X, [(43, 32)])
        I('global_load_dwordx2 v[20:21], v18, s[46:47]')
        I('s_lshl_b32 s97, s4, 3'); I('s_add_u32 s97, s97, s5'); I('s_sub_u32 s97, s97, 8')
        FM = cfg.get('fin_m', 0)
        if FM:
            self.base(98, P_WS, [(41, 128)], WS_HU5 + 512)
            I('v_and_b32 v19, 7, v1'); I('v_lshlrev_b32 v19, 10, v19')
            self.poll('hu', ['global_load_dword v56, v19, s[98:99] sc1'], [56], cfg.get('fin_pre', 20), loop_sleep=cfg.get('fin_loop', 8))
        else:
            self.base(98, P_WS, [(97, 128)], WS_HU5)
            I('v_mov_b32 v19, 0')
            self.poll('hu', ['global_load_dword v22, v19, s[98:99] sc1'], [22], cfg.get('fin_pre', 20), loop_sleep=4)
            I('v_readfirstlane_b32 s57, v22')
        self.stamp(8)
        self.poll('mg', ['global_load_dwordx4 v[24:27], v16, s[44:45] sc1', 'global_load_dwordx4 v[28:31], v17, s[44:45] sc1'], range(24, 32), 0)
        self.ror_reduce(range(24, 32), [8])
        I('v_and_b32 v23, 0xffff0000, v21'); I('v_lshlrev_b32 v22, 16, v21'); I('v_and_b32 v21, 0xffff0000, v20'); I('v_lshlrev_b32 v20, 16, v20')
        G2 = cfg.get('g2', 0)
        if G2:
            self.base(44, P_WS, [(43, 32)], WS_H5); I('v_lshrrev_b32 v59, 1, v12')
        else: self.base(44, P_WS, [(43, 64)], WS_H5)
        self.base(46, P_OUT, [(43, 32)])
        def wait_until(d):
            LW = self.lab('fw')
            if FM:
                I(f'v_mov_b32 v58, {d}'); e.label(LW)
                I('s_memrealtime s[100:101]'); I('s_waitcnt lgkmcnt(0)'); I('v_sub_u32 v57, s100, v56'); I('v_cmp_lt_u32 vcc, v57, v58'); I(f's_cbranch_vccnz {LW}')
                return
            e.label(LW)
            I('s_memrealtime s[100:101]'); I('s_waitcnt lgkmcnt(0)'); I('s_sub_u32 s6, s100, s57'); I(f's_cmp_lt_u32 s6, {d}'); I(f's_cbranch_scc1 {LW}')
        wait_until(cfg['t_h5'] + cfg.get('fin_h5', 30))
        if G2:
            self.poll('h5', ['global_load_dwordx2 v[34:35], v59, s[44:45] sc1'], [34, 35], 0, loop_sleep=8)
            I('v_lshlrev_b32 v32, 16, v34'); I('v_and_b32 v33, 0xffff0000, v34'); I('v_lshlrev_b32 v34, 16, v35'); I('v_and_b32 v35, 0xffff0000, v35')
        else: self.poll('h5', ['global_load_dwordx4 v[32:35], v12, s[44:45] sc1'], range(32, 36), 0, loop_sleep=8)
        self.stamp(11)
        def red8(b):
            self.ror_reduce(range(b, b+4), [8])
            for w in (16, 32):
                for k in range(4): I(f'v_mov_b32 v{60+k}, v{b+k}')
                for k in range(4): I(f'v_permlane{w}_swap_b32 v{b+k}, v{60+k}')
                for k in range(4): I(f'v_add_f32 v{b+k}, v{b+k}, v{60+k}')
        red8(32)
        for k in range(4): I(f'v_fma_f32 v{20+k}, v{24+k}, v{32+k}, v{20+k}')
        self.base(44, P_WS, [(43, 64)], WS_H7)
        I('v_cmp_gt_u32 vcc, 32, v1'); I('v_cndmask_b32 v19, 0, 1.0, vcc')
        if cfg.get('t_h7b', 0):
            self.base(98, P_WS, [], WS_HU2 + 4096)
            I('v_min_u32 v59, 27, v1'); I('v_lshlrev_b32 v59, 7, v59')
            wait_until(cfg.get('t_h7a', 150))
            self.poll('hu7', ['global_load_dword v56, v59, s[98:99] sc1'], [56], 0, loop_sleep=2)
            wait_until(cfg['t_h7b'])
        else: wait_until(cfg['t_h7'])
        self.poll('h7', [f'global_load_dwordx4 {vr(36+4*k,4)}, v{12+k}, s[44:45] sc1' for k in range(4)], range(36, 52), 0, loop_sleep=cfg.get('h7_loop', 4))
        self.stamp(12)
        for k in range(4): I(f'v_add_f32 v{36+k}, v{36+k}, v{40+k}')
        for k in range(4): I(f'v_fma_f32 v{44+k}, v{48+k}, v19, v{44+k}')
        for k in range(4): I(f'v_add_f32 v{36+k}, v{36+k}, v{44+k}')
        red8(36)
        for k in range(4): I(f'v_fma_f32 v{36+k}, v{28+k}, v{36+k}, v{20+k}')
        I('v_cvt_pk_bf16_f32 v36, v36, v37'); I('v_cvt_pk_bf16_f32 v37, v38, v39')
        if cfg.get('calib') == 2: self.sleep(cfg['calib_t'])
        I('s_mov_b64 exec, 0xff'); I(f'global_store_dwordx2 v18, v[36:37], s[46:47] {["", "sc1", "sc0 sc1", "nt"][cfg.get("outpol", 0)]}'); self.exec_all()
        self.stamp(13)
        e.branch('s_branch', 'L_FIN')

    def role_b(self):
        e, I, cfg = self.e, self.I, self.cfg
        I('s_mov_b32 s38, s2')
        I('s_lshr_b32 s39, s38, 6'); I('s_and_b32 s42, s38, 63')
        for k in range(4): I(f'v_mov_b32 v{16+k}, -1')
        I('s_lshl_b32 s6, s55, 4'); I('v_xor_b32 v20, s6, v6')
        for k in range(1, 4): I(f'v_xor_b32 v{20+k}, {k<<6}, v20')
        LNC = self.lab('nc')
        CB = 94 if not cfg.get('stamps') else 98
        ILV = cfg.get('ilv', 0)
        if ILV == 1:
            self.base(CB, P_CKV, [(39, 8388608), (42, 1024), (3, 4*65536)]); CHS = 32*65536
            for k in range(4): I(f'v_add_u32 v{244+k}, {k*64512}, v{20+k}')
        elif ILV == 2:
            self.ckv_base = lambda: self.base(CB, P_CKV, [(39, 8388608), (42, 4096), (3, 4*65536)])
            CHS = 32*65536
            if not cfg.get('lazy', 0): self.ckv_base()
        elif ILV == 3:
            self.base(CB, P_CKV, [(39, 8388608), (42, 32768), (3, 4096)]); CHS = 32*65536
        else:
            self.base(CB, P_CKV, [(39, 8388608), (42, 131072), (3, 4096)]); CHS = 32768
        VA = 244 if ILV == 1 else 20
        self.sval('s52', [(3, 4096)], L_CKV)
        WIN = cfg.get('ckv_win', 4)
        ckv_next = [0]
        def ckv_issue(upto):
            while ckv_next[0] < min(upto, 16):
                n = ckv_next[0]; ch, k = n >> 2, n & 3
                if k == 0 and ch: I(f's_add_u32 s{CB}, s{CB}, {CHS}'); I(f's_addc_u32 s{CB+1}, s{CB+1}, 0')
                I(f's_add_u32 m0, s52, {ch*32768}')
                I(f'global_load_lds_dwordx4 v{VA+k}, s[{CB}:{CB+1}] offset:{k*1024} nt', tag=f'ckv{n}')
                ckv_next[0] += 1
        if not cfg.get('p1a', 0):
            LCL = self.lab('cl')
            P1Q = cfg.get('p1q', 0)
            if P1Q == 2:
                I('s_lshl_b32 s43, s5, 2'); I('s_and_b32 s6, s4, 3'); I('s_add_u32 s43, s43, s6'); I('s_lshr_b32 s6, s4, 2'); I('s_lshl_b32 s6, s6, 6'); I('s_add_u32 s43, s43, s6')
            else: I('s_mov_b32 s43, s38')
            I('s_cmp_ge_u32 s43, 64'); e.branch('s_cbranch_scc1', LCL)
            if P1Q: I('s_lshr_b32 s56, s43, 4'); I('s_and_b32 s57, s43, 15')
            else: I('s_lshr_b32 s56, s5, 2'); I('s_bfe_u32 s6, s5, 0x10001'); I('s_lshl_b32 s6, s6, 3'); I('s_add_u32 s6, s6, s4'); I('s_lshl_b32 s6, s6, 1'); I('s_and_b32 s57, s5, 1'); I('s_add_u32 s57, s57, s6')
            def p1_after():
                if not cfg.get('p1_early', 0): return 0
                ckv_issue(cfg['p1_early']); return cfg['p1_early']
            def p1_mid():
                if cfg.get('p1bar', 0): I('s_barrier')
                I('s_mov_b32 s63, s52')
                ckv_issue(cfg['p1_first'])
            if P1Q: self.p1_tile(L_MT, L_RED1, after=p1_after, mid=p1_mid if cfg.get('p1_first', 0) else None)
            if cfg.get('p1_first', 0): I('s_mov_b32 s52, s63')
            if not P1Q: self.mod_tile(True, L_MT, L_SC, L_RED1, early=True, after=p1_after)
            self.stamp(12)
            ckv_issue(WIN)
            ckv_next[0] = 0
            e.branch('s_branch', 'L_CKVGO')
            e.sec('early')
            e.label(LCL); e.vm = []; e.lg = ['SMEM']
            if cfg.get('lazy', 0): self.kwait = True; self.ckv_base()
            if cfg.get('clA', 0): e.branch('s_branch', LNC)
            I('s_cmp_ge_u32 s43, 96'); e.branch('s_cbranch_scc1', LNC)
            I('s_sub_u32 s43, s43, 64')
            self.base(44, P_WS, [(43, 16384), (3, 2048)], WS_H2)
            for k in range(2 if not cfg.get('noclean') else 0): I(f'global_store_dwordx4 v6, v[16:19], s[44:45] offset:{k*1024} {POL[cfg.get("c0pol", 0)]}')
            self.base(44, P_WS, [(43, 2048), (3, 256)], WS_HQ2)
            I('s_mov_b64 exec, 0xffff'); I('global_store_dwordx4 v6, v[16:19], s[44:45] sc1'); self.exec_all()
            e.wait_vm(); e.barrier()
            L1 = self.lab('c1')
            I('s_cmp_lg_u32 s3, 0'); e.branch('s_cbranch_scc1', L1)
            I('v_mov_b32 v8, 0'); I('v_mov_b32 v9, 1'); I('s_mov_b64 exec, 1')
            I(f'global_atomic_add v10, v8, v9, {sp(P_DBG)} offset:192 sc0 sc1')
            I('s_waitcnt vmcnt(0)'); self.exec_all()
            I('v_readfirstlane_b32 s6, v10'); I('s_nop 3'); I('s_cmp_lg_u32 s6, 31'); e.branch('s_cbranch_scc1', L1)
            I('v_mov_b32 v9, 0x01010101'); I('s_mov_b64 exec, 1')
            I(f'global_store_dword v8, v9, {sp(P_DBG)} offset:128 sc1'); self.exec_all()
            e.label(L1); e.vm = ['x']
            self.stamp(1)
            self.sleep(cfg.get('bc_pre', 0))
            e.branch('s_branch', 'L_MODDONE')
            e.label(LNC)
        self.sleep(cfg.get('b_pre', 0))
        e.label('L_MODDONE'); e.vm = ['x']; e.lg = ['SMEM']
        self.stamp(2)
        ckv_issue(WIN)
        e.cont()
        e.label('L_CKVGO')
        I('s_mov_b32 s53, s52')
        Q2 = cfg.get('qk2', 0)
        if Q2:
            I('v_and_b32 v8, 3, v2'); I('v_xor_b32 v8, v8, v3'); I('v_lshlrev_b32 v8, 2, v8'); I('v_lshrrev_b32 v9, 2, v2'); I('v_or_b32 v8, v8, v9')
            I('v_lshlrev_b32 v8, 4, v8'); I('v_lshl_add_u32 v24, v2, 10, v8')
            I('s_lshl_b32 s6, s55, 15'); I('v_add_u32 v25, s6, v24')
            self.sval('s6', [(60, 16384)], L_QABS); I('v_add_u32 v24, s6, v24')
        else:
            I('v_and_b32 v8, 3, v4'); I('v_lshlrev_b32 v8, 2, v8'); I('v_bfe_u32 v9, v4, 2, 2'); I('v_or_b32 v8, v8, v9'); I('v_xor_b32 v8, v8, v5')
            I('v_lshlrev_b32 v8, 4, v8'); I('v_lshl_add_u32 v24, v4, 10, v8')
            I('s_lshl_b32 s6, s60, 9'); I('v_add_u32 v24, s6, v24')
            I('s_lshl_b32 s6, s55, 15'); I('v_add_u32 v25, s6, v24')
            I(f'v_add_u32 v24, {L_QABS}, v24')
        I('v_lshrrev_b32 v8, 2, v2'); I('v_lshl_add_u32 v9, v5, 2, v8'); I('v_lshl_or_b32 v8, v8, 2, v5')
        I('v_and_b32 v10, 1, v3'); I('v_lshlrev_b32 v10, 1, v10'); I('v_bfe_u32 v11, v2, 1, 1'); I('v_or_b32 v10, v10, v11')
        I('s_lshl_b32 s6, s62, 3'); I('v_or_b32 v10, s6, v10')
        I('v_xor_b32 v10, v10, v8'); I('v_lshlrev_b32 v10, 4, v10'); I('v_lshl_add_u32 v10, v9, 10, v10')
        I('v_and_b32 v11, 1, v2'); I('v_lshl_add_u32 v10, v11, 3, v10')
        I('s_lshl_b32 s6, s61, 8'); I('v_add_u32 v10, s6, v10')
        for u in range(2):
            for jh in range(2):
                r = 26 + 2*u + jh
                I(f'v_xor_b32 v{r}, {(u<<6)|(jh<<5)}, v10')
                if jh: I(f'v_add_u32 v{r}, 8192, v{r}')
        QA, PV = (32, 160) if Q2 else (32, 96)
        ACC, ML = (96, 246) if Q2 else (208, 200)
        SENT = cfg.get('h3sent', 1)
        S6 = SENT == 6
        S2 = SENT >= 2; S3 = SENT in (3, 4)
        if S2: SENT = 0
        CLK = cfg.get('t_h3f', 0)
        def do_clears():
            for k in range(4): I(f'v_mov_b32 v{240+k}, -1')
            I('v_lshrrev_b32 v14, 3, v1'); I('v_lshlrev_b32 v14, 10, v14'); I('v_and_b32 v13, 7, v1'); I('v_lshl_add_u32 v14, v13, 4, v14')
            self.base(46, P_WS, [(38, 32768), (3, 128)], WS_H3)
            for q in range(4):
                I(f'global_store_dwordx4 v14, v[240:243], s[46:47] {POL[cfg.get("clrpol", 0)]}', tag='clr')
                if q < 3: I('v_add_u32 v14, 8192, v14')
        def do_wuv():
            self.base(56, P_WUV, [(41, 128*8192), (3, 16*8192), (40, 256)])
            self.dma_256(56, 8192, L_WUV, 'wuv', '32', vt=12)
        self.base(44, P_WS, [(39, 32768), (3, 4096)], WS_H2)
        h2loads = [f'global_load_dwordx4 {vr(160+4*k,4)}, v6, s[44:45] offset:{k*1024} sc1' for k in range(4)]
        SPEC = cfg.get('t_spec', 0); H2D = cfg.get('h2dma', 0)
        TL = cfg.get('t_late', 0); L_GOF = 20*K
        for ch in range(4):
            if TL and ch == 3:
                LO, LW0, LCK, LGO, LZ, LRI = [self.lab(x) for x in ('tlo', 'tlw', 'tlc', 'tlg', 'tlz', 'tlr')]
                e.wait_vm('ep'); saved = list(e.vm)
                self.flagcheck_finish(1, 17)
                I('v_readfirstlane_b32 s63, v18'); I('s_memrealtime s[100:101]'); I(f'v_mov_b32 v16, {L_GOF}'); I('s_waitcnt lgkmcnt(0)')
                I('s_cmp_eq_u32 s63, 0'); I('s_cselect_b32 s63, s100, s63')
                I('s_cmp_lg_u32 s3, 0'); I(f's_cbranch_scc1 {LO}')
                self.base(46, P_WS, [], WS_HU2); I(f's_movk_i32 s43, {TL}')
                I('v_and_b32 v15, 7, v1'); I('v_lshlrev_b32 v15, 7, v15'); I(f'v_mov_b32 v13, {cfg["t_h2"]}')
                e.label(LRI, flush=False)
                I('global_load_dword v14, v15, s[46:47] sc1')
                e.label(LW0, flush=False)
                I('s_memrealtime s[100:101]'); I('s_getreg_b32 s7, hwreg(HW_REG_IB_STS, 0, 4)'); I('s_waitcnt lgkmcnt(0)')
                I('s_sub_u32 s6, s100, s63'); I('s_cmp_ge_u32 s6, s43'); I(f's_cbranch_scc1 {LGO}')
                I('s_cmp_lg_u32 s7, 0'); I(f's_cbranch_scc1 {LW0}')
                I('s_movk_i32 s43, 0x4000')
                I('v_cmp_eq_u32 vcc, -1, v14'); I(f's_cbranch_vccnz {LRI}')
                I('v_sub_u32 v19, s100, v14'); I('v_cmp_lt_u32 vcc, v19, v13'); I(f's_cbranch_vccnz {LW0}')
                e.label(LGO, flush=False)
                I('v_mov_b32 v19, 1'); I('ds_write_b32 v16, v19'); I(f's_branch {LZ}')
                e.label(LO, flush=False)
                I('ds_read_b32 v19, v16'); I('s_memrealtime s[100:101]'); I('s_waitcnt lgkmcnt(0)')
                I('v_cmp_ne_u32 vcc, 0, v19'); I(f's_cbranch_vccnz {LZ}')
                I('s_sub_u32 s6, s100, s63'); I('s_cmp_lt_u32 s6, 0x4100'); I(f's_cbranch_scc1 {LO}')
                e.label(LZ, flush=False)
                self.stamp(10)
                I(f's_mov_b32 s54, {SPIN}'); self.sval('s63', [(3, 4096)], L_QABS); I('s_mov_b32 m0, s63')
                for k in range(4): I(f'global_load_lds_dwordx4 v{20+k}, s[44:45] offset:{k*1024} sc1')
                I('s_waitcnt vmcnt(4)'); e.vm = []; e.lg = ['SMEM']
            if SPEC and ch == 3:
                LE, LJ, LS = self.lab('spe'), self.lab('spj'), self.lab('sps')
                e.wait_vm('ep')
                I('v_readfirstlane_b32 s6, v17'); I('v_readfirstlane_b32 s63, v18'); I('s_memrealtime s[100:101]'); I('s_mov_b32 s43, 0')
                I('s_cmp_lg_u32 s6, 0x01010101'); I(f's_cbranch_scc1 {LE}')
                I('s_cmp_eq_u32 s63, 0'); I(f's_cbranch_scc1 {LE}')
                if not cfg.get('spec_vm', 0):
                    I('s_waitcnt lgkmcnt(0)'); I('s_sub_u32 s6, s100, s63'); I(f's_cmp_lt_u32 s6, {SPEC - cfg.get("t_lead", 75)}'); I(f's_cbranch_scc1 {LE}')
                e.label(LS, flush=False)
                if cfg.get('spec_vm', 0) == 1:
                    I('s_getreg_b32 s6, hwreg(HW_REG_IB_STS, 0, 4)'); I('s_cmp_eq_u32 s6, 0'); I(f's_cbranch_scc1 {LE}')
                I('s_memrealtime s[100:101]'); I('s_waitcnt lgkmcnt(0)'); I('s_sub_u32 s6, s100, s63'); I(f's_cmp_lt_u32 s6, {SPEC}'); I(f's_cbranch_scc1 {LS}')
                for ld in h2loads: I(ld)
                I('s_mov_b32 s43, 1'); I('s_waitcnt vmcnt(4)'); I(f's_branch {LJ}')
                e.label(LE, flush=False)
                I('s_waitcnt vmcnt(0)')
                e.label(LJ, flush=False); e.vm = []; e.lg = ['SMEM']
            for k in range(4):
                if S2 and not S3 and not S6 and 4*ch+k == cfg.get('clr_k', 0): do_clears()
                e.wait_vm(f'ckv{4*ch+k}'); ckv_issue(4*ch + k + 1 + (WIN if 4*ch+k < cfg.get('ckv_sw', 99) else cfg.get('ckv_win2', 6)))
            if cfg.get('chst'): self.stamp([7, 11, 14, 1][ch])
            if cfg.get('go_early', 0) and ch == 2:
                I('v_and_b32 v15, 7, v1'); I('v_lshlrev_b32 v15, 7, v15'); I(f'v_add_u32 v15, {WS_HU2}, v15'); I('v_mov_b32 v14, -1')
                I('s_cmp_eq_u32 s3, 0'); I('s_cselect_b64 exec, -1, 0')
                I(f'global_load_dword v14, v15, {sp(P_WS)} sc1'); self.exec_all(); e.vm.pop()
            if (cfg.get('pt', 0) & 2) and ch == cfg.get('pt_ch', 0):
                Lp = self.lab('pt'); saved = list(e.vm)
                I('s_cmp_lg_u32 s3, 5'); e.branch('s_cbranch_scc1', Lp, flush=False)
                I('v_lshlrev_b32 v8, 16, v1'); I(f'v_add_u32 v8, {WS_H3}, v8'); I(f'global_load_dword v250, v8, {sp(P_WS)} sc1')
                e.label(Lp, flush=False); e.vm = saved
            if ch == (1 if (SPEC or TL) else 2):
                if cfg.get('flag1', 0):
                    I('v_mov_b32 v17, 0x01010101'); I('s_cmp_eq_u32 s3, 0'); I('s_cselect_b64 exec, -1, 0')
                self.flagcheck_issue(1, 17)
                if cfg.get('flag1', 0): self.exec_all(); e.vm.pop()
            if (SPEC or TL) and ch == 1: I(f'global_load_dword v18, v8, {sp(P_DBG)} offset:-128 sc1', tag='ep')
            e.barrier()
            if TL and ch == 1: I(f'v_mov_b32 v16, {L_GOF}'); I('v_mov_b32 v19, 0'); I('ds_write_b32 v16, v19')
            def chfrags(ch=ch):
                L = self.lab('qa')
                I(f's_cmp_lg_u32 s55, {ch}'); e.branch('s_cbranch_scc1', L)
                if Q2:
                    for j in range(4):
                        I(f'v_xor_b32 v{8+(j&1)}, {j<<4}, v25')
                        for kq in range(4):
                            for kt in range(2): I(f'ds_read_b128 {vr(QA+8*(4*kq+j)+4*kt,4)}, v{8+(j&1)} offset:{kq*256+kt*16384}')
                else:
                    for k7 in range(8):
                        I(f'v_xor_b32 v{8+(k7&1)}, {k7<<5}, v25')
                        I(f'ds_read_b128 {vr(QA+4*k7,4)}, v{8+(k7&1)}'); I(f'ds_read_b128 {vr(QA+4*(k7+8),4)}, v{8+(k7&1)} offset:256')
                e.label(L)
                for ks in (2*ch, 2*ch+1):
                    for u in range(2):
                        for jh in range(2):
                            if Q2: I(f'ds_read_b64_tr_b16 {vr(PV+32*u+4*ks+2*jh,2)}, v{26+2*u+(ks&1)} offset:{(ch&1)*32768+jh*16384}')
                            else: I(f'ds_read_b64_tr_b16 {vr(PV+32*u+4*ks+2*jh,2)}, v{26+2*u+jh} offset:{(ks&3)*16384}')
            if not (ch == 3 and cfg.get('late3', 0) and not TL): chfrags()
            if ch == 1:
                for r in range(26, 30): I(f'v_add_u32 v{r}, 65536, v{r}')
        self.stamp(3)
        if SPEC:
            LB, LC, LP, DP = self.lab('spb'), self.lab('spc'), self.lab('h2'), self.lab('h2d')
            I('s_cmp_eq_u32 s43, 1'); e.branch('s_cbranch_scc1', LB)
            e.vm = []; self.flagcheck_finish(1, 17)
            if cfg.get('spec_vm', 0) != 2: self.go_wait(cfg['t_h2'], nobar=True)
            e.label(LB)
            if cfg.get('spec_vm', 0) != 2: e.barrier()
            self.stamp(10)
            I(f's_mov_b32 s54, {SPIN}')
            I('s_cmp_eq_u32 s43, 1'); e.branch('s_cbranch_scc1', LC)
            e.label(LP)
            for ld in h2loads: I(ld)
            e.label(LC, flush=False)
            e.wait_vm()
            r_ = self.maxtree(range(160, 176), 8)
            I(f'v_cmp_eq_u32 vcc, -1, v{r_}'); I(f's_cbranch_vccz {DP}')
            if cfg.get('fine'): self.stamp(7)
            I(f's_sleep {cfg.get("h2_loop", 8)}'); I('s_sub_u32 s54, s54, 1'); I(f's_cbranch_scc0 {LP}')
            e.label(DP, flush=False)
        else:
            if not TL:
                e.vm = ['flag']; self.flagcheck_finish(1, 17)
                if cfg.get('wuv_pre', 1): do_wuv()
                if SENT and cfg.get('clr_at', 1) == 0: do_clears()
                self.go_wait(cfg['t_h2'])
                self.stamp(10)
            if S6 and cfg.get('clr_at', 1) == 3:
                Dh2 = self.lab('h2ok')
                e.vm = []
                for ld in h2loads: I(ld, tag='h2')
                do_clears()
                e.wait_vm('h2')
                r_ = self.maxtree(range(160, 176), 8)
                I(f'v_cmp_eq_u32 vcc, -1, v{r_}'); I(f's_cbranch_vccz {Dh2}')
                self.poll('h2', h2loads, range(160, 176), 0, loop_sleep=cfg.get('h2_loop', 8))
                e.label(Dh2, flush=False); e.vm = ['clr']*4
            elif H2D:
                if TL: e.branch('s_branch', 'L_H2W')
                if not TL: I(f's_mov_b32 s54, {SPIN}'); self.sval('s63', [(3, 4096)], L_QABS)
                if cfg.get('late3', 0) and not TL:
                    I('s_mov_b32 m0, s63')
                    for k in range(4): I(f'global_load_lds_dwordx4 v{20+k}, s[44:45] offset:{k*1024} {"" if cfg.get("h2plain", 0) else "sc1"}')
                    chfrags()
                    e.branch('s_branch', 'L_H2W')
                e.label('L_H2R')
                I('s_mov_b32 m0, s63')
                for k in range(4): I(f'global_load_lds_dwordx4 v{20+k}, s[44:45] offset:{k*1024} sc1')
                e.label('L_H2W', flush=False)
                if Q2:
                    I('v_lshlrev_b32 v15, 4, v2'); I('s_lshl_b32 s6, s60, 8'); I('v_add_u32 v15, s6, v15'); I('s_lshl_b32 s6, s55, 2'); I('v_add_u32 v30, s6, v15'); I('v_xor_b32 v31, 256, v15')
                    I('v_mov_b32 v249, 0x7f800000')
                    I('v_lshrrev_b32 v252, 1, v3'); I('v_lshlrev_b32 v252, 10, v252'); I('v_and_b32 v13, 1, v3'); I('v_lshl_add_u32 v252, v13, 9, v252'); I('v_add_u32 v252, v252, v15'); I('s_lshl_b32 s6, s55, 11'); I('v_add_u32 v252, s6, v252')
                    e.wait_lg()
                    for j, ar in enumerate([8, 14, 10, 11]): I(f'v_xor_b32 v{ar}, {j<<4}, v24')
                    if cfg.get('h2chk', 0): I('v_add_u32 v13, s63, v6')
                e.wait_vm()
                if cfg.get('h2chk', 0):
                    Dk = self.lab('h2c')
                    for k in range(4): I(f'ds_read_b128 {vr(224+4*k,4)}, v13 offset:{k*1024}', tag=f'c{k}')
                    for k in range(4):
                        e.wait_lg(f'c{k}'); q = 224 + 4*k
                        if k == 0: I(f'v_max3_u32 v248, v{q}, v{q+1}, v{q+2}'); I(f'v_max_u32 v248, v248, v{q+3}')
                        else: I(f'v_max3_u32 v248, v248, v{q}, v{q+1}'); I(f'v_max3_u32 v248, v248, v{q+2}, v{q+3}')
                    I('v_cmp_eq_u32 vcc, -1, v248'); I(f's_cbranch_vccz {Dk}')
                    I(f's_sleep {cfg.get("h2_loop", 8)}'); I('s_sub_u32 s54, s54, 1'); I('s_cbranch_scc0 L_H2R')
                    e.label(Dk, flush=False)
            else:
                self.poll('h2', h2loads, range(160, 176), 0, loop_sleep=cfg.get('h2_loop', 8))
        self.stamp(4)
        if CLK:
            Lf = self.lab('h3c')
            I('s_cmp_lg_u32 s3, 7'); e.branch('s_cbranch_scc1', Lf, flush=False)
            I('s_memrealtime s[100:101]')
            self.base(58, P_WS, [(38, 16)], WS_FL2)
            I('v_lshlrev_b32 v16, 11, v1'); I('s_waitcnt lgkmcnt(0)'); I('s_and_b32 s100, s100, 0xfffffffe'); I('v_mov_b32 v17, s100')
            I('s_mov_b64 exec, 0xff'); I('global_store_dword v16, v17, s[58:59] sc1'); self.exec_all()
            e.label(Lf, flush=False); e.vm = []
        if S2:
            Lf = self.lab('h3f')
            I('s_cmp_lg_u32 s3, 7'); e.branch('s_cbranch_scc1', Lf, flush=False)
            I('s_memrealtime s[100:101]')
            self.base(58, P_WS, [(38, 16)], WS_FL)
            saved = list(e.vm)
            I('v_lshlrev_b32 v16, 11, v1'); I('s_waitcnt lgkmcnt(0)'); I('s_and_b32 s100, s100, 0xfffffffe'); I('v_mov_b32 v17, s100')
            I('s_mov_b64 exec, 0xff'); I('global_store_dword v16, v17, s[58:59] sc1'); self.exec_all()
            e.label(Lf, flush=False); e.vm = saved
        if not H2D:
            self.sval('s6', [(3, 4096)], L_QABS)
            for k in range(4):
                I(f'v_add_u32 v{8+k}, s6, v{20+k}')
                I(f'ds_write_b128 v{8+k}, {vr(160+4*k,4)} offset:{k*1024}')
        e.barrier()
        if cfg.get('fine'): self.stamp(11); e.wait_lg()
        if Q2:
            assert H2D
            CHK = cfg.get('h2chk', 0)
            QR = [224, 228, 232, 236, 16]
            AR = [8, 14, 10, 11]
            def qb(ks): return QR[ks % 5]
            def qrd(ks): I(f'ds_read_b128 {vr(qb(ks),4)}, v{AR[ks&3]} offset:{(ks>>2)*256}', tag=f'qb{ks}')
            for j in range(5): qrd(j)
            for ks in range(16):
                e.wait_lg(f'qb{ks}')
                for kt in range(2):
                    I(f'v_mfma_f32_16x16x32_bf16 {vr(240+4*kt,4)}, {vr(QA+8*ks+4*kt,4)}, {vr(qb(ks),4)}, {"0" if ks == 0 else vr(240+4*kt,4)}')
                q = qb(ks)
                if CHK: pass
                elif ks == 0: I(f'v_max3_u32 v248, v{q}, v{q+1}, v{q+2}'); I(f'v_max_u32 v248, v248, v{q+3}')
                else: I(f'v_max3_u32 v248, v248, v{q}, v{q+1}'); I(f'v_max3_u32 v248, v248, v{q+2}, v{q+3}')
                if ks + 5 < 16: qrd(ks + 5)
                if ks == cfg.get('wuv_at', 7): do_wuv()
            if not CHK: I('v_cmp_eq_u32 vcc, -1, v248')
            I('v_max3_f32 v224, v240, v241, v242'); I('v_max3_f32 v225, v244, v245, v246'); I('v_max3_f32 v224, v224, v243, v247'); I('v_max_f32 v224, v224, v225')
            if not CHK: I('v_cndmask_b32 v224, v224, v249, vcc')
            self.cross(16, 224, 225, 'max'); self.cross(32, 224, 225, 'max')
            I(f'ds_write_b32 v30, v224 offset:{L_MAX}')
            def wuv_half(lo):
                Lw = self.lab('wv')
                I('s_cmp_ge_u32 s3, 4' if lo else 's_cmp_lt_u32 s3, 4'); e.branch('s_cbranch_scc1', Lw)
                do_wuv()
                if lo: I(f's_add_u32 s56, s56, {64*8192}'); I('s_addc_u32 s57, s57, 0')
                else: I(f's_sub_u32 s56, s56, {64*8192}'); I('s_subb_u32 s57, s57, 0')
                self.dma_256(56, 8192, L_WUV + (4*4096 if lo else -4*4096), 'wuv', '32', vt=12)
                e.label(Lw)
            if cfg.get('wuv_at') == 99: wuv_half(True)
            if cfg.get('fine'): self.stamp(14)
            e.barrier()
            if cfg.get('fine'): self.stamp(2)
            if CHK:
                I(f'ds_read_b128 v[228:231], v15 offset:{L_MAX}'); e.wait_lg()
                I('v_max3_f32 v224, v228, v229, v230'); I('v_max_f32 v224, v224, v231')
                for k in range(8): I(f'v_sub_f32 v{240+k}, v{240+k}, v224')
            else:
                I(f'ds_read_b128 v[228:231], v15 offset:{L_MAX}'); I(f'ds_read_b128 v[232:235], v31 offset:{L_MAX}')
                e.wait_lg()
                I('v_max3_f32 v224, v228, v229, v230'); I('v_max3_f32 v225, v232, v233, v234'); I('v_max_f32 v224, v224, v231'); I('v_max3_f32 v225, v225, v235, v224')
                for k in range(8): I(f'v_sub_f32 v{240+k}, v{240+k}, v224')
                Dk = self.lab('h2k')
                I('v_cmp_eq_u32 vcc, v249, v225'); I(f's_cbranch_vccz {Dk}')
                n0 = e.n
                I(f's_sleep {cfg.get("h2_loop", 8)}'); I('s_sub_u32 s54, s54, 1'); I('s_cbranch_scc0 L_H2R')
                e.label(Dk, flush=False); e.n = n0
            for k in range(8): I(f'v_exp_f32 v{240+k}, v{240+k}')
            for k in range(4): I(f'v_cvt_pk_bf16_f32 v{228+k}, v{240+2*k}, v{241+2*k}')
            I(f'ds_write_b128 v252, v[228:231] offset:{L_P}')
            LS = cfg.get('latesum', 0)
            sums = [lambda: [I(f'v_add_f32 v{240+k}, v{240+k}, v{244+k}') for k in range(4)],
                    lambda: [I('v_add_f32 v240, v240, v241'), I('v_add_f32 v242, v242, v243')],
                    lambda: [I('v_add_f32 v240, v240, v242')],
                    lambda: self.cross(16, 240, 241), lambda: self.cross(32, 240, 241),
                    lambda: I(f'ds_write_b32 v30, v240 offset:{L_SUM}')]
            if not LS:
                for f_ in sums: f_()
        if not Q2:
            def qb(ks): return 160 + 4*ks if ks < 8 else 208 + 4*(ks-8)
            for k7 in range(8):
                I(f'v_xor_b32 v{8+(k7&3)}, {k7<<5}, v24')
                I(f'ds_read_b128 {vr(qb(k7),4)}, v{8+(k7&3)}', tag=f'qb{k7}'); I(f'ds_read_b128 {vr(qb(k7+8),4)}, v{8+(k7&3)} offset:256', tag=f'qb{k7+8}')
            order = []
            for k7 in range(8): order += [k7, k7+8]
            for n, ks in enumerate(order):
                e.wait_lg(f'qb{ks}')
                I(f'v_mfma_f32_32x32x16_bf16 v[192:207], {vr(QA+4*ks,4)}, {vr(qb(ks),4)}, {"0" if n == 0 else "v[192:207]"}')
                if H2D:
                    q = qb(ks)
                    if n == 0: I(f'v_max3_u32 v248, v{q}, v{q+1}, v{q+2}'); I(f'v_max_u32 v248, v248, v{q+3}')
                    else: I(f'v_max3_u32 v248, v248, v{q}, v{q+1}'); I(f'v_max3_u32 v248, v248, v{q+2}, v{q+3}')
                if n == cfg.get('wuv_at', 7) and not cfg.get('wuv_pre', 1): do_wuv()
                if n == cfg.get('clr_n', 2) and (SENT or S6) and cfg.get('clr_at', 1) == 1: do_clears()
            I('s_lshl_b32 s6, s3, 11'); I('v_add_u32 v8, s6, v6'); I('s_xor_b32 s6, s6, 8192'); I('v_add_u32 v9, s6, v6')
            LA, LB = self.lab('x0'), self.lab('x1')
            I('s_cmp_eq_u32 s60, 0'); e.branch('s_cbranch_scc1', LA)
            I(f'ds_write_b128 v8, v[192:195] offset:{L_XCH}'); I(f'ds_write_b128 v8, v[196:199] offset:{L_XCH+1024}')
            for k in range(8): I(f'v_mov_b32 v{240+k}, v{200+k}')
            e.branch('s_branch', LB)
            e.label(LA)
            I(f'ds_write_b128 v8, v[200:203] offset:{L_XCH}'); I(f'ds_write_b128 v8, v[204:207] offset:{L_XCH+1024}')
            for k in range(8): I(f'v_mov_b32 v{240+k}, v{192+k}')
            if cfg.get('wuv_at', 7) == 99:
                do_wuv()
                I(f's_add_u32 s56, s56, {64*8192}'); I('s_addc_u32 s57, s57, 0')
                self.dma_256(56, 8192, L_WUV + 4*4096, 'wuv', '32', vt=12)
                I('s_lshl_b32 s6, s3, 11'); I('s_xor_b32 s6, s6, 8192'); I('v_add_u32 v9, s6, v6')
            e.label(LB)
            if cfg.get('fine'): self.stamp(14)
            e.barrier()
            if cfg.get('fine'): self.stamp(1)
            I(f'ds_read_b128 v[192:195], v9 offset:{L_XCH}'); I(f'ds_read_b128 v[196:199], v9 offset:{L_XCH+1024}')
            I('v_lshlrev_b32 v10, 5, v4'); I('s_lshl_b32 s6, s3, 2'); I('v_add_u32 v11, s6, v10')
            if H2D: I('v_cmp_eq_u32 vcc, -1, v248'); I('v_mov_b32 v249, 0x7f800000')
            e.wait_lg()
            for k in range(8): I(f'v_add_f32 v{192+k}, v{192+k}, v{240+k}')
            I('v_max3_f32 v200, v192, v193, v194'); I('v_max3_f32 v201, v195, v196, v197'); I('v_max3_f32 v200, v200, v198, v199'); I('v_max_f32 v200, v200, v201')
            if H2D: I('v_cndmask_b32 v200, v200, v249, vcc')
            self.cross(32, 200, 201, 'max')
            I(f'ds_write_b32 v11, v200 offset:{L_MAX}')
            e.barrier()
            if cfg.get('fine'): self.stamp(2)
            I(f'ds_read_b128 v[240:243], v10 offset:{L_MAX}'); I(f'ds_read_b128 v[244:247], v10 offset:{L_MAX+16}')
            I('s_lshl_b32 s6, s55, 1'); I('s_add_u32 s6, s6, s60'); I('s_lshl_b32 s6, s6, 10'); I('v_add_u32 v12, s6, v6')
            e.wait_lg()
            I('v_max3_f32 v200, v240, v241, v242'); I('v_max3_f32 v204, v244, v245, v246'); I('v_max3_f32 v200, v200, v243, v247'); I('v_max_f32 v200, v200, v204')
            if H2D:
                Dk = self.lab('h2k')
                I('v_cmp_eq_u32 vcc, v249, v200'); I(f's_cbranch_vccz {Dk}')
                n0 = e.n
                I(f's_sleep {cfg.get("h2_loop", 8)}'); I('s_sub_u32 s54, s54, 1'); I('s_cbranch_scc0 L_H2R')
                e.label(Dk, flush=False); e.n = n0
            for k in range(8): I(f'v_sub_f32 v{192+k}, v{192+k}, v200')
            for k in range(8): I(f'v_exp_f32 v{192+k}, v{192+k}')
            for k in range(4): I(f'v_cvt_pk_bf16_f32 v{204+k}, v{192+2*k}, v{193+2*k}')
            I(f'ds_write_b128 v12, v[204:207] offset:{L_P}')
            for k in range(4): I(f'v_add_f32 v{192+k}, v{192+k}, v{196+k}')
            I('v_add_f32 v192, v192, v193'); I('v_add_f32 v194, v194, v195'); I('v_add_f32 v192, v192, v194')
            self.cross(32, 192, 193)
            I(f'ds_write_b32 v11, v192 offset:{L_SUM}')
        e.wait_vm('clr')
        e.barrier()
        self.stamp(5); e.wait_lg()
        for ks in range(8): I(f'ds_read_b128 {vr(32+4*ks,4)}, v6 offset:{L_P+ks*1024}', tag=f'p{ks}')
        if CLK:
            self.base(58, P_WS, [(4, 2048), (3, 256)], WS_FL2)
            I('v_lshlrev_b32 v16, 4, v2')
            I('global_load_dword v248, v16, s[58:59] sc1', tag='fl')
        if S2:
            if S3:
                self.base(58, P_WS, [(4, 2048)], WS_FL)
                I('v_lshlrev_b32 v16, 4, v2'); I('s_lshl_b32 s6, s3, 8'); I('v_add_u32 v16, s6, v16')
                I('s_mov_b64 exec, 0xffff'); I(f'v_add_u32 v16, {WS_FL2-WS_FL}, v16')
                I('s_lshl_b32 s6, s38, 4'); I(f's_add_u32 s6, s6, {WS_FL2-WS_FL}')
                I('s_mov_b32 exec_lo, 0'); I('s_mov_b32 exec_hi, -1'); I('v_mov_b32 v16, s6'); self.exec_all()
            elif S6:
                self.base(58, P_WS, [(4, 2048), (60, 1024)], WS_FL)
                I('v_mov_b32 v16, v6')
            else:
                self.base(58, P_WS, [(4, 2048), (3, 256)], WS_FL)
                I('v_lshlrev_b32 v16, 4, v2')
            I('global_load_dword v17, v16, s[58:59] sc1', tag='fl')
        L = self.lab('st')
        saved_lg = list(e.lg); saved_vm = list(e.vm)
        LS = Q2 and cfg.get('latesum', 0)
        def w7stats():
            I('v_lshlrev_b32 v8, 4, v4')
            I(f'ds_read_b128 v[224:227], v8 offset:{L_SUM}'); I(f'ds_read_b128 v[228:231], v8 offset:{L_MAX}')
            I('s_waitcnt lgkmcnt(0)')
            I('v_add_f32 v224, v224, v225'); I('v_add_f32 v226, v226, v227'); I('v_max3_f32 v228, v228, v229, v230'); I(f'v_add_f32 v{ML+1}, v224, v226'); I(f'v_max_f32 v{ML}, v228, v231')
        if not LS: I('s_cmp_lg_u32 s3, 7'); e.branch('s_cbranch_scc1', L)
        if LS: pass
        elif Q2: w7stats()
        else:
            I(f'ds_read_b128 v[64:67], v10 offset:{L_SUM}'); I(f'ds_read_b128 v[68:71], v10 offset:{L_SUM+16}')
            I('v_lshlrev_b32 v8, 9, v4')
            self.base(44, P_WS, [(39, 16384), (42, 8)], WS_ST)
            I('s_waitcnt lgkmcnt(0)')
            for k in range(4): I(f'v_add_f32 v{64+k}, v{64+k}, v{68+k}')
            I('v_add_f32 v64, v64, v65'); I('v_add_f32 v66, v66, v67'); I('v_add_f32 v201, v64, v66')
        REC = cfg.get('h3rec', 0)
        if not REC:
            I('s_mov_b32 exec_hi, 0')
            I('global_store_dwordx2 v8, v[200:201], s[44:45] sc1')
            self.exec_all()
        e.label(L); e.lg = saved_lg; e.vm = saved_vm
        if cfg.get('pv_prio'):
            L = self.lab('pr')
            I('s_cmp_ge_u32 s3, 4'); e.branch('s_cbranch_scc1', L); I('s_setprio 2'); e.label(L)
        if Q2 and cfg.get('wuv_at') == 98: wuv_half(False)
        for ks in range(8):
            e.wait_lg(f'p{ks}')
            for u in range(2):
                I(f'v_mfma_f32_32x32x16_bf16 {vr(ACC+16*u,16)}, {vr(32+4*ks,4)}, {vr(PV+32*u+4*ks,4)}, {"0" if ks == 0 else vr(ACC+16*u,16)}')
                if LS and 0 <= 2*ks + u - 10 < len(sums): sums[2*ks + u - 10]()
        I('v_lshlrev_b32 v8, 12, v5'); I('v_lshl_add_u32 v8, v4, 2, v8')
        for q in range(1, 4): I(f'v_add_u32 v{8+q}, {q*8192}, v8')
        self.base(44, P_WS, [(38, 32768), (3, 128)], WS_H3)
        if not S2:
            self.base(58, P_WS, [(38, 16)], WS_FL)
            I('v_lshlrev_b32 v16, 11, v1'); I('v_mov_b32 v17, 0')
        w7l = ['global_load_dwordx2 v[56:57], v7, s[56:57] sc1', 'global_load_dwordx2 v[58:59], v18, s[56:57] sc1']
        if SENT:
            self.base(56, P_WS, [(40, 512)], WS_ST); I('v_add_u32 v18, 16384, v7')
        if S3:
            Lo, Do = self.lab('own'), self.lab('ownd')
            I(f's_mov_b32 s54, {SPIN}'); I('s_waitcnt vmcnt(1)')
            I('s_cmp_eq_u32 s3, 7'); I(f's_cbranch_scc1 {Lo}'); I('s_waitcnt vmcnt(0)')
            e.label(Lo, flush=False)
            I('v_cmp_eq_u32 vcc, -1, v17'); I('s_nop 3'); I('s_cmp_eq_u32 vcc_hi, 0'); I(f's_cbranch_scc1 {Do}')
            I('s_sleep 4'); I('global_load_dword v17, v16, s[58:59] sc1'); I('s_waitcnt vmcnt(0)')
            I('s_sub_u32 s54, s54, 1'); I(f's_cbranch_scc0 {Lo}')
            e.label(Do, flush=False); e.vm = []
        for r in range(16):
            I(f'v_cvt_pk_bf16_f32 v{64+r}, v{ACC+r}, v{ACC+16+r}')
            if r == 0 and SENT:
                Lw = self.lab('w7'); saved = list(e.vm)
                I('s_cmp_lg_u32 s3, 7'); e.branch('s_cbranch_scc1', Lw, flush=False)
                for ld in w7l: I(ld)
                e.label(Lw, flush=False); e.vm = saved
            I(f'global_store_dword v{8+(r>>2)}, v{64+r}, s[44:45] offset:{(r&3)*1024} {POL[cfg.get("h3pol", 0)]}', tag='h3')
        if SENT:
            Lw, Dw = self.lab('w7b'), self.lab('w7ok'); saved = list(e.vm)
            I('s_cmp_lg_u32 s3, 7'); e.branch('s_cbranch_scc1', Lw, flush=False)
            I('s_waitcnt vmcnt(16)')
            r_ = self.maxtree([56, 57, 58, 59], 13)
            I(f'v_cmp_eq_u32 vcc, -1, v{r_}'); I(f's_cbranch_vccz {Dw}')
            self.poll('st', w7l, [56, 57, 58, 59], 0, t=13)
            e.label(Dw, flush=False)
            I(f'v_add_u32 v13, {L_EST2}, v7'); I('ds_write_b64 v13, v[56:57]'); I('ds_write_b64 v13, v[58:59] offset:512')
            e.label(Lw); e.vm = saved
        if cfg.get('pv_prio'): I('s_setprio 0')
        self.stamp(6)
        if cfg.get('wuv_at') == 97: do_wuv()
        self.tr_base_256(18, L_WUV)
        I('v_lshlrev_b32 v19, 3, v3'); I('s_lshl_b32 s6, s55, 7'); I('v_add_u32 v19, s6, v19')
        self.base(56, P_WS, [(60, 16384), (40, 512)], WS_ST)
        I('v_lshlrev_b32 v9, 15, v3'); I('v_lshl_add_u32 v9, v2, 4, v9')
        for k in range(1, 4): I(f'v_add_u32 v{9+k}, {k*4*32768}, v9')
        self.base(44, P_WS, [(3, 16*32768), (40, 1024), (41, 256)], WS_H3)
        I('v_lshlrev_b32 v13, 4, v2'); I('v_lshl_add_u32 v13, v3, 2, v13'); self.sval('s6', [(3, 272)], L_EROW); I('v_add_u32 v13, s6, v13')
        I('v_and_b32 v14, 7, v2'); I('v_mul_u32_u24 v14, 272, v14'); I('v_lshl_add_u32 v14, v3, 4, v14'); I(f'v_add_u32 v14, {L_EROW}, v14')
        I('v_lshlrev_b32 v15, 6, v2'); I('v_lshl_add_u32 v15, v3, 4, v15')
        self.sval('s6', [(61, 64), (62, 8)], L_OUT); I('v_add_u32 v15, s6, v15')
        self.base(46, P_WS, [(40, 2048), (41, 512)], WS_H4)
        if cfg.get('hsplit', 0): self.hu_prep(WS_HU4, 38, 98)
        stl = ['global_load_dwordx2 v[56:57], v7, s[56:57] sc1'] + [f'global_load_dword v{48+k}, v19, s[56:57] offset:{32*k} sc1' for k in range(4)]
        if SENT:
            for s_ in range(4):
                ro = 64*(s_ >> 1) + 16*(s_ & 1)
                I(f'ds_read_b64_tr_b16 {vr(96+4*s_,2)}, v18 offset:{ro*256}'); I(f'ds_read_b64_tr_b16 {vr(98+4*s_,2)}, v18 offset:{(ro+32)*256}')
            e.barrier()
            if cfg.get('fine'): self.stamp(12)
            self.sval('s6', [(60, 512)], L_EST2); I('v_add_u32 v16, s6, v7'); I('v_add_u32 v17, s6, v19')
            I('ds_read_b64 v[56:57], v16')
            for k in range(4): I(f'ds_read_b32 v{48+k}, v17 offset:{32*k}')
            h3l = [f'global_load_dwordx4 {vr(64+4*k,4)}, v{9+k}, s[44:45] sc1' for k in range(4)]
            self.sleep(cfg['d_h3s'])
            e.vm = []
            for ld in h3l: I(ld, tag='h3')
            e.wait_lg()
        elif S6:
            I('s_waitcnt vmcnt(16)'); e.barrier()
            for s_ in range(4):
                ro = 64*(s_ >> 1) + 16*(s_ & 1)
                I(f'ds_read_b64_tr_b16 {vr(96+4*s_,2)}, v18 offset:{ro*256}'); I(f'ds_read_b64_tr_b16 {vr(98+4*s_,2)}, v18 offset:{(ro+32)*256}')
            def until(d):
                LW = self.lab('h3w')
                I(f'v_mov_b32 v60, {d}')
                e.label(LW)
                I('s_memrealtime s[100:101]'); I('s_waitcnt lgkmcnt(0)')
                I('v_sub_u32 v61, s100, v17'); I('v_cmp_lt_u32 vcc, v61, v60'); I(f's_cbranch_vccnz {LW}')
            until(cfg.get('t_st', 230))
            if cfg.get('fine'): self.stamp(12)
            self.poll('st', stl, [56, 57, 48, 49, 50, 51], 0, loop_sleep=cfg.get('h3_loop', 2))
            if cfg.get('fine'): self.stamp(7)
        elif S2:
            I('s_waitcnt vmcnt(16)'); e.barrier()
            for s_ in range(4):
                ro = 64*(s_ >> 1) + 16*(s_ & 1)
                I(f'ds_read_b64_tr_b16 {vr(96+4*s_,2)}, v18 offset:{ro*256}'); I(f'ds_read_b64_tr_b16 {vr(98+4*s_,2)}, v18 offset:{(ro+32)*256}')
            Df, LW, LR, DR = self.lab('flok'), self.lab('h3w'), self.lab('h3r'), self.lab('h3d')
            I('v_cmp_eq_u32 vcc, -1, v17'); I(f's_cbranch_vccz {Df}')
            self.poll('h3f', ['global_load_dword v17, v16, s[58:59] sc1'], [17], 0, loop_sleep=4)
            e.label(Df, flush=False)
            if cfg.get('fine'): self.stamp(12)
            I(f'v_mov_b32 v60, {cfg.get("t_h3", 300)}')
            e.label(LW)
            I('s_memrealtime s[100:101]'); I('s_waitcnt lgkmcnt(0)')
            I('v_sub_u32 v61, s100, v17'); I('v_cmp_lt_u32 vcc, v61, v60'); I(f's_cbranch_vccnz {LW}')
            if cfg.get('fine'): self.stamp(13)
            I(f's_mov_b32 s54, {SPIN}')
            if cfg.get('hu4_early', 0): self.hu_set(WS_HU4, 38)
            e.label(LR); e.vm = []
            for ld in stl: I(ld, tag='st')
            for k in range(4): I(f'global_load_dwordx4 {vr(64+4*k,4)}, v{9+k}, s[44:45] {POL[cfg.get("h3lpol", 0)]}', tag='h3')
            e.wait_vm('st')
            self.maxtree([56, 57, 48, 49, 50, 51], 60)
        elif REC:
            self.base(58, P_WS, [(38, 256)], WS_ST)
            self.base(56, P_WS, [(3, 4096), (40, 8)], WS_ST)
            I('v_add_u32 v16, v2, v3'); I('v_and_b32 v16, 15, v16'); I('v_lshlrev_b32 v16, 8, v16')
            self.sval('s6', [(3, 8)], L_EST); I('v_mov_b32 v17, s6'); I('v_and_b32 v19, 7, v2'); I('v_lshlrev_b32 v19, 3, v19'); I(f'v_add_u32 v19, {L_EST}, v19')
            if LS:
                e.barrier()
                Lw = self.lab('w7s')
                I('s_cmp_lg_u32 s3, 7'); e.branch('s_cbranch_scc1', Lw); w7stats(); e.label(Lw); e.lg = []
            e.wait_vm('h3'); e.barrier()
            Lf = self.lab('h3f')
            I('s_cmp_lg_u32 s3, 7'); e.branch('s_cbranch_scc1', Lf)
            I('s_mov_b32 exec_hi, 0'); I(f'global_store_dwordx2 v7, {vr(ML,2)}, s[58:59] sc1'); self.exec_all()
            e.label(Lf); e.vm = ['x']
            if cfg.get('fine'): self.stamp(12)
            if cfg.get('wuv_at') == 97:
                Lz = self.lab('wz')
                I('s_waitcnt vmcnt(1)'); I('s_cmp_eq_u32 s3, 7'); I(f's_cbranch_scc1 {Lz}'); I('s_waitcnt vmcnt(0)'); e.label(Lz, flush=False); I('s_barrier')
            for s_ in range(4):
                ro = 64*(s_ >> 1) + 16*(s_ & 1)
                I(f'ds_read_b64_tr_b16 {vr(96+4*s_,2)}, v18 offset:{ro*256}'); I(f'ds_read_b64_tr_b16 {vr(98+4*s_,2)}, v18 offset:{(ro+32)*256}')
            if cfg.get('h3fine', 0):
                Lp, Dp = self.lab('hf'), self.lab('hfd')
                I(f's_mov_b32 s54, {SPIN}'); I('v_mov_b32 v60, 0')
                self.sleep(cfg['d_h3'])
                I('global_load_dwordx2 v[56:57], v16, s[56:57] sc1')
                e.label(Lp)
                I('s_waitcnt vmcnt(0)')
                I('v_max_u32 v62, v56, v57')
                I('v_cmp_eq_u32 s[52:53], -1, v62')
                for k in range(4): I(f'v_mov_b32_dpp v{48+k}, v62 row_newbcast:{4*k} {DPPM}')
                I('s_cmp_eq_u64 s[52:53], 0'); I(f's_cbranch_scc1 {Dp}')
                I('global_load_dwordx2 v[56:57], v16, s[56:57] sc1')
                e.label(Dp, flush=False)
                for k in range(4):
                    I(f'v_and_b32 v61, {1<<k}, v60'); I(f'v_cmp_ne_u32 vcc, -1, v{48+k}'); I('v_cmp_eq_u32 s[6:7], 0, v61'); I('s_nop 1' if k else 's_nop 1')
                    I('s_and_b64 exec, vcc, s[6:7]')
                    I(f'global_load_dwordx4 {vr(64+4*k,4)}, v{9+k}, s[44:45] sc1'); I(f'v_or_b32 v60, {1<<k}, v60'); self.exec_all()
                Lq = self.lab('hfq')
                I('s_cmp_eq_u64 s[52:53], 0'); I(f's_cbranch_scc1 {Lq}')
                I('s_sub_u32 s54, s54, 1'); I(f's_cbranch_scc0 {Lp}')
                e.label(Lq, flush=False)
                if cfg.get('fine'): self.stamp(13)
            else:
                self.poll('h3f', ['global_load_dwordx2 v[56:57], v16, s[56:57] sc1'], [56, 57], cfg['d_h3'], loop_sleep=cfg.get('h3_loop', 2))
                if cfg.get('h3bar', 0): I('s_barrier')
                if cfg.get('fine'): self.stamp(13)
                for k in range(4): I(f'global_load_dwordx4 {vr(64+4*k,4)}, v{9+k}, s[44:45] sc1')
            I('v_mov_b32 v58, v56')
            self.ror_reduce([58], [8, 4, 2, 1], 'max')
            I('v_sub_f32 v56, v56, v58'); I('v_exp_f32 v56, v56')
            I('v_mul_f32 v59, v56, v57')
            for k in range(4): I(f'v_mov_b32_dpp v{48+k}, v56 row_newbcast:{4*k} {DPPM}')
            self.ror_reduce([59], [8, 4, 2, 1])
            I('ds_write_b64 v17, v[58:59]')
        else:
            if cfg.get('hu4_early', 0) == 2:
                I(f'v_mov_b32 v249, {L_EST}'); I('v_mov_b32 v250, 0'); I('ds_write_b32 v249, v250')
            e.wait_vm(); e.barrier()
            Lf = self.lab('h3f')
            I('s_cmp_lg_u32 s3, 0'); e.branch('s_cbranch_scc1', Lf)
            TV = cfg.get('t_d', 0)
            if TV:
                I('s_memrealtime s[100:101]'); I('s_waitcnt lgkmcnt(0)'); I('s_add_u32 s100, s100, 1'); I('s_and_b32 s100, s100, 0xfffffffe'); I('v_mov_b32 v17, s100')
            I('s_mov_b64 exec, 0xff'); I('global_store_dword v16, v17, s[58:59] sc1'); self.exec_all()
            e.label(Lf); e.vm = ['x']
            if cfg.get('fine'): self.stamp(12)
            for s_ in range(4):
                ro = 64*(s_ >> 1) + 16*(s_ & 1)
                I(f'ds_read_b64_tr_b16 {vr(96+4*s_,2)}, v18 offset:{ro*256}'); I(f'ds_read_b64_tr_b16 {vr(98+4*s_,2)}, v18 offset:{(ro+32)*256}')
            self.base(58, P_WS, [(4, 2048), (3, 256)], WS_FL)
            I('v_lshlrev_b32 v16, 4, v2')
            if TV:
                LW = self.lab('h3v')
                I(f'v_mov_b32 v60, {TV}')
                e.label(LW)
                I('s_memrealtime s[100:101]'); I('s_waitcnt lgkmcnt(0)')
                I('v_sub_u32 v61, s100, v248'); I('v_cmp_lt_u32 vcc, v61, v60'); I(f's_cbranch_vccnz {LW}')
                I(f's_sub_u32 s63, s100, {cfg.get("t_m", 6)}')
                if cfg.get('fine'): self.stamp(7)
                for k in range(4): I(f'global_load_dwordx4 {vr(64+4*k,4)}, v{9+k}, s[44:45] sc1')
            if CLK:
                LW = self.lab('h3w')
                I(f'v_mov_b32 v60, {CLK}')
                e.label(LW)
                I('s_memrealtime s[100:101]'); I('s_waitcnt lgkmcnt(0)')
                I('v_sub_u32 v61, s100, v248'); I('v_cmp_lt_u32 vcc, v61, v60'); I(f's_cbranch_vccnz {LW}')
            self.poll('h3f', ['global_load_dword v17, v16, s[58:59] sc1', 'global_load_dwordx2 v[56:57], v7, s[56:57] sc1'] +
                      [f'global_load_dword v{48+k}, v19, s[56:57] offset:{32*k} sc1' for k in range(4)], [17, 56, 57, 48, 49, 50, 51], 0 if CLK else cfg['d_h3'], loop_sleep=cfg.get('h3_loop', 2))
            if cfg.get('fine'): self.stamp(13)
            if TV:
                Lv = self.lab('h3ok')
                I('v_sub_u32 v61, s63, v17'); I('v_cmp_gt_i32 vcc, 0, v61'); I(f's_cbranch_vccz {Lv}')
            for k in range(4): I(f'global_load_dwordx4 {vr(64+4*k,4)}, v{9+k}, s[44:45] {POL[cfg.get("h3lpol", 0)]}')
            if TV: e.label(Lv, flush=False)
            if cfg.get('hu4_early', 0) == 2:
                Lh = self.lab('hl')
                I('v_mov_b32 v251, 1'); I('s_mov_b64 exec, 1'); I('ds_add_rtn_u32 v250, v249, v251'); self.exec_all()
                I('s_memrealtime s[100:101]')
                self.base(98, P_WS, [(38, 128)], WS_HU4)
                I('s_waitcnt lgkmcnt(0)'); e.lg = []
                I('v_readfirstlane_b32 s6, v250'); I('s_and_b32 s100, s100, 0xfffffffe'); I('v_mov_b32 v251, 0'); I('v_mov_b32 v250, s100')
                I('s_cmp_lg_u32 s6, 7'); I(f's_cbranch_scc1 {Lh}')
                I('s_mov_b64 exec, 1'); I('global_store_dword v251, v250, s[98:99] sc1'); self.exec_all()
                e.label(Lh, flush=False)
            elif cfg.get('hu4_early', 0): (self.hu_set_w if cfg.get('hu4m', 0) == 2 else self.hu_set)(WS_HU4, 38)
        if not REC:
            I('v_mov_b32 v58, v56')
            self.ror_reduce([58], [8, 4, 2, 1], 'max'); self.cross(16, 58, 59, 'max'); self.cross(32, 58, 59, 'max')
            I('v_sub_f32 v56, v56, v58'); I('v_exp_f32 v56, v56')
            for k in range(4): I(f'v_sub_f32 v{48+k}, v{48+k}, v58')
            I('v_mul_f32 v56, v56, v57')
            for k in range(4): I(f'v_exp_f32 v{48+k}, v{48+k}')
            self.ror_reduce([56], [8, 4, 2, 1]); self.cross(16, 56, 59); self.cross(32, 56, 59)
            I('v_rcp_f32 v56, v56')
            for k in range(4): I(f'v_mul_f32 v{48+k}, v{48+k}, v56')
        if S6:
            until(cfg.get('t_h3', 290))
            if cfg.get('fine'): self.stamp(13)
            self.poll('h3', [f'global_load_dwordx4 {vr(64+4*k,4)}, v{9+k}, s[44:45] sc1' for k in range(4)], range(64, 80), 0, loop_sleep=cfg.get('h3_loop', 2))
        e.wait_vm()
        if SENT:
            Dh = self.lab('h3o')
            r_ = self.maxtree(range(64, 80), 8)
            I(f'v_cmp_eq_u32 vcc, -1, v{r_}'); I(f's_cbranch_vccz {Dh}')
            self.poll('h3', h3l, range(64, 80), 2, loop_sleep=4)
            e.label(Dh, flush=False)
        if S2 and not S6:
            r_ = self.maxtree([60] + list(range(64, 80)), 8)
            I(f'v_cmp_eq_u32 vcc, -1, v{r_}'); I(f's_cbranch_vccz {DR}')
            if cfg.get('fine'): self.stamp(7)
            I(f's_sleep {cfg.get("h3_loop", 2)}'); I('s_sub_u32 s54, s54, 1'); I(f's_cbranch_scc0 {LR}')
            e.label(DR, flush=False)
        HS = cfg.get('hsplit', 0)
        if HS: self.hu_clock()
        elif not cfg.get('hu4_early', 0): (self.hu_set_w if cfg.get('hu4m', 0) == 2 else self.hu_set)(WS_HU4, 38)
        self.stamp(8)
        for q in range(4):
            if HS and q == 1: n0 = e.n; self.hu_store(98, pol='' if cfg.get('loc', 0) & 2 else 'sc1'); e.n = n0 + 2
            for k in range(4):
                I(f'v_lshlrev_b32 v{88+2*k}, 16, v{64+4*q+k}'); I(f'v_and_b32 v{89+2*k}, 0xffff0000, v{64+4*q+k}')
            if cfg.get('pk', 0):
                wq = 48 + (q & ~1); sel = f'op_sel:[{q&1},0,0] op_sel_hi:[{q&1},1,1]'
                for k in range(4):
                    if q == 0: I(f'v_pk_mul_f32 {vr(80+2*k,2)}, {vr(wq,2)}, {vr(88+2*k,2)} op_sel:[0,0] op_sel_hi:[0,1]')
                    else: I(f'v_pk_fma_f32 {vr(80+2*k,2)}, {vr(wq,2)}, {vr(88+2*k,2)}, {vr(80+2*k,2)} {sel}')
                continue
            for k in range(8):
                if q == 0: I(f'v_mul_f32 v{80+k}, v48, v{88+k}')
                else: I(f'v_fmac_f32 v{80+k}, v{48+q}, v{88+k}')
        for k in range(4): I(f'v_permlane32_swap_b32 v{80+2*k}, v{81+2*k}')
        for k in range(4): I(f'v_add_f32 v{88+k}, v{80+2*k}, v{81+2*k}')
        I('v_permlane16_swap_b32 v88, v90'); I('v_permlane16_swap_b32 v89, v91')
        I('v_add_f32 v88, v88, v90'); I('v_add_f32 v89, v89, v91')
        I('v_cvt_pk_bf16_f32 v88, v88, v89'); I('ds_write_b32 v13, v88')
        e.barrier()
        if REC: I('ds_read_b64 v[56:57], v19', tag='mz')
        for s in range(4): I(f'ds_read_b128 {vr(64+4*s,4)}, v14 offset:{s*64}', tag=f'er{s}')
        fs = [lambda: [I(f'v_max_f32_dpp v58, v56, v56 quad_perm:[1,0,3,2] {DPPM}')],
              lambda: [I(f'v_max_f32_dpp v58, v58, v58 quad_perm:[2,3,0,1] {DPPM}'), I('v_sub_f32 v56, v56, v58'), I('v_exp_f32 v56, v56')],
              lambda: [I('v_mul_f32 v57, v56, v57'), I(f'v_add_f32_dpp v57, v57, v57 quad_perm:[1,0,3,2] {DPPM}')],
              lambda: [I(f'v_add_f32_dpp v57, v57, v57 quad_perm:[2,3,0,1] {DPPM}'), I('v_rcp_f32 v57, v57'), I('v_mul_f32 v56, v56, v57')]]
        for s in range(4):
            e.wait_lg(f'er{s}')
            I(f'v_mfma_f32_16x16x32_bf16 v[80:83], {vr(96+4*s,4)}, {vr(64+4*s,4)}, {"0" if s == 0 else "v[80:83]"}')
            if REC: fs[s]()
        if REC:
            for k in range(4): I(f'v_mul_f32 v{80+k}, v{80+k}, v56')
        for qp in ('[1,0,3,2]', '[2,3,0,1]'):
            for k in range(4): I(f'v_add_f32_dpp v{80+k}, v{80+k}, v{80+k} quad_perm:{qp} {DPPM}')
        I('v_cvt_pk_bf16_f32 v80, v80, v81'); I('v_cvt_pk_bf16_f32 v81, v82, v83')
        if cfg.get('publds', 1):
            self.exec_mask(50); I('ds_write_b64 v15, v[80:81]'); self.exec_all()
            self.pub_lds(L_OUT, 6, 46, pol='' if cfg.get('loc', 0) & 1 else 'sc1')
        else:
            self.exec_mask(50); I('global_store_dwordx2 v15, v[80:81], s[46:47] sc1'); self.exec_all()
        self.stamp(9)
        if cfg.get('loc', 0) & 3:
            Lf = self.lab('h4a')
            I('s_cmp_lg_u32 s3, 0'); I(f's_cbranch_scc1 {Lf}'); self.sleep(cfg.get('loc_d', 40))
            I('s_mov_b32 exec_hi, 0'); I('global_store_dwordx4 v6, v[64:67], s[46:47] sc1')
            I('s_mov_b64 exec, 1'); I('global_store_dword v251, v250, s[98:99] sc1'); self.exec_all()
            e.label(Lf, flush=False)

def generate(cfg, path):
    g = Gen(cfg); g.build()
    body = g.e.text()
    hdr = open('cdna_kernels/' + NAME + '.s.ref').read().split('; @launch')[0]
    s = hdr + f'; @launch grid=(256,1,1) block=(512,1,1) lds={LDS_BYTES}\n'
    s += f'''.amdgcn_target "amdgcn-amd-amdhsa--gfx950"
.text
.globl {NAME}_kernel
.p2align 8
.type {NAME}_kernel,@function
{NAME}_kernel:
{body}.section .rodata,"a"
.p2align 6
.amdhsa_kernel {NAME}_kernel
  .amdhsa_next_free_vgpr 256
  .amdhsa_next_free_sgpr 102
  .amdhsa_accum_offset 256
  .amdhsa_group_segment_fixed_size 0
  .amdhsa_kernarg_size 120
  .amdhsa_user_sgpr_count 2
  .amdhsa_user_sgpr_kernarg_segment_ptr 1
  .amdhsa_system_sgpr_workgroup_id_x 1
.end_amdhsa_kernel
'''
    import subprocess, re, os
    kb = 40
    for it in range(2):
        open(path, 'w').write(s.replace('CODE_KB', str(kb)))
        subprocess.check_call(['clang', '-x', 'assembler', '-target', 'amdgcn-amd-amdhsa', '-mcpu=gfx950', '-c', path, '-o', path + '.o'])
        h = subprocess.check_output(['llvm-objdump', '-h', path + '.o']).decode()
        size = int(re.search(r'\.text\s+([0-9a-f]+)', h).group(1), 16)
        kb = size >> 10
        os.remove(path + '.o')
    g.size = size
    return g

DEFAULT = dict(stamps=0, d_h3s=16, pv_prio=1, gseq=0, wuv_pre=0, a_pre=0, wuk_late=2, ckv_win=4, f_pre=25, f_pre3=0, t_h1=262, lazy=1, h1_loop=1, h3_loop=1, p1q=1, gside=1, hu4m=1, hu5m=2, fin_m=1, fin_h5=98, h5_loop=1, hm_loop=1, d_h3=16, h4dma=1, hsplit=1, g_pre=30, gpf=0, g_pre3=0, t_h5=40, t_h7=231, g2=3, ilv=2, h3sent=0, t_h4=56, loc=7, h4_loop=1, d_hq=3, hq_loop=1, t_h2=60, h2chk=1, b_pre=35, bc_pre=10, cmp=7, h2dma=1, g4all=2, pk=1, h3rec=1, qk2=1, wuv_at=3, late3=1, latesum=1, hu_early=3)
if __name__ == '__main__':
    cfg = dict(DEFAULT)
    out = 'cdna_kernels/' + NAME + '.s'
    for a in sys.argv[1:]:
        k, v = a.split('=')
        if k == 'out': out = v
        else: cfg[k] = int(v)
    g = generate(cfg, out)
    print('early', len(g.e.secs['early']), 'instrs', len(g.e.lines), 'nops', g.e.nops, 'maxv', g.e.maxv, 'size', g.size)
```

```python
import sys, math, struct
sys.path.insert(0, 'work')
from emit import Emitter
NAME = 'adaLN_cond__compressed_kv_cla__glu_gated_geglu__decode'
def f32(x): return '0x%08x' % struct.unpack('<I', struct.pack('<f', x))[0]

WS_MODP, WS_HQ, WS_H2, WS_ST, WS_H4, WS_H5, WS_H6, WS_MODQ, WS_H3, WS_DBG = 0x0, 0x10000, 0x20000, 0x30000, 0x38000, 0x48000, 0x50000, 0x58000, 0x100000, 0x600000
WS_HU2, WS_HU4, WS_HU5 = 0x68000, 0x6C000, 0x70000
WS_H7 = 0x7C000
WS_HQ2 = 0x10000
WS_FL2 = 0x98000
WS_GOC, WS_FL = 0x74000, 0x78000
CLR_BYTES = 0x54000
K = 1024
L_WQ, L_WUK = 0, 32*K
L_S = 128*K
L_HV = L_S
L_CKV, L_QABS = 0, 128*K
L_MT, L_SC, L_RED1 = 128*K, 96*K, 98*K
L_XCH, L_MAX, L_SUM, L_P = 0, 16*K, 17*K, 24*K
L_WUV = 32*K
L_EST, L_EROW, L_EST2 = L_S, L_S + 1*K, L_S + 4*K
L_WO, L_WG, L_WU, L_WDN = 0, 0, 64*K, 0
L_FRED, L_XST, L_H2V, L_GRED, L_X1 = L_S, L_S+16*K, L_S+17*K, L_S+20*K, L_S+22*K
L_OUT = L_S + 30*K
LDS_BYTES = 160*K
SPIN = 60000

P_X, P_CKV, P_WQ, P_WUK, P_WUV, P_WO, P_WG, P_WU, P_WD, P_C, P_WMOD, P_OUT, P_DBG, P_WS = 8, 10, 12, 14, 16, 18, 22, 24, 26, 28, 30, 32, 34, 36
def sp(p): return f's[{p}:{p+1}]'
def vr(a, n): return f'v[{a}:{a+n-1}]' if n > 1 else f'v{a}'
POL = ['sc1', 'sc1 nt', 'sc0 sc1', 'sc0 sc1 nt']
DPPM = 'row_mask:0xf bank_mask:0xf'

DOC = """
One persistent launch, 256 workgroups x 8 waves, stages chained through d_ws.
 B group (wg<128): adaLN shift/scale tiles or buffer reset, stream 128 keys of c_kv, absorbed QK^T, softmax, PV,
                   then per (head, latent quarter): merge of the 128 partial outputs and w_uv.
 A group (wg>=128): q = h.w_q, q_abs = q.w_uk, then w_o tiles / MLP slices (LayerNorm folded in after the matmul) / output.
Hand-offs: small buffers are reset to all-ones in this launch (flag in d_debug) and every word read is checked against it;
 the first hand-off carries a per-launch clock tag, the partial outputs are covered by a record written after they completed.
 Clock values exchanged between stages only pace the first look of a consumer (polling lines under write is slow);
 every wait is bounded and results do not depend on timing or on where a workgroup runs.
"""

class Gen:
    def __init__(self, cfg):
        self.cfg = cfg
        cfg['skip'] = {0: '', 1: 'wuk', 2: 'wq', 3: 'wuk wq', 4: 'wuv'}[cfg.get('skipk', 0)]
        self.e = Emitter(); self.I = self.e.I
        self.uid = 0
        self.modp = 0x800000 if cfg.get('rot', 0) & 1 else WS_MODP
        self.h3 = 0x1000000 if cfg.get('rot', 0) & 2 else WS_H3
        self.h3t = [(97, 1)] if cfg.get('rot', 0) & 2 else []
        self.spol = 'nt' if cfg.get('small_nt', 0) else ''
    def lab(self, s): self.uid += 1; return f'L_{s}_{self.uid}'
    def stamp(self, k):
        if not self.cfg.get('stamps'): return
        self.I(f's_memrealtime s[{64+2*k}:{65+2*k}]'); self.e.lg.append('SMEM')
    def base(self, dst, ptr, terms, const=0):
        I = self.I
        first = True
        for (s, m) in terms:
            t = 's6' if first else 's7'
            I(f's_mul_i32 {t}, s{s}, {m}')
            if not first: I('s_add_u32 s6, s6, s7')
            first = False
        if first: I(f's_mov_b32 s6, {const}')
        elif const: I(f's_add_u32 s6, s6, {const}')
        if getattr(self, 'kwait', False): I('s_waitcnt lgkmcnt(0)'); self.kwait = False
        I(f's_add_u32 s{dst}, s{ptr}, s6'); I(f's_addc_u32 s{dst+1}, s{ptr+1}, 0')
    def sval(self, dst, terms, const=0):
        I = self.I
        first = True
        for (s, m) in terms:
            t = dst if first else 's7'
            I(f's_mul_i32 {t}, s{s}, {m}')
            if not first: I(f's_add_u32 {dst}, {dst}, s7')
            first = False
        if first: I(f's_mov_b32 {dst}, {const}')
        elif const: I(f's_add_u32 {dst}, {dst}, {const}')
    def sleep(self, n):
        while n > 0:
            k = min(n, 127); self.I(f's_sleep {k}'); n -= k
    def maxtree(self, regs, t):
        I = self.I
        regs = list(regs)
        if len(regs) == 1: return regs[0]
        if len(regs) == 2: I(f'v_max_u32 v{t}, v{regs[0]}, v{regs[1]}'); return t
        I(f'v_max3_u32 v{t}, v{regs[0]}, v{regs[1]}, v{regs[2]}'); k = 3
        while k < len(regs):
            if k + 1 < len(regs): I(f'v_max3_u32 v{t}, v{t}, v{regs[k]}, v{regs[k+1]}'); k += 2
            else: I(f'v_max_u32 v{t}, v{t}, v{regs[k]}'); k += 1
        return t
    def poll(self, name, loads, regs, pre, loop_sleep=2, t=8, onfail=None):
        e, I = self.e, self.I
        L, D = self.lab(name), self.lab(name + 'd')
        I(f's_mov_b32 s54, {SPIN}')
        self.sleep(pre)
        e.label(L, flush=True)
        for ld in loads: I(ld)
        e.wait_vm()
        r = self.maxtree(regs, t)
        I(f'v_cmp_eq_u32 vcc, -1, v{r}')
        I(f's_cbranch_vccz {D}')
        if onfail: onfail()
        I(f's_sleep {loop_sleep}')
        I('s_sub_u32 s54, s54, 1')
        I(f's_cbranch_scc0 {L}')
        e.label(D, flush=False); e.vm = []
    def flag_ld(self, which, dst, tag=None):
        if which == 0: self.I('v_and_b32 v8, 7, v1'); self.I('v_lshlrev_b32 v8, 2, v8')
        else: self.I('v_mov_b32 v8, 128')
        self.I(f'global_load_dword v{dst}, v8, {sp(P_DBG)} sc1', tag=tag)
    def flagcheck_issue(self, which, dst): self.flag_ld(which, dst, 'flag')
    def flagcheck_finish(self, which, dst):
        e, I = self.e, self.I
        L, D = self.lab('fl'), self.lab('fld')
        I(f's_mov_b32 s54, {SPIN}'); I('s_mov_b32 s63, 0x01010101')
        e.wait_vm('flag')
        e.label(L, flush=True)
        I(f'v_cmp_ne_u32 vcc, s63, v{dst}')
        I(f's_cbranch_vccz {D}')
        I('s_sleep 6')
        saved = list(e.vm)
        self.flag_ld(which, dst)
        I('s_waitcnt vmcnt(0)')
        I('s_sub_u32 s54, s54, 1')
        I(f's_cbranch_scc0 {L}')
        e.label(D, flush=False)
        e.vm = saved
    def ror_reduce(self, regs, steps, op='add'):
        for s in steps:
            for r in regs: self.I(f'v_{op}_f32_dpp v{r}, v{r}, v{r} row_ror:{s} {DPPM}')
    def cross(self, which, r, t, op='add'):
        I = self.I
        I(f'v_mov_b32 v{t}, v{r}'); I(f'v_permlane{which}_swap_b32 v{r}, v{t}'); I(f'v_{op}_f32 v{r}, v{r}, v{t}')
    def exec_mask(self, pair): self.I(f's_mov_b64 exec, s[{pair}:{pair+1}]')
    def exec_all(self): self.I('s_mov_b64 exec, -1')

    def dma_128(self, sbase, pitch, ninstr, lds_terms, lds_const, tag, vt=11, pol='nt', between=None):
        I = self.I
        I(f'v_lshlrev_b32 v{vt}, 1, v3'); I('v_and_b32 v9, 7, v1'); I(f'v_xor_b32 v{vt}, v{vt}, v9'); I(f'v_lshlrev_b32 v{vt}, 4, v{vt}')
        I('v_lshrrev_b32 v9, 3, v1'); I(f's_mov_b32 s6, {pitch}'); I('v_mul_lo_u32 v9, v9, s6'); I(f'v_add_u32 v{vt}, v{vt}, v9')
        self.sval('s53', lds_terms, lds_const)
        if between: between()
        if self.cfg.get('noload') and tag in ('gu', 'wo', 'ga', 'up'): ninstr = 1
        for q in range(ninstr):
            I(f's_add_u32 m0, s53, {q*1024}')
            I(f'global_load_lds_dwordx4 v{vt}, s[{sbase}:{sbase+1}] {pol}', tag=tag)
            if q < ninstr - 1: I(f'v_add_u32 v{vt}, {8*pitch}, v{vt}')
    def tr_base_128(self, dst, lds_terms, lds_const):
        I = self.I
        I('v_lshrrev_b32 v9, 2, v2'); I('v_lshl_add_u32 v9, v3, 2, v9')
        I(f'v_bfe_u32 v{dst}, v9, 1, 2'); I(f'v_lshlrev_b32 v{dst}, 5, v{dst}'); I(f'v_lshl_add_u32 v{dst}, v9, 7, v{dst}')
        I('v_and_b32 v9, 3, v2'); I(f'v_lshl_add_u32 v{dst}, v9, 3, v{dst}')
        self.sval('s6', lds_terms, lds_const); I(f'v_add_u32 v{dst}, s6, v{dst}')
    def dma_256(self, sbase, pitch, lds_const, tag, swz, vt=11, pol='nt', between=None):
        I = self.I
        I(f's_mov_b32 s6, {pitch}'); I('v_mul_lo_u32 v9, v3, s6')
        if swz == '32': I(f'v_lshlrev_b32 v{vt}, 1, v3')
        else: I(f'v_mov_b32 v{vt}, v3')
        I(f'v_xor_b32 v{vt}, v{vt}, v2'); I(f'v_lshl_add_u32 v{vt}, v{vt}, 4, v9')
        self.sval('s53', [(3, 4096)], lds_const)
        if between: between()
        for q in range(4 if tag not in self.cfg.get('skip', '') else 1):
            x = ((q & 1) << 7) if swz == '32' else (q << 6)
            if q: I(f'v_xor_b32 v{vt+1}, {x}, v{vt}'); I(f'v_add_u32 v{vt+1}, {q*4*pitch}, v{vt+1}')
            I(f's_add_u32 m0, s53, {q*1024}')
            I(f'global_load_lds_dwordx4 v{vt+1 if q else vt}, s[{sbase}:{sbase+1}] {pol}', tag=tag)
    def tr_base_256(self, dst, lds_const):
        I = self.I
        I('v_lshrrev_b32 v9, 2, v2'); I('v_lshl_add_u32 v9, v3, 2, v9')
        I(f'v_and_b32 v{dst}, 7, v9'); I(f'v_xor_b32 v{dst}, s3, v{dst}'); I(f'v_lshlrev_b32 v{dst}, 5, v{dst}'); I(f'v_lshl_add_u32 v{dst}, v9, 8, v{dst}')
        I('v_and_b32 v9, 3, v2'); I(f'v_lshl_add_u32 v{dst}, v9, 3, v{dst}')
        if lds_const: I(f'v_add_u32 v{dst}, {lds_const}, v{dst}')

    def build(self):
        e, I, cfg = self.e, self.I, self.cfg
        for l in DOC.strip().split('\n'): e.comment(l)
        I('s_cmp_ge_u32 s2, 256'); I('s_cbranch_scc1 L_END')
        I('s_load_dwordx16 s[8:23], s[0:1], 0'); I('s_load_dwordx8 s[24:31], s[0:1], 64')
        I('s_load_dwordx4 s[32:35], s[0:1], 96'); I('s_load_dwordx2 s[36:37], s[0:1], 112')
        if cfg.get('stamps'):
            I('s_memrealtime s[64:65]')
            for k in range(66, 96): I(f's_mov_b32 s{k}, 0')
        I('s_memrealtime s[100:101]')
        I('s_getpc_b64 s[44:45]')
        I('v_and_b32 v1, 63, v0'); I('v_lshrrev_b32 v8, 6, v0')
        I('v_and_b32 v2, 15, v0'); I('v_readfirstlane_b32 s3, v8')
        I('v_bfe_u32 v3, v0, 4, 2'); I('v_and_b32 v4, 31, v0'); I('v_bfe_u32 v5, v0, 5, 1')
        I('v_lshlrev_b32 v6, 4, v1'); I('v_lshlrev_b32 v7, 3, v1')
        I('s_and_b32 s4, s2, 7'); I('s_lshr_b32 s5, s2, 3')
        I(f'v_add_u32 v253, {L_OUT}, v6')
        I('s_and_b32 s44, s44, 0xffffff00')
        I('s_sub_u32 s6, s5, 12'); I('s_cmp_ge_u32 s6, 4'); I('s_cbranch_scc1 L_NOPF')
        I('s_sub_u32 s7, s3, 2'); I('s_cmp_ge_u32 s7, 6'); I('s_cbranch_scc1 L_NOPF')
        I('s_mul_i32 s6, s6, 6'); I('s_add_u32 s6, s6, s7'); I('s_add_u32 s6, s6, 1')
        I(f's_cmp_ge_u32 s6, CODE_KB'); I('s_cbranch_scc1 L_NOPF')
        I('s_lshl_b32 s6, s6, 10'); I('v_add_u32 v8, s6, v6')
        I('global_load_dwordx4 v[240:243], v8, s[44:45]')
        e.label('L_NOPF'); e.vm = []
        if cfg.get('remap', 0):
            I('s_and_b32 s6, s4, 3'); I('s_lshl_b32 s6, s6, 1'); I('s_lshr_b32 s7, s5, 4'); I('s_add_u32 s6, s6, s7')
            I('s_and_b32 s5, s5, 15'); I('s_cmp_lt_u32 s4, 4'); I('s_cselect_b32 s7, 16, 0'); I('s_add_u32 s5, s5, s7')
            I('s_mov_b32 s4, s6'); I('s_lshl_b32 s2, s5, 3'); I('s_add_u32 s2, s2, s4')
        I('s_mov_b32 s48, 0x00030003'); I('s_mov_b32 s49, 0x00030003')
        I('s_mov_b32 s50, 0x00110011'); I('s_mov_b32 s51, 0x00110011')
        I('s_lshr_b32 s60, s3, 2'); I('s_and_b32 s55, s3, 3'); I('s_lshr_b32 s61, s3, 1'); I('s_and_b32 s62, s3, 1')
        I('s_bfe_u32 s6, s5, 0x20002'); I('s_lshl_b32 s40, s4, 2'); I('s_add_u32 s40, s40, s6'); I('s_and_b32 s41, s5, 3')
        LZ = cfg.get('lazy', 0)
        if not LZ: I('s_waitcnt lgkmcnt(0)')
        if cfg.get('p1st'): self.stamp(7)
        if cfg.get('pretouch', 0):
            LP = self.lab('pt')
            I('s_cmp_lg_u32 s3, 6'); I(f's_cbranch_scc1 {LP}')
            I('v_lshlrev_b32 v8, 16, v1'); I(f'v_add_u32 v8, {0xff80}, v8')
            I(f'global_load_dword v248, v8, {sp(P_WS)}')
            I(f'v_add_u32 v8, {0x400000}, v8'); I('s_mov_b32 exec_hi, 0'); I(f'global_load_dword v249, v8, {sp(P_WS)}'); self.exec_all()
            I('v_mov_b32 v8, 0'); I(f'global_load_dword v250, v8, {sp(P_OUT)}')
            e.label(LP); e.vm = []
        if cfg.get('skewdbg', 0):
            Ls = self.lab('skd')
            I('s_sub_u32 s6, s2, 96'); I('s_cmp_ge_u32 s6, 8'); I(f's_cbranch_scc1 {Ls}'); I('s_cmp_lg_u32 s3, 0'); I(f's_cbranch_scc1 {Ls}')
            I('s_waitcnt lgkmcnt(0)'); I('s_lshl_b32 s6, s6, 2'); I('v_mov_b32 v8, s6'); I('v_mov_b32 v10, s100'); I('s_mov_b64 exec, 1')
            I(f'global_store_dword v8, v10, {sp(P_DBG)} offset:8 sc1'); self.exec_all()
            e.label(Ls); e.vm = []
        LE = self.lab('ep')
        I(f's_cmp_lg_u32 s2, {cfg.get("ep_wg", 64)}'); I(f's_cbranch_scc1 {LE}'); I('s_cmp_lg_u32 s3, 0'); I(f's_cbranch_scc1 {LE}')
        if LZ: I('s_waitcnt lgkmcnt(0)')
        I('s_or_b32 s100, s100, 1'); I('v_mov_b32 v10, s100'); I('v_mov_b32 v11, s101'); I('v_mov_b32 v8, 0'); I('s_mov_b64 exec, 1')
        I(f'global_store_dwordx2 v8, v[10:11], {sp(P_DBG)} sc1'); self.exec_all()
        e.label(LE); e.vm = []
        I('s_and_b32 s5, s5, 15')
        I('s_and_b32 s96, s2, 127')
        if cfg.get('p1a', 0):
            I('s_cmp_lt_u32 s2, 128'); I('s_cbranch_scc1 L_ROLE_B')
            self.role_a()
            e.sec('early')
            e.label('L_ROLE_B'); e.vm = []; e.lg = ['SMEM']
            self.role_b()
        else:
            I('s_cmp_ge_u32 s2, 128'); I('s_cbranch_scc1 L_ROLE_A')
            self.role_b()
            e.branch('s_branch', 'L_FIN')
            e.sec('early')
            e.label('L_ROLE_A'); e.vm = []; e.lg = ['SMEM']
            self.role_a()
        e.label('L_FIN')
        if cfg.get('stamps'):
            self.stamp(15); I('s_waitcnt lgkmcnt(0)')
            if cfg.get('ldump', 1):
                e.label('L_LD')
                I('s_sleep 8'); I('s_memrealtime s[100:101]'); I('s_waitcnt lgkmcnt(0)'); I('s_sub_u32 s6, s100, s64'); I('s_cmp_lt_u32 s6, 2000'); I('s_cbranch_scc1 L_LD')
            self.base(44, P_WS, [(2, 1024), (3, 128)], WS_DBG)
            I('v_mov_b32 v8, 0'); I('s_mov_b64 exec, 1')
            for k in range(16):
                I(f'v_mov_b32 v10, s{64+2*k}'); I(f'v_mov_b32 v11, s{65+2*k}'); I(f'global_store_dwordx2 v8, v[10:11], s[44:45] offset:{8*k}')
        if cfg.get('dbgst'):
            I('s_cmp_lg_u32 s3, 0'); e.branch('s_cbranch_scc1', 'L_END')
            for (wg, items) in ((128+64, [(8, 15), (9, 6)]), (64, [(10, 3), (11, 4), (12, 6), (13, 9)]), (128, [(14, 10)]), (128+96, [(15, 12)])):
                Ld = self.lab('dg')
                I(f's_cmp_lg_u32 s2, {wg}'); e.branch('s_cbranch_scc1', Ld)
                I('s_mov_b64 exec, 1'); I('v_mov_b32 v8, 0')
                for (word, k) in items:
                    I(f's_sub_u32 s6, s{64+2*k}, s64'); I('v_mov_b32 v10, s6'); I(f'global_store_dword v8, v10, {sp(P_DBG)} offset:{4*word}')
                e.label(Ld)
        e.label('L_END')
        I('s_endpgm')

    def role_a(self):
        e, I, cfg = self.e, self.I, self.cfg
        self.sleep(cfg.get('a_pre', 0))
        L_HV2, L_QV = 128*K, 130*K
        P1A = cfg.get('p1a', 0)
        LWQ = self.lab('wqd')
        if P1A == 3: I('s_mov_b32 s97, 0')
        if P1A:
            LNP, LNC2 = self.lab('np1'), self.lab('nc2')
            I('s_cmp_ge_u32 s96, 64'); e.branch('s_cbranch_scc1', LNP)
            I('s_lshr_b32 s56, s5, 2'); I('s_bfe_u32 s6, s5, 0x10001'); I('s_lshl_b32 s6, s6, 3'); I('s_add_u32 s6, s6, s4'); I('s_lshl_b32 s6, s6, 1'); I('s_and_b32 s57, s5, 1'); I('s_add_u32 s57, s57, s6')
            def mid():
                Lm = self.lab('mid'); saved = list(e.vm)
                I('s_mov_b32 s52, s53')
                I('s_cmp_lt_u32 s3, 2'); e.branch('s_cbranch_scc1', Lm)
                self.base(44, P_WQ, [(41, 128*8192), (3, 16*8192), (40, 256)])
                self.dma_256(44, 8192, L_WQ, 'wq', '32')
                e.label(Lm); e.vm = saved
                I('s_mov_b32 s53, s52')
            if P1A == 3:
                I('s_lshr_b32 s56, s96, 4'); I('s_and_b32 s57, s96, 15')
                LX = self.lab('xl')
                I('s_cmp_lg_u32 s3, 0'); e.branch('s_cbranch_scc1', LX)
                I('v_lshlrev_b32 v9, 5, v1')
                I(f'global_load_dwordx4 v[64:67], v9, {sp(P_X)}'); I(f'global_load_dwordx4 v[68:71], v9, {sp(P_X)} offset:16')
                I('v_lshlrev_b32 v10, 10, v5'); I('v_lshl_add_u32 v10, v4, 3, v10'); I('s_lshl_b32 s6, s41, 8'); I('v_add_u32 v10, s6, v10')
                I(f'global_load_dwordx2 v[18:19], v10, {sp(P_X)}')
                e.label(LX); e.vm = []
                def mid3():
                    LX = self.lab('xl'); saved = list(e.vm)
                    self.base(44, P_WQ, [(41, 128*8192), (3, 16*8192), (40, 256)])
                    I('s_barrier')
                    self.dma_256(44, 8192, L_WQ, 'wq', '32')
                self.p1_tile(64*K, 98*K, mid=mid3)
                self.stamp(12)
                I(f's_cmp_lt_u32 s3, {2 if cfg.get("p1full", 0) else 4}'); I('s_cselect_b32 s97, 1, 0')
                e.branch('s_branch', LWQ)
            else:
                self.mod_tile(True, 64*K, 96*K, 98*K, early=True, mid=mid if P1A == 2 else None)
                self.stamp(12)
                if P1A == 2: I('s_cmp_ge_u32 s3, 2'); e.branch('s_cbranch_scc1', LWQ)
                e.branch('s_branch', LNC2)
            e.sec('early')
            e.label(LNP); e.vm = []; e.lg = ['SMEM']
            I('s_cmp_ge_u32 s96, 96'); e.branch('s_cbranch_scc1', LNC2)
            I('s_sub_u32 s43, s96, 64')
            for k in range(4): I(f'v_mov_b32 v{44+k}, -1')
            self.base(44, P_WS, [(43, 16384), (3, 2048)], WS_H2)
            for k in range(2): I(f'global_store_dwordx4 v6, v[44:47], s[44:45] offset:{k*1024} sc1')
            self.base(44, P_WS, [(43, 2048), (3, 256)], WS_HQ2)
            I('s_mov_b64 exec, 0xffff'); I('global_store_dwordx4 v6, v[44:47], s[44:45] sc1'); self.exec_all()
            e.label(LNC2); e.vm = []; e.lg = ['SMEM']
        def xloads():
            LX = self.lab('xl'); saved = list(e.vm)
            I('s_cmp_lg_u32 s3, 0'); e.branch('s_cbranch_scc1', LX)
            I('v_lshlrev_b32 v9, 5, v1')
            I(f'global_load_dwordx4 v[64:67], v9, {sp(P_X)}'); I(f'global_load_dwordx4 v[68:71], v9, {sp(P_X)} offset:16')
            I('v_lshlrev_b32 v10, 10, v5'); I('v_lshl_add_u32 v10, v4, 3, v10'); I('s_lshl_b32 s6, s41, 8'); I('v_add_u32 v10, s6, v10')
            I(f'global_load_dwordx2 v[18:19], v10, {sp(P_X)}')
            e.label(LX); e.vm = saved
        CLA = cfg.get('clA', 0)
        if CLA:
            Lnc = self.lab('nca')
            I('s_mov_b32 s97, 0')
            I('s_cmp_ge_u32 s4, 4'); I(f's_cbranch_scc1 {Lnc}'); I('s_cmp_lt_u32 s5, 8'); I(f's_cbranch_scc1 {Lnc}')
            I('s_sub_u32 s43, s5, 8'); I('s_lshl_b32 s43, s43, 2'); I('s_add_u32 s43, s43, s4'); I('s_mov_b32 s97, 1')
            for k in range(4): I(f'v_mov_b32 v{44+k}, -1')
            self.kwait = True
            self.base(46, P_WS, [(43, 16384), (3, 2048)], WS_H2)
            for k in range(2): I(f'global_store_dwordx4 v6, v[44:47], s[46:47] offset:{k*1024} sc1')
            self.base(46, P_WS, [(43, 2048), (3, 256)], WS_HQ2)
            I('s_mov_b64 exec, 0xffff'); I('global_store_dwordx4 v6, v[44:47], s[46:47] sc1'); self.exec_all()
            e.label(Lnc); e.vm = []
        if cfg.get('lazy', 0):
            def btw():
                self.kwait = True
                self.base(44, P_WQ, [(41, 128*8192), (3, 16*8192), (40, 256)])
                if cfg.get('eref', 0): I('v_mov_b32 v31, 0'); I(f'global_load_dword v130, v31, {sp(P_DBG)} sc1')
            self.dma_256(44, 8192, L_WQ, 'wq', '32', between=btw)
            xloads()
        else:
            xloads()
            self.base(44, P_WQ, [(41, 128*8192), (3, 16*8192), (40, 256)])
            self.dma_256(44, 8192, L_WQ, 'wq', '32')
        self.stamp(1)
        e.cont()
        e.label(LWQ)
        if cfg.get('pt', 0) & 8:
            Lp = self.lab('pt'); saved = list(e.vm)
            I('s_cmp_lg_u32 s3, 6'); e.branch('s_cbranch_scc1', Lp, flush=False)
            I('v_and_b32 v9, 7, v1'); I('v_lshlrev_b32 v9, 16, v9'); I('v_add_u32 v9, 0xf080, v9'); I(f'global_load_dword v250, v9, {sp(P_WS)} sc1')
            I('v_mov_b32 v9, 64'); I(f'global_load_dword v251, v9, {sp(P_DBG)} sc1')
            e.label(Lp, flush=False); e.vm = saved
        if P1A or CLA:
            L1 = self.lab('c1'); saved = list(e.vm)
            if CLA: I('s_cmp_eq_u32 s97, 0'); e.branch('s_cbranch_scc1', L1)
            else: I('s_sub_u32 s6, s96, 64'); I('s_cmp_ge_u32 s6, 32'); e.branch('s_cbranch_scc1', L1)
            I('s_waitcnt vmcnt(4)'); I('s_barrier')
            I('s_cmp_lg_u32 s3, 7'); e.branch('s_cbranch_scc1', L1)
            I('v_mov_b32 v8, 0'); I('v_mov_b32 v9, 1'); I('s_mov_b64 exec, 1')
            I(f'global_atomic_add v10, v8, v9, {sp(P_DBG)} offset:192 sc0 sc1')
            I('s_waitcnt vmcnt(0)'); self.exec_all()
            I('v_readfirstlane_b32 s6, v10'); I('s_nop 3'); I('s_cmp_lg_u32 s6, 31'); e.branch('s_cbranch_scc1', L1)
            I('v_mov_b32 v9, 0x01010101'); I('s_mov_b64 exec, 1')
            I(f'global_store_dword v8, v9, {sp(P_DBG)} offset:128 sc1'); self.exec_all()
            e.label(L1); e.vm = saved
        if cfg.get('h3sent') == 4:
            self.sleep(cfg.get('clr_pre', 0))
            for k in range(4): I(f'v_mov_b32 v{240+k}, -1')
            self.base(46, P_WS, [(96, 32768), (3, 4096)], WS_H3)
            for q in range(4): I(f'global_store_dwordx4 v6, v[240:243], s[46:47] offset:{q*1024} {POL[cfg.get("clrpol", 0)]}', tag='clr')
        self.base(44, P_WUK, [(41, 128*8192), (3, 16*8192), (40, 256)])
        WL = cfg.get('wuk_late', 1)
        if not WL: self.dma_256(44, 8192, L_WUK, 'wuk', '16')
        WX = cfg.get('wuk_x', 0)
        if WX:
            Lx = self.lab('wx'); saved = list(e.vm)
            I('s_cmp_lt_u32 s4, 4'); e.branch('s_cbranch_scc1', Lx)
            self.dma_256(44, 8192, L_WUK, 'wuk', '16')
            e.label(Lx); e.vm = saved
        P1Q = cfg.get('p1q', 0)
        if P1Q:
            I('v_lshlrev_b32 v24, 12, v5'); I('v_lshl_add_u32 v24, v4, 4, v24'); I('v_add_u32 v25, 8192, v24'); I('v_add_u32 v128, 16384, v24'); I('v_add_u32 v129, 24576, v24')
        else:
            I('s_mov_b32 s6, 12288'); I('v_mul_lo_u32 v24, v5, s6'); I('v_lshl_add_u32 v24, v4, 4, v24'); I('v_add_u32 v25, 24576, v24')
        self.base(58, P_WS, [(41, 512)], self.modp)
        I('v_lshrrev_b32 v26, 3, v4'); I('v_lshlrev_b32 v26, 6, v26'); I('v_and_b32 v12, 3, v4'); I('v_lshl_add_u32 v26, v12, 4, v26')
        I('v_bfe_u32 v12, v4, 2, 1'); I('v_lshl_add_u32 v26, v12, 3, v26'); I('v_mul_u32_u24 v12, 320, v5'); I('v_add_u32 v26, v26, v12'); I(f'v_add_u32 v26, {L_HV2}, v26')
        I('v_and_b32 v12, 1, v2'); I('v_mul_u32_u24 v27, 320, v12'); I('v_lshl_add_u32 v27, v3, 4, v27'); I(f'v_add_u32 v27, {L_HV2}, v27')
        I('v_lshlrev_b32 v30, 8, v2'); I('v_lshl_add_u32 v30, v3, 3, v30'); self.sval('s6', [(3, 32)], L_OUT); I('v_add_u32 v30, s6, v30')
        I('v_lshlrev_b32 v40, 15, v3'); I('v_lshl_add_u32 v40, v2, 4, v40')
        I('v_mul_u32_u24 v28, 272, v3'); I('v_lshl_add_u32 v28, v2, 4, v28'); I(f'v_add_u32 v28, {L_QV}, v28')
        I('v_and_b32 v12, 7, v2'); I('v_mul_u32_u24 v29, 272, v12'); I('v_lshl_add_u32 v29, v3, 4, v29'); I(f'v_add_u32 v29, {L_QV}, v29')
        I(f's_mov_b32 s56, {f32(128**-0.5*math.log2(math.e))}'); I('v_mov_b32 v31, 0')
        self.base(46, P_WS, [(40, 2048), (41, 512)], WS_HQ2)
        self.tr_base_256(41, L_WQ)
        if cfg.get('rot', 0) & 1:
            Lt = self.lab('tg0'); saved = list(e.vm)
            I('v_mov_b32 v130, 0')
            I('s_cmp_lg_u32 s3, 0'); e.branch('s_cbranch_scc1', Lt, flush=False)
            self.sleep(cfg.get('rot_pre', 8))
            I(f'global_load_dword v130, v31, {sp(P_DBG)} sc1')
            e.label(Lt, flush=False); e.vm = saved
        if P1A == 3:
            Lw = self.lab('wqw')
            I('s_waitcnt vmcnt(1)'); I('s_cmp_eq_u32 s97, 1'); I(f's_cbranch_scc1 {Lw}'); e.wait_vm('wq'); e.label(Lw, flush=False)
        elif WX:
            Lx, Ly = self.lab('wx2'), self.lab('wx3')
            I('s_cmp_lt_u32 s4, 4'); e.branch('s_cbranch_scc1', Lx)
            I('s_waitcnt vmcnt(4)'); e.branch('s_branch', Ly)
            e.label(Lx)
        if P1A != 3: e.wait_vm('wq')
        if WL == 2: self.dma_256(44, 8192, L_WUK, 'wuk', '16')
        if WX: e.label(Ly)
        e.barrier()
        for s4 in range(4):
            I(f'ds_read_b64_tr_b16 {vr(96+4*s4,2)}, v41 offset:{s4*8192}'); I(f'ds_read_b64_tr_b16 {vr(98+4*s4,2)}, v41 offset:{s4*8192+4096}')
        LL = self.lab('ln')
        I('s_cmp_lg_u32 s3, 0'); e.branch('s_cbranch_scc1', LL)
        if cfg.get('rot', 0) & 1:
            Lt, Dt = self.lab('tg'), self.lab('tgd'); saved = list(e.vm)
            I(f's_mov_b32 s54, {SPIN}')
            e.label(Lt, flush=False)
            I('v_cmp_ne_u32 vcc, 0, v130'); I(f's_cbranch_vccnz {Dt}')
            I(f'global_load_dword v130, v31, {sp(P_DBG)} sc1'); I('s_waitcnt vmcnt(0)'); I('s_sub_u32 s54, s54, 1'); I(f's_cbranch_scc0 {Lt}')
            e.label(Dt, flush=False); e.vm = saved
            I('v_bfe_u32 v131, v130, 1, 8'); I('v_lshlrev_b32 v131, 15, v131')
            for r in (24, 25, 128, 129): I(f'v_add_u32 v{r}, v{r}, v131')
        I('v_mov_b32 v20, 0x3f803f80'); I('v_mov_b32 v14, 0')
        for k in range(8): I(f'v_dot2_f32_bf16 v14, v{64+k}, v20, v14')
        self.ror_reduce([14], [8, 4, 2, 1]); self.cross(16, 14, 21)
        I(f'v_mul_f32 v14, {f32(1/512)}, v14'); I('v_mov_b32 v15, 0')
        for k in range(8):
            I(f'v_lshlrev_b32 v21, 16, v{64+k}'); I('v_sub_f32 v21, v21, v14'); I('v_fmac_f32 v15, v21, v21')
            I(f'v_and_b32 v21, 0xffff0000, v{64+k}'); I('v_sub_f32 v21, v21, v14'); I('v_fmac_f32 v15, v21, v21')
        self.ror_reduce([15], [8, 4, 2, 1]); self.cross(16, 15, 21)
        I(f'v_mov_b32 v21, {f32(1e-5)}'); I(f'v_fmac_f32 v21, {f32(1/512)}, v15'); I('v_rsq_f32 v15, v21')
        I('v_lshlrev_b32 v20, 16, v18'); I('v_and_b32 v21, 0xffff0000, v18'); I('v_lshlrev_b32 v22, 16, v19'); I('v_and_b32 v23, 0xffff0000, v19')
        for k in range(4): I(f'v_sub_f32 v{20+k}, v{20+k}, v14')
        for k in range(4): I(f'v_mul_f32 v{20+k}, v{20+k}, v15')
        e.label(LL)
        def wuk_frags():
            I('v_xor_b32 v12, v3, v2'); I('v_lshlrev_b32 v12, 4, v12'); I('v_lshl_add_u32 v12, v2, 8, v12'); self.sval('s6', [(3, 4096)], L_WUK); I('v_add_u32 v12, s6, v12')
            for ks in range(4):
                I(f'v_xor_b32 v13, {ks<<6}, v12'); I(f'ds_read_b128 {vr(48+4*ks,4)}, v13')
        if not WL: e.wait_vm('wuk'); wuk_frags()
        self.stamp(2)
        L2, L = self.lab('fb'), self.lab('h1s')
        Lh, Dk, LW, L0, Lc = self.lab('h1l'), self.lab('h1ok'), self.lab('h1w'), self.lab('h10'), self.lab('h1c')
        h1l = [f'global_load_dwordx2 v[42:43], v31, {sp(P_DBG)} sc1',
               'global_load_dwordx4 v[72:75], v24, s[58:59] sc1', 'global_load_dwordx4 v[76:79], v24, s[58:59] offset:2048 sc1',
               'global_load_dwordx4 v[80:83], v25, s[58:59] sc1', 'global_load_dwordx4 v[84:87], v25, s[58:59] offset:2048 sc1']
        if P1Q:
            h1l += ['global_load_dwordx4 v[112:115], v128, s[58:59] sc1', 'global_load_dwordx4 v[116:119], v128, s[58:59] offset:2048 sc1',
                    'global_load_dwordx4 v[120:123], v129, s[58:59] sc1', 'global_load_dwordx4 v[124:127], v129, s[58:59] offset:2048 sc1']
        I('s_mov_b32 s57, s100')
        if cfg.get('eref', 0): I('v_readfirstlane_b32 s6, v130'); I('s_nop 3'); I('s_cmp_lg_u32 s6, 0'); I('s_cselect_b32 s57, s6, s57')
        I(f's_mov_b32 s54, {SPIN}'); I('s_cmp_eq_u32 s3, 0'); I('s_cselect_b32 s7, 0, 8'); I(f's_add_u32 s7, s7, {cfg.get("t_h1", 200)}')
        e.label(LW)
        I('s_memrealtime s[100:101]'); I('s_waitcnt lgkmcnt(0)'); I('s_sub_u32 s6, s100, s57'); I('s_cmp_lt_u32 s6, s7'); I(f's_cbranch_scc1 {LW}')
        I('s_cmp_lg_u32 s3, 0'); e.branch('s_cbranch_scc1', L0)
        for ld in h1l: I(ld.replace(' sc1', '') if cfg.get('h1plain', 0) else ld)
        e.label(L0); e.vm = []
        I('s_cmp_lg_u32 s3, 1'); e.branch('s_cbranch_scc1', L2)
        self.flagcheck_issue(1, 16)
        e.label(L2); e.vm = []
        if WL == 1: self.dma_256(44, 8192, L_WUK, 'wuk', '16')
        L2 = self.lab('fb2')
        I('s_cmp_lg_u32 s3, 1'); e.branch('s_cbranch_scc1', L2)
        e.vm = ['flag'] + e.vm
        self.flagcheck_finish(1, 16)
        e.label(L2)
        I('s_cmp_lg_u32 s3, 0'); e.branch('s_cbranch_scc1', L)
        H1B = cfg.get('h1b', 0)
        if H1B:
            RA = [72, 76, 80, 84, 112, 116, 120, 124]
            LW2 = self.lab('h1w2')
            e.label(LW2)
            I('s_memrealtime s[100:101]'); I('s_waitcnt lgkmcnt(0)'); I('s_sub_u32 s6, s100, s57'); I(f's_cmp_lt_u32 s6, {cfg["t_h1"] + H1B}'); I(f's_cbranch_scc1 {LW2}')
            for k, ld in enumerate(h1l[1:]): I(ld.replace(vr(RA[k],4), vr(136+4*k,4)))
            I('s_waitcnt vmcnt(8)')
            I('v_not_b32 v8, v42'); I('v_and_b32 v8, 1, v8')
            for b4 in RA:
                I(f'v_xor_b32 v9, v{b4+2}, v42'); I(f'v_xor_b32 v10, v{b4+3}, v43'); I('v_or3_b32 v8, v8, v9, v10')
            I('v_cmp_ne_u32 vcc, 0, v8'); I(f's_cbranch_vccz {Dk}')
            I('s_waitcnt vmcnt(0)')
            for k, b4 in enumerate(RA):
                I(f'v_mov_b64 {vr(b4,2)}, {vr(136+4*k,2)}'); I(f'v_mov_b64 {vr(b4+2,2)}, {vr(138+4*k,2)}')
        else: I(f's_waitcnt vmcnt({4 if WL == 1 else 0})')
        e.branch('s_branch', Lc)
        e.label(Lh)
        for ld in h1l: I(ld)
        I('s_waitcnt vmcnt(0)')
        e.label(Lc)
        I('v_not_b32 v8, v42'); I('v_and_b32 v8, 1, v8')
        for b4 in (72, 76, 80, 84) + ((112, 116, 120, 124) if P1Q else ()):
            I(f'v_xor_b32 v9, v{b4+2}, v42'); I(f'v_xor_b32 v10, v{b4+3}, v43'); I('v_or3_b32 v8, v8, v9, v10')
        I('v_cmp_ne_u32 vcc, 0, v8'); I(f's_cbranch_vccz {Dk}')
        self.stamp(5)
        I(f's_sleep {cfg.get("h1_loop", 4)}'); I('s_sub_u32 s54, s54, 1'); I(f's_cbranch_scc0 {Lh}')
        e.label(Dk, flush=False); e.vm = []
        self.stamp(3)
        I('v_mov_b32 v8, 0x00003f80'); I('v_mov_b32 v9, 0x3f800000')
        for k in range(4):
            I(f'v_dot2_f32_bf16 v{88+k}, v{72+(k>>1)}, v{8+(k&1)}, v{20+k}'); I(f'v_dot2_f32_bf16 v{92+k}, v{76+(k>>1)}, v{8+(k&1)}, 0')
        for b0 in (80,) + ((112, 120) if P1Q else ()):
            for k in range(4):
                I(f'v_dot2_f32_bf16 v{88+k}, v{b0+(k>>1)}, v{8+(k&1)}, v{88+k}'); I(f'v_dot2_f32_bf16 v{92+k}, v{b0+4+(k>>1)}, v{8+(k&1)}, v{92+k}')
        for k in range(4): I(f'v_fmac_f32 v{88+k}, v{20+k}, v{92+k}')
        I('v_cvt_pk_bf16_f32 v88, v88, v89'); I('v_cvt_pk_bf16_f32 v89, v90, v91')
        I('ds_write_b64 v26, v[88:89]')
        e.label(L); e.vm = []
        e.barrier()
        for s4 in range(4): I(f'ds_read_b128 {vr(64+4*s4,4)}, v27 offset:{s4*64}', tag=f'hv{s4}')
        I('s_mov_b64 s[38:39], 0')
        NOGO = cfg.get('spec_vm', 0) == 2
        if cfg.get('go_q', 0) == 0 and not NOGO: self.go_arrive()
        for s4 in range(4):
            e.wait_lg(f'hv{s4}')
            I(f'v_mfma_f32_16x16x32_bf16 v[80:83], {vr(96+4*s4,4)}, {vr(64+4*s4,4)}, {"0" if s4 == 0 else "v[80:83]"}')
        I('v_cvt_pk_bf16_f32 v80, v80, v81'); I('v_cvt_pk_bf16_f32 v81, v82, v83')
        self.exec_mask(48); I('ds_write_b64 v30, v[80:81]'); self.exec_all()
        LOCQ = cfg.get('loc', 0) & 4
        self.pub_lds(L_OUT, 6, 46, rd=132, pol='' if LOCQ else 'sc1')
        self.stamp(4)
        if LOCQ: I('s_mov_b64 s[52:53], s[46:47]')
        def hq_again():
            I('s_mov_b32 exec_hi, 0'); I('global_store_dwordx4 v6, v[132:135], s[52:53] sc1'); self.exec_all()
        def hq_fail():
            Lf = self.lab('hqf')
            I(f's_cmp_lg_u32 s54, {SPIN - cfg.get("loc_k", 4)}'); I(f's_cbranch_scc1 {Lf}'); hq_again(); e.label(Lf, flush=False)
        if cfg.get('go_q', 0) == 1 and not NOGO: self.go_arrive()
        self.base(44, P_WS, [(40, 2048)], WS_HQ2)
        self.base(46, P_WS, [(40, 1024), (41, 256)], WS_H2)
        Lg = self.lab('gw7')
        I('s_cmp_eq_u32 s3, 0'); e.branch('s_cbranch_scc1', Lg); I('s_waitcnt vmcnt(0)')
        if not NOGO: self.go_finish()
        if WL == 1: wuk_frags()
        e.label(Lg)
        if WL == 2: wuk_frags()
        Lq = self.lab('hq1')
        I('s_cmp_lg_u32 s3, 0'); e.branch('s_cbranch_scc1', Lq)
        self.poll('hq', [f'global_load_dwordx4 {vr(64+4*k,4)}, v6, s[44:45] offset:{k*1024} sc1' for k in range(2)], range(64, 72), cfg.get('d_hq', 8), loop_sleep=cfg.get('hq_loop', 2), onfail=hq_fail if LOCQ else None)
        I('ds_write_b128 v28, v[64:67]'); I(f'ds_write_b128 v28, v[68:71] offset:{4*272}')
        if WL == 1: wuk_frags()
        self.stamp(14)
        e.label(Lq); e.vm = []
        e.barrier()
        for ks in range(4): I(f'ds_read_b128 {vr(64+4*ks,4)}, v29 offset:{ks*64}', tag=f'qv{ks}')
        if cfg.get('h3sent') == 4:
            Lc = self.lab('ac')
            I('s_cmp_lg_u32 s3, 7'); e.branch('s_cbranch_scc1', Lc, flush=False)
            self.base(98, P_WS, [(96, 16)], WS_FL2)
            I('v_lshlrev_b32 v8, 11, v1'); I('s_and_b32 s6, s57, 0xfffffffe'); I('v_mov_b32 v9, s6')
            I('s_mov_b64 exec, 0xff'); I('global_store_dword v8, v9, s[98:99] sc1'); self.exec_all()
            e.label(Lc, flush=False); e.vm = []
        for ks in range(4):
            e.wait_lg(f'qv{ks}')
            I(f'v_mfma_f32_16x16x32_bf16 v[80:83], {vr(48+4*ks,4)}, {vr(64+4*ks,4)}, {"0" if ks == 0 else "v[80:83]"}')
        self.ror_reduce(range(80, 84), [2, 4])
        for k in range(4): I(f'v_mul_f32 v{80+k}, s56, v{80+k}')
        I('v_cvt_pk_bf16_f32 v80, v80, v81'); I('v_cvt_pk_bf16_f32 v81, v82, v83')
        self.exec_mask(48); I('ds_write_b64 v30, v[80:81]'); self.exec_all()
        self.pub_lds(L_OUT, 40, 46)
        self.stamp(6)
        if LOCQ:
            Lf = self.lab('hqa')
            I('s_cmp_lg_u32 s3, 0'); I(f's_cbranch_scc1 {Lf}'); self.sleep(cfg.get('loc_dq', 8)); hq_again(); e.label(Lf, flush=False)
        e.barrier()
        if cfg.get('h3sent') == 3:
            Lc, Lc1, Lc2 = self.lab('ac'), self.lab('ac1'), self.lab('ac2')
            I('s_cmp_ge_u32 s5, 12'); e.branch('s_cbranch_scc1', Lc)
            self.sleep(cfg.get('clr_pre', 0))
            for k in range(4): I(f'v_mov_b32 v{240+k}, -1')
            self.base(46, P_WS, [(96, 32768), (3, 4096)], WS_H3)
            for q in range(4): I(f'global_store_dwordx4 v6, v[240:243], s[46:47] offset:{q*1024} {POL[cfg.get("clrpol", 0)]}')
            I('s_cmp_lt_u32 s5, 8'); e.branch('s_cbranch_scc1', Lc1)
            I(f's_add_u32 s46, s46, {32*32768}'); I('s_addc_u32 s47, s47, 0')
            for q in range(4): I(f'global_store_dwordx4 v6, v[240:243], s[46:47] offset:{q*1024} {POL[cfg.get("clrpol", 0)]}')
            e.label(Lc1)
            self.base(46, P_WS, [(96, 16)], WS_FL2)
            I('v_and_b32 v8, 7, v1'); I('v_lshlrev_b32 v8, 11, v8'); I('v_lshrrev_b32 v9, 3, v1'); I('v_lshl_add_u32 v8, v9, 9, v8')
            I('s_mov_b32 s7, 0xff'); I('s_cmp_lt_u32 s5, 8'); I('s_cselect_b32 s7, s7, 0xffff')
            I('s_memrealtime s[100:101]')
            e.wait_vm(); e.barrier()
            I('s_cmp_lg_u32 s3, 7'); e.branch('s_cbranch_scc1', Lc)
            I('s_and_b32 s100, s100, 0xfffffffe'); I('v_mov_b32 v9, s100')
            I('s_mov_b32 exec_lo, s7'); I('s_mov_b32 exec_hi, 0'); I('global_store_dword v8, v9, s[46:47] sc1'); self.exec_all()
            e.label(Lc); e.vm = ['x']
            if cfg.get('fine'): self.stamp(11)
        I('s_cmp_lt_u32 s5, 8'); e.branch('s_cbranch_scc1', 'L_ROLE_F')
        I('s_lshl_b32 s43, s4, 2'); I('s_add_u32 s43, s43, s41')
        I('s_cmp_lt_u32 s5, 12'); e.branch('s_cbranch_scc1', 'L_LOAD_H')
        I('s_cmp_ge_u32 s43, 28'); e.branch('s_cbranch_scc1', 'L_FIN')
        if 'g_pre3' in cfg:
            Lg3 = self.lab('g3')
            self.sleep(cfg['g_pre3'])
            I('s_cmp_eq_u32 s41, 3'); I(f's_cbranch_scc1 {Lg3}')
            self.sleep(cfg['g_pre'] - cfg['g_pre3'])
            e.label(Lg3)
        else: self.sleep(cfg.get('g_pre', 0))
        if cfg.get('g2', 0) == 3:
            self.stage_g4()
            e.label('L_LOAD_H'); e.vm = []; e.lg = ['SMEM']
            self.stage_fin()
            e.label('L_ROLE_F'); e.vm = []; e.lg = ['SMEM']
            self.stage_f()
            return
        for (P, Lb) in ((P_WG, L_WG), (P_WU, L_WU)):
            self.base(44, P, [(3, 64*3584), (43, 128)])
            self.dma_128(44, 3584, 8, [(3, 8192)], Lb, 'gu')
            if cfg.get('gseq', 1) and P == P_WG: I('s_waitcnt vmcnt(2)')
        self.base(44, P_WD, [(43, 64*1024), (3, 128)])
        I('v_lshlrev_b32 v12, 1, v3'); I('v_and_b32 v9, 7, v1'); I('v_xor_b32 v12, v12, v9'); I('v_lshlrev_b32 v12, 4, v12'); I('v_lshrrev_b32 v9, 3, v1'); I('v_lshl_add_u32 v12, v9, 10, v12')
        for q in range(1 if cfg.get('noload') else 8):
            I(f'global_load_dwordx4 {vr(160+4*q,4)}, v12, s[44:45] nt')
            if q < 7: I('v_add_u32 v12, 8192, v12')
        GS = cfg.get('gside', 0)
        if cfg.get('g2', 0) == 2:
            I('s_waitcnt vmcnt(8)'); self.x1_side(True)
            I('v_lshrrev_b32 v9, 2, v2'); I('v_lshl_add_u32 v9, v3, 2, v9')
            I('v_bfe_u32 v10, v9, 1, 2'); I('v_lshlrev_b32 v10, 5, v10'); I('v_lshl_add_u32 v10, v9, 7, v10')
            I('v_and_b32 v9, 1, v2'); I('v_lshl_add_u32 v10, v9, 3, v10'); I('v_bfe_u32 v9, v2, 1, 1'); I('v_lshl_add_u32 v10, v9, 16, v10')
            I('s_lshl_b32 s6, s3, 13'); I('v_add_u32 v10, s6, v10')
            for t in range(8):
                I(f'v_xor_b32 v{8+(t&1)}, {t<<4}, v10')
                for s2 in range(2):
                    I(f'ds_read_b64_tr_b16 {vr(96+8*t+4*s2,2)}, v{8+(t&1)} offset:{s2*4096}'); I(f'ds_read_b64_tr_b16 {vr(98+8*t+4*s2,2)}, v{8+(t&1)} offset:{s2*4096+2048}')
            e.wait_lg()
        elif GS:
            I('s_waitcnt vmcnt(8)'); self.x1_side(True); I('s_barrier')
        else:
            e.wait_vm(); e.barrier()
        if cfg.get('g2', 0) != 2:
            I('v_lshrrev_b32 v9, 2, v2'); I('v_lshl_add_u32 v9, v3, 2, v9')
            I('v_bfe_u32 v10, v9, 1, 2'); I('v_lshlrev_b32 v10, 1, v10'); I('v_xor_b32 v10, s3, v10'); I('v_lshlrev_b32 v10, 4, v10'); I('v_lshl_add_u32 v10, v9, 7, v10')
            I('v_and_b32 v9, 1, v2'); I('v_lshl_add_u32 v10, v9, 3, v10'); I('v_bfe_u32 v9, v2, 1, 1'); I('v_lshl_add_u32 v10, v9, 16, v10')
            for s in range(16):
                I(f'ds_read_b64_tr_b16 {vr(96+4*s,2)}, v10 offset:{s*4096}'); I(f'ds_read_b64_tr_b16 {vr(98+4*s,2)}, v10 offset:{s*4096+2048}')
            e.barrier()
        if GS: I('s_waitcnt vmcnt(7)')
        I('s_lshl_b32 s6, s3, 13'); I('v_add_u32 v13, s6, v6')
        for q in range(8): I(f'ds_write_b128 v13, {vr(160+4*q,4)} offset:{q*1024}')
        self.tr_base_128(12, [(3, 8192)], 0)
        e.wait_lg()
        for t in range(4):
            I(f'v_xor_b32 v13, {t<<5}, v12')
            for s2 in range(2):
                I(f'ds_read_b64_tr_b16 {vr(32+8*t+4*s2,2)}, v13 offset:{s2*4096}'); I(f'ds_read_b64_tr_b16 {vr(34+8*t+4*s2,2)}, v13 offset:{s2*4096+2048}')
        self.stage_x1()
        e.label('L_LOAD_H'); e.vm = []; e.lg = ['SMEM']
        self.stage_fin()
        e.label('L_ROLE_F'); e.vm = []; e.lg = ['SMEM']
        self.stage_f()

    def stage_f(self):
        e, I, cfg = self.e, self.I, self.cfg
        if 'f_pre3' in cfg:
            Lf3 = self.lab('f3')
            self.sleep(cfg['f_pre3'])
            I('s_cmp_eq_u32 s5, 3'); I(f's_cbranch_scc1 {Lf3}')
            self.sleep(cfg['f_pre'] - cfg['f_pre3'])
            e.label(Lf3)
        else: self.sleep(cfg.get('f_pre', 0))
        I('s_lshl_b32 s6, s4, 3'); I('s_add_u32 s6, s6, s5'); I('s_lshr_b32 s56, s6, 5'); I('s_and_b32 s57, s6, 31'); I('s_add_u32 s57, s57, 16')
        def wo_dma():
            self.base(44, P_WO, [(4, 512*1024), (3, 64*1024), (5, 128)])
            self.dma_128(44, 1024, 8, [(3, 8192)], L_WO, 'wo')
        self.mod_tile(False, 64*K, 96*K, 98*K, mid2=wo_dma if cfg.get('wo_early', 0) else None)
        if not cfg.get('wo_early', 0): wo_dma()
        self.tr_base_128(12, [(3, 8192)], L_WO)
        e.wait_vm()
        for t in range(4):
            I(f'v_xor_b32 v13, {t<<5}, v12')
            for s in range(2):
                I(f'ds_read_b64_tr_b16 {vr(96+8*t+4*s,2)}, v13 offset:{s*4096}'); I(f'ds_read_b64_tr_b16 {vr(98+8*t+4*s,2)}, v13 offset:{s*4096+2048}')
        self.stamp(7)
        if cfg.get('h4dma', 0):
            I('v_lshrrev_b32 v10, 3, v1'); I('v_xor_b32 v9, v10, v1'); I('v_and_b32 v9, 7, v9'); I('v_lshlrev_b32 v9, 4, v9'); I('v_lshl_add_u32 v9, v10, 8, v9')
            I('v_and_b32 v10, 7, v2'); I('v_xor_b32 v16, v10, v3'); I('v_lshlrev_b32 v16, 4, v16'); I('v_lshl_add_u32 v16, v10, 7, v16')
            self.sval('s6', [(3, 1024)], 112*K); I('s_mov_b32 m0, s6'); I('v_add_u32 v16, s6, v16'); I('v_xor_b32 v17, 64, v16')
        else:
            I('v_and_b32 v9, 7, v2'); I('v_lshlrev_b32 v9, 8, v9'); I('v_lshl_add_u32 v9, v3, 4, v9')
        self.base(44, P_WS, [(4, 8192), (61, 2048), (62, 128)], WS_H4)
        I('v_and_b32 v10, 1, v2'); I('v_lshl_add_u32 v10, v3, 1, v10'); I('v_lshlrev_b32 v10, 9, v10')
        if cfg.get('cmp', 0) & 2:
            I('v_bfe_u32 v11, v2, 1, 2'); I('v_lshl_add_u32 v10, v11, 4, v10'); I('v_lshrrev_b32 v11, 3, v2'); I('v_lshl_add_u32 v10, v11, 13, v10')
        else:
            I('v_lshrrev_b32 v11, 1, v2'); I('v_lshl_add_u32 v10, v11, 4, v10')
        self.sval('s6', [(3, 64)], L_FRED); I('v_add_u32 v10, s6, v10')
        I('v_lshlrev_b32 v11, 9, v3'); I('v_lshl_add_u32 v11, v2, 4, v11'); self.sval('s6', [(3, 2048)], L_FRED); I('v_add_u32 v11, s6, v11')
        G2 = cfg.get('g2', 0)
        if G2:
            I('v_and_b32 v12, 1, v3'); I('v_lshlrev_b32 v12, 7, v12'); I('v_lshrrev_b32 v13, 1, v3'); I('v_lshl_add_u32 v12, v13, 3, v12'); self.sval('s6', [(3, 16)], L_OUT); I('v_add_u32 v12, s6, v12')
            I('v_lshrrev_b32 v13, 3, v2'); I('v_lshlrev_b32 v13, 10, v13'); I('v_and_b32 v14, 7, v2'); I('v_lshl_add_u32 v13, v14, 4, v13')
            self.base(46, P_WS, [(4, 2048), (5, 128)], WS_H5)
        elif cfg.get('publds', 1):
            I('v_and_b32 v12, 1, v3'); I('v_lshlrev_b32 v12, 8, v12'); I('v_lshrrev_b32 v13, 1, v3'); I('v_lshl_add_u32 v12, v13, 4, v12'); self.sval('s6', [(3, 32)], L_OUT); I('v_add_u32 v12, s6, v12')
            I('v_lshlrev_b32 v13, 11, v3'); I('v_lshl_add_u32 v13, v2, 4, v13')
            self.base(46, P_WS, [(4, 4096), (5, 256)], WS_H5)
        else:
            I('v_and_b32 v12, 1, v3'); I('v_lshlrev_b32 v12, 11, v12'); I('v_lshrrev_b32 v13, 1, v3'); I('v_lshl_add_u32 v12, v13, 4, v12')
            self.base(46, P_WS, [(4, 4096), (5, 256), (3, 32)], WS_H5)
        I('s_mov_b32 s56, 0x00ff00ff'); I('s_mov_b32 s57, 0x00ff00ff'); I('s_mov_b32 s58, 0x00010001'); I('s_mov_b32 s59, 0x00010001')
        I('s_lshl_b32 s97, s4, 3'); I('s_add_u32 s97, s97, s5')
        HS = cfg.get('hsplit', 0) and not cfg.get('hu5_early', 0)
        if HS: self.hu_prep(WS_HU5, 97, 38)
        if cfg.get('hu4m', 0) == 2: self.hu_wait_w(WS_HU4, [(4, 128)], 16, cfg['t_h4'])
        elif cfg.get('nohu4', 0): pass
        elif cfg.get('hu4m', 0): self.hu_wait_multi(WS_HU4, [(4, 128)], 15, 10, cfg['t_h4'], fwd=(WS_HU5, 97) if cfg.get('hu5_early', 0) == 2 else None)
        else: self.hu_wait(WS_HU4, 96, cfg['t_h4'])
        self.stamp(8)
        if cfg.get('hu5_early', 0) == 1: self.hu_set(WS_HU5, 97, wave=cfg.get('hu5_wave', 0))
        if cfg.get('h4dma', 0):
            Lp, Dp = self.lab('h4'), self.lab('h4d')
            I(f's_mov_b32 s54, {SPIN}')
            e.label(Lp)
            I('global_load_lds_dwordx4 v9, s[44:45] sc1'); e.wait_vm()
            I('ds_read_b128 v[64:67], v16'); I('ds_read_b128 v[68:71], v17'); e.wait_lg()
            r_ = self.maxtree(range(64, 72), 8)
            I(f'v_cmp_eq_u32 vcc, -1, v{r_}'); I(f's_cbranch_vccz {Dp}')
            I(f's_sleep {cfg.get("h4_loop", 4)}'); I('s_sub_u32 s54, s54, 1'); I(f's_cbranch_scc0 {Lp}')
            e.label(Dp, flush=False)
        else:
            self.poll('h4', ['global_load_dwordx4 v[64:67], v9, s[44:45] sc1', 'global_load_dwordx4 v[68:71], v9, s[44:45] offset:64 sc1'], range(64, 72), 0, loop_sleep=cfg.get('h4_loop', 4))
        if cfg.get('hu5m', 0) == 3: self.hu_set_w(WS_HU5, 97)
        elif HS: self.hu_clock()
        elif not cfg.get('hu5_early', 0): self.hu_set(WS_HU5, 97)
        self.stamp(9)
        for t in range(4): I(f'v_mfma_f32_16x16x32_bf16 {vr(72+4*t,4)}, {vr(96+8*t,4)}, v[64:67], 0')
        for t in range(4): I(f'v_mfma_f32_16x16x32_bf16 {vr(72+4*t,4)}, {vr(100+8*t,4)}, v[68:71], {vr(72+4*t,4)}')
        if HS: n0 = e.n; self.hu_store(38); e.n = n0 + 2
        if cfg.get('cmp', 0) & 2:
            I('s_not_b64 exec, s[56:57]')
            for k in range(4): I(f'v_mov_b64 {vr(72+2*k,2)}, {vr(80+2*k,2)}')
            self.exec_all()
            for t in range(2): I(f'ds_write_b128 v10, {vr(72+4*t,4)} offset:{t*4096}')
        else:
            self.exec_mask(56)
            for t in range(4): I(f'ds_write_b128 v10, {vr(72+4*t,4)} offset:{t*4096}')
            self.exec_all()
        e.barrier()
        I('ds_read_b128 v[64:67], v11'); I('ds_read_b128 v[68:71], v11 offset:256'); e.wait_lg()
        for k in range(4): I(f'v_add_f32 v{64+k}, v{64+k}, v{68+k}')
        self.ror_reduce(range(64, 68), [8, 4, 2, 1])
        if G2:
            I('v_cvt_pk_bf16_f32 v64, v64, v65'); I('v_cvt_pk_bf16_f32 v65, v66, v67')
            self.exec_mask(58); I('ds_write_b64 v12, v[64:65]'); self.exec_all()
            self.pub_lds(L_OUT, 13, 46, rd=68, lanes=16)
        elif cfg.get('publds', 1):
            self.exec_mask(58); I('ds_write_b128 v12, v[64:67]'); self.exec_all()
            self.pub_lds(L_OUT, 13, 46, rd=68)
        else:
            self.exec_mask(58); I('global_store_dwordx4 v12, v[64:67], s[46:47] sc1'); self.exec_all()
        self.stamp(10)
        e.branch('s_branch', 'L_FIN')

    def mod_tile(self, p1, lmt, lsc, lred, extra=None, early=False, after=None, mid=None, mid2=None):
        e, I, cfg = self.e, self.I, self.cfg
        ws = WS_MODP if p1 else WS_MODQ
        I('v_and_b32 v8, 1, v3'); I('v_lshlrev_b32 v8, 10, v8'); I('v_lshl_add_u32 v8, v2, 2, v8'); self.sval('s6', [(56, 512), (3, 64)]); I('v_add_u32 v8, s6, v8')
        I(f'global_load_dword v24, v8, {sp(P_C)} {self.spol}', tag='c')
        NT = 2 if p1 else 4
        if p1:
            self.base(44, P_WMOD, [(56, 256*6144), (3, 32*6144), (57, 64)])
            I('v_lshrrev_b32 v11, 2, v1'); I('v_mul_u32_u24 v11, 6144, v11'); I('v_and_b32 v9, 3, v1'); I('v_lshl_add_u32 v11, v9, 4, v11')
            self.sval('s53', [(3, 2048)], lmt)
            I('s_mov_b32 m0, s53'); I(f'v_add_u32 v12, {16*6144}, v11'); I('global_load_lds_dwordx4 v11, s[44:45] nt', tag='wmod')
            I('s_add_u32 m0, s53, 1024'); I('global_load_lds_dwordx4 v12, s[44:45] nt', tag='wmod')
        else:
            self.base(44, P_WMOD, [(56, 256*6144), (3, 32*6144), (57, 128)])
            self.dma_128(44, 6144, 4, [(3, 4096)], lmt, 'wmod')
        def wait2(tag):
            if not mid: e.wait_vm(tag); return
            idxs = [i for i, t in enumerate(e.vm) if t == tag]; n = len(e.vm) - 1 - idxs[-1]
            Lw = self.lab('w2')
            I(f's_waitcnt vmcnt({n+4})'); I('s_cmp_ge_u32 s3, 2'); I(f's_cbranch_scc1 {Lw}'); e.wait_vm(tag); e.label(Lw, flush=False)
        if mid: mid()
        if mid2: mid2()
        if early: e.cont()
        if p1 and cfg.get('p1st'): self.stamp(14)
        wait2('c')
        if p1 and cfg.get('p1st'): self.stamp(11)
        if extra: extra()
        I('v_lshlrev_b32 v28, 16, v24'); I('v_and_b32 v29, 0xffff0000, v24')
        I(f's_mov_b32 s6, {f32(-math.log2(math.e))}')
        for r in (28, 29): I(f'v_mul_f32 v{r+2}, s6, v{r}')
        for r in (30, 31): I(f'v_exp_f32 v{r}, v{r}')
        for r in (30, 31): I(f'v_add_f32 v{r}, 1.0, v{r}')
        for r in (30, 31): I(f'v_rcp_f32 v{r}, v{r}')
        for r in (28, 29): I(f'v_mul_f32 v{r}, v{r}, v{r+2}')
        I('v_cvt_pk_bf16_f32 v28, v28, v29')
        self.sval('s6', [(3, 256)], lsc); I('v_lshlrev_b32 v8, 2, v1'); I('v_add_u32 v8, s6, v8'); I('ds_write_b32 v8, v28')
        I('v_and_b32 v9, 1, v2'); I('v_lshlrev_b32 v9, 6, v9'); I('v_lshl_add_u32 v9, v3, 3, v9'); I('v_add_u32 v9, s6, v9')
        e.wait_lg()
        I('ds_read2_b64 v[48:51], v9 offset0:0 offset1:4')
        if p1:
            I('v_lshrrev_b32 v9, 2, v1'); I('v_lshlrev_b32 v12, 6, v9'); I('v_and_b32 v9, 3, v2'); I('v_lshl_add_u32 v12, v9, 3, v12'); I('v_add_u32 v12, s53, v12')
        else: self.tr_base_128(12, [(3, 4096)], lmt)
        I('v_lshlrev_b32 v14, 6, v2'); I('v_lshl_add_u32 v14, v3, 4, v14'); self.sval('s6', [(3, 512)], lred); I('v_add_u32 v14, s6, v14')
        I('v_lshrrev_b32 v15, 1, v2'); I('v_lshlrev_b32 v15, 9, v15'); I('v_and_b32 v10, 1, v2'); I('v_lshl_add_u32 v15, v10, 6, v15'); I('v_lshl_add_u32 v15, v3, 4, v15')
        self.sval('s6', [(55, 128)], lred); I('v_add_u32 v15, s6, v15')
        I('s_mov_b32 s6, 12288'); I('v_mul_lo_u32 v26, v2, s6'); I('v_lshl_add_u32 v26, v3, 4, v26')
        self.base(46, P_WS, [(56, 24576), (57, 128 if p1 else 256), (55, 64)], ws)
        if p1:
            self.sleep(cfg.get('ep_pre', 0))
            I('v_mov_b32 v27, 0')
            if mid:
                Lw = self.lab('w3')
                I('s_cmp_lt_u32 s3, 2'); I(f's_cbranch_scc1 {Lw}'); I('s_waitcnt vmcnt(4)'); I(f's_branch {Lw}x')
                e.label(Lw, flush=False)
            I(f'global_load_dwordx2 v[90:91], v27, {sp(P_DBG)} sc1', tag='ep')
        e.wait_vm('wmod')
        if mid: e.label(Lw + 'x', flush=False)
        if p1:
            self.stamp(13)
        nafter = after() if after else 0
        for t in range(NT):
            I(f'v_xor_b32 v13, {t<<5}, v12')
            I(f'ds_read_b64_tr_b16 {vr(56+4*t,2)}, v13', tag=f'mt{t}'); I(f'ds_read_b64_tr_b16 {vr(58+4*t,2)}, v13 offset:{1024 if p1 else 2048}', tag=f'mt{t}')
        for t in range(NT):
            e.wait_lg(f'mt{t}')
            I(f'v_mfma_f32_16x16x32_bf16 {vr(72+4*t,4)}, {vr(56+4*t,4)}, v[48:51], 0')
        self.exec_mask(48)
        for t in range(NT): I(f'ds_write_b128 v14, {vr(72+4*t,4)} offset:{t*128}')
        self.exec_all()
        e.barrier()
        L = self.lab('mw')
        I(f's_cmp_ge_u32 s3, {NT}'); e.branch('s_cbranch_scc1', L)
        I(f'ds_read_b128 v[72:75], v15'); e.wait_lg()
        self.ror_reduce(range(72, 76), [8, 4, 2])
        saved = list(e.vm)
        if p1:
            I('v_cvt_pk_bf16_f32 v88, v72, v73'); I('v_cvt_pk_bf16_f32 v89, v74, v75')
            Le, De = self.lab('epl'), self.lab('epd')
            I(f's_mov_b32 s54, {SPIN}'); I(f's_waitcnt vmcnt({nafter})')
            e.label(Le, flush=False)
            I('v_cmp_eq_u32 vcc, 0, v90'); I(f's_cbranch_vccz {De}'); I('s_sleep 2')
            I(f'global_load_dwordx2 v[90:91], v27, {sp(P_DBG)} sc1'); I('s_waitcnt vmcnt(0)'); I('s_sub_u32 s54, s54, 1'); I(f's_cbranch_scc0 {Le}')
            e.label(De, flush=False)
            self.exec_mask(48); I('global_store_dwordx4 v26, v[88:91], s[46:47] sc1'); self.exec_all()
        else:
            self.exec_mask(48); I('global_store_dwordx4 v26, v[72:75], s[46:47] sc1'); self.exec_all()
        e.label(L); e.vm = saved

    def p1_tile(self, lmt, lred, after=None, mid=None):
        e, I, cfg = self.e, self.I, self.cfg
        I('v_and_b32 v8, 1, v2'); I('v_lshlrev_b32 v8, 10, v8'); I('v_lshl_add_u32 v8, v3, 3, v8'); self.sval('s6', [(56, 256), (3, 32)]); I('v_add_u32 v8, s6, v8')
        if cfg.get('lazy', 0):
            def btw():
                self.kwait = True
                self.base(44, P_WMOD, [(56, 128*6144), (3, 16*6144), (57, 128)])
                I(f'global_load_dwordx2 v[24:25], v8, {sp(P_C)}', tag='c')
            self.dma_128(44, 6144, 2, [(3, 2048)], lmt, 'wmod', between=btw)
            self.ckv_base()
        else:
            I(f'global_load_dwordx2 v[24:25], v8, {sp(P_C)}', tag='c')
            self.base(44, P_WMOD, [(56, 128*6144), (3, 16*6144), (57, 128)])
            if cfg.get('p1bar', 0): I('s_barrier')
            self.dma_128(44, 6144, 2, [(3, 2048)], lmt, 'wmod')
        if mid: mid()
        e.cont()
        if cfg.get('pt', 0) & 4:
            Lp = self.lab('pt'); saved = list(e.vm)
            I('s_cmp_lg_u32 s3, 7'); e.branch('s_cbranch_scc1', Lp, flush=False)
            I('v_mov_b32 v9, 0xf000'); I(f'global_store_dword v9, v9, {sp(P_WS)}')
            e.label(Lp, flush=False); e.vm = saved
        if cfg.get('p1st'): self.stamp(14)
        self.tr_base_128(12, [(3, 2048)], lmt)
        I('v_lshlrev_b32 v14, 6, v2'); I('v_lshl_add_u32 v14, v3, 4, v14'); self.sval('s6', [(3, 512)], lred); I('v_add_u32 v14, s6, v14')
        I('v_lshrrev_b32 v15, 1, v2'); I('v_lshlrev_b32 v15, 9, v15'); I('v_and_b32 v10, 1, v2'); I('v_lshl_add_u32 v15, v10, 6, v15'); I('v_lshl_add_u32 v15, v3, 4, v15')
        FULL = cfg.get('p1full', 0)
        self.sval('s6', [(55, 256 if FULL else 128)], lred); I('v_add_u32 v15, s6, v15')
        if FULL:
            I('v_lshlrev_b32 v26, 12, v10'); I('v_bfe_u32 v10, v2, 1, 1'); I('v_lshl_add_u32 v26, v10, 6, v26'); I('v_lshl_add_u32 v26, v3, 4, v26')
            I('v_cmp_eq_u32 s[58:59], 1, v10')
            self.base(46, P_WS, [(56, 8192), (57, 256), (55, 128)], self.modp)
        else:
            I('v_lshlrev_b32 v26, 12, v10'); I('v_lshl_add_u32 v26, v3, 4, v26')
            self.base(46, P_WS, [(56, 8192), (57, 256), (55, 64)], self.modp)
        I('v_mov_b32 v27, 0')
        e.wait_vm('c')
        if cfg.get('p1st'): self.stamp(11)
        I('v_lshlrev_b32 v28, 16, v24'); I('v_and_b32 v29, 0xffff0000, v24'); I('v_lshlrev_b32 v30, 16, v25'); I('v_and_b32 v31, 0xffff0000, v25')
        I(f's_mov_b32 s6, {f32(-math.log2(math.e))}')
        for r in range(4): I(f'v_mul_f32 v{48+r}, s6, v{28+r}')
        for r in range(4): I(f'v_exp_f32 v{48+r}, v{48+r}')
        for r in range(4): I(f'v_add_f32 v{48+r}, 1.0, v{48+r}')
        for r in range(4): I(f'v_rcp_f32 v{48+r}, v{48+r}')
        for r in range(4): I(f'v_mul_f32 v{28+r}, v{28+r}, v{48+r}')
        I('v_cvt_pk_bf16_f32 v48, v28, v29'); I('v_cvt_pk_bf16_f32 v49, v30, v31')
        self.sleep(cfg.get('ep_pre', 0))
        SEP = cfg.get('sep', 0)
        if SEP == 0:
            if cfg.get('flag1', 0):
                Lx = self.lab('epx')
                I(f's_cmp_lt_u32 s3, {2 if FULL else 4}'); I(f's_cbranch_scc1 {Lx}'); I('s_waitcnt vmcnt(0)'); I(f's_branch {Lx}y'); e.label(Lx, flush=False)
            I(f'global_load_dwordx2 v[90:91], v27, {sp(P_DBG)} sc1', tag='ep')
        if SEP == 1: I(f's_load_dwordx2 s[52:53], {sp(P_DBG)}, 0'); e.lg.append('SMEM')
        e.wait_vm('wmod')
        if SEP == 0 and cfg.get('flag1', 0): e.label(Lx + 'y', flush=False)
        if SEP == 2: I(f's_load_dwordx2 s[52:53], {sp(P_DBG)}, 0'); e.lg.append('SMEM')
        self.stamp(13)
        nafter = after() if after else 0
        for t in range(4):
            I(f'v_xor_b32 v{8+t}, {t<<5}, v12')
            I(f'ds_read_b64_tr_b16 {vr(56+2*t,2)}, v{8+t}', tag=f'mt{t}')
        for t in range(4):
            e.wait_lg(f'mt{t}')
            I(f'v_mfma_f32_16x16x16_bf16 {vr(72+4*t,4)}, {vr(56+2*t,2)}, v[48:49], 0')
        if cfg.get('cmp', 0) & 4:
            for t in range(1, 4):
                I(f's_lshl_b64 exec, s[48:49], {2*t}'); I(f'v_mov_b64 v[72:73], {vr(72+4*t,2)}'); I(f'v_mov_b64 v[74:75], {vr(74+4*t,2)}')
            I('s_mov_b32 exec_lo, 0x00ff00ff'); I('s_mov_b32 exec_hi, 0x00ff00ff'); I('ds_write_b128 v14, v[72:75]')
        else:
            self.exec_mask(48)
            for t in range(4): I(f'ds_write_b128 v14, {vr(72+4*t,4)} offset:{t*128}')
        self.exec_all()
        e.barrier()
        L = self.lab('mw')
        I(f's_cmp_ge_u32 s3, {2 if FULL else 4}'); e.branch('s_cbranch_scc1', L)
        I(f'ds_read_b128 v[72:75], v15')
        if FULL: I(f'ds_read_b128 v[76:79], v15 offset:128')
        e.wait_lg()
        self.ror_reduce(range(72, 80 if FULL else 76), [8, 4, 2])
        saved = list(e.vm)
        I('v_cvt_pk_bf16_f32 v88, v72, v73'); I('v_cvt_pk_bf16_f32 v89, v74, v75')
        if FULL:
            I('v_cvt_pk_bf16_f32 v76, v76, v77'); I('v_cvt_pk_bf16_f32 v77, v78, v79')
            I('v_cndmask_b32 v88, v88, v76, s[58:59]'); I('v_cndmask_b32 v89, v89, v77, s[58:59]')
        Le, De = self.lab('epl'), self.lab('epd')
        I(f's_mov_b32 s54, {SPIN}')
        if SEP: I('v_mov_b32 v90, s52'); I('v_mov_b32 v91, s53')
        else: I(f's_waitcnt vmcnt({nafter})')
        e.label(Le, flush=False)
        I('v_cmp_eq_u32 vcc, 0, v90'); I(f's_cbranch_vccz {De}'); I('s_sleep 2')
        I(f'global_load_dwordx2 v[90:91], v27, {sp(P_DBG)} sc1'); I('s_waitcnt vmcnt(0)'); I('s_sub_u32 s54, s54, 1'); I(f's_cbranch_scc0 {Le}')
        e.label(De, flush=False)
        if cfg.get('rot', 0) & 1: I('v_bfe_u32 v27, v90, 1, 8'); I('v_lshl_add_u32 v26, v27, 15, v26')
        if FULL: I('s_mov_b32 exec_lo, 0x000f000f'); I('s_mov_b32 exec_hi, 0x000f000f')
        else: self.exec_mask(48)
        I('global_store_dwordx4 v26, v[88:91], s[46:47] sc1'); self.exec_all()
        e.label(L); e.vm = saved

    def hu_wait(self, ws, sidx, dticks):
        e, I = self.e, self.I
        L, LW = self.lab('hus'), self.lab('huw')
        I('s_cmp_lg_u32 s3, 0'); e.branch('s_cbranch_scc1', L)
        self.base(98, P_WS, [(sidx, 128)], ws)
        I('v_mov_b32 v15, 0')
        self.poll('hu', ['global_load_dword v14, v15, s[98:99] sc1'], [14], 0, loop_sleep=self.cfg.get('hu_loop', 1))
        I('v_readfirstlane_b32 s7, v14')
        e.label(LW)
        I('s_memrealtime s[100:101]'); I('s_waitcnt lgkmcnt(0)')
        I('s_sub_u32 s6, s100, s7'); I(f's_cmp_lt_u32 s6, {dticks}'); I(f's_cbranch_scc1 {LW}')
        e.label(L)
        e.barrier()
    def hu_pre(self, ws, terms, mask, sh):
        e, I = self.e, self.I
        L = self.lab('hpr'); saved = list(e.vm)
        I('s_cmp_lg_u32 s3, 0'); e.branch('s_cbranch_scc1', L, flush=False)
        self.base(98, P_WS, terms, ws)
        I(f'v_and_b32 v15, {mask}, v1'); I(f'v_lshlrev_b32 v15, {sh}, v15'); I('global_load_dword v14, v15, s[98:99] sc1')
        e.label(L, flush=False); e.vm = saved
    def hu_wait_multi(self, ws, terms, mask, sh, dticks, pre=0, fwd=None, early=False):
        e, I = self.e, self.I
        L, LW = self.lab('hms'), self.lab('hmw')
        I('s_cmp_lg_u32 s3, 0'); e.branch('s_cbranch_scc1', L)
        if early:
            Dq = self.lab('hok')
            I('s_waitcnt vmcnt(0)'); I('v_cmp_eq_u32 vcc, -1, v14'); I(f's_cbranch_vccz {Dq}')
        else:
            self.base(98, P_WS, terms, ws)
            I(f'v_and_b32 v15, {mask}, v1'); I(f'v_lshlrev_b32 v15, {sh}, v15')
        self.poll('hm', ['global_load_dword v14, v15, s[98:99] sc1'], [14], pre, loop_sleep=self.cfg.get('hm_loop', 2))
        if early: e.label(Dq, flush=False)
        if fwd:
            I('s_memrealtime s[100:101]'); self.base(98, P_WS, [(fwd[1], 128)], fwd[0]); I('s_waitcnt lgkmcnt(0)')
            I('s_add_u32 s100, s100, 64'); I('v_sub_u32 v15, s100, v14')
            for sft in (8, 4, 2, 1): I(f'v_min_u32_dpp v15, v15, v15 row_ror:{sft} {DPPM}')
            I('v_sub_u32 v250, s100, v15'); I('v_mov_b32 v251, 0'); I('s_mov_b64 exec, 1'); I('global_store_dword v251, v250, s[98:99] sc1'); self.exec_all()
        I(f'v_mov_b32 v8, {dticks}')
        e.label(LW)
        I('s_memrealtime s[100:101]'); I('s_waitcnt lgkmcnt(0)')
        I('v_sub_u32 v15, s100, v14'); I('v_cmp_lt_u32 vcc, v15, v8'); I(f's_cbranch_vccnz {LW}')
        e.label(L); e.vm = []
        e.barrier()
    def hu_set_w(self, ws, sidx):
        e, I = self.e, self.I
        I('s_memrealtime s[100:101]')
        self.base(98, P_WS, [(sidx, 128), (3, 4)], ws)
        I('s_waitcnt lgkmcnt(0)'); I('s_and_b32 s100, s100, 0xfffffffe'); e.lg = []
        I('v_mov_b32 v251, 0'); I('v_mov_b32 v250, s100'); I('s_mov_b64 exec, 1'); I('global_store_dword v251, v250, s[98:99] sc1'); self.exec_all()
    def hu_wait_w(self, ws, terms, nl, dticks, pre=0):
        e, I = self.e, self.I
        L, LW = self.lab('hws'), self.lab('hww')
        I('s_cmp_lg_u32 s3, 0'); e.branch('s_cbranch_scc1', L)
        self.base(98, P_WS, terms, ws)
        if nl == 16:
            I('v_lshlrev_b32 v15, 10, v2'); I('v_lshl_add_u32 v15, v3, 3, v15')
            regs = [240, 241]
            self.poll('hw', ['global_load_dwordx2 v[240:241], v15, s[98:99] sc1'], regs, pre, loop_sleep=self.cfg.get('hm_loop', 2))
        else:
            I('v_lshlrev_b32 v15, 7, v1')
            regs = list(range(240, 248))
            self.poll('hw', ['global_load_dwordx4 v[240:243], v15, s[98:99] sc1', 'global_load_dwordx4 v[244:247], v15, s[98:99] offset:16 sc1'], regs, pre, loop_sleep=self.cfg.get('hm_loop', 2))
        I('s_memrealtime s[100:101]'); I('s_waitcnt lgkmcnt(0)')
        for r in regs: I(f'v_sub_u32 v{r}, s100, v{r}')
        if nl == 16: I('v_min_u32 v14, v240, v241')
        else:
            I('v_min3_u32 v14, v240, v241, v242'); I('v_min3_u32 v14, v14, v243, v244'); I('v_min3_u32 v14, v14, v245, v246'); I('v_min_u32 v14, v14, v247')
        I('v_sub_u32 v14, s100, v14')
        I(f'v_mov_b32 v8, {dticks}')
        e.label(LW)
        I('s_memrealtime s[100:101]'); I('s_waitcnt lgkmcnt(0)')
        I('v_sub_u32 v15, s100, v14'); I('v_cmp_lt_u32 vcc, v15, v8'); I(f's_cbranch_vccnz {LW}')
        e.label(L)
        e.barrier()
    def hu_prep(self, ws, sidx, sreg):
        self.base(sreg, P_WS, [(sidx, 128)], ws); self.I('v_mov_b32 v251, 0')
    def hu_clock(self):
        self.I('s_memrealtime s[100:101]'); self.e.lg.append('SMEM')
    def hu_store(self, sreg, wave=0, pol='sc1'):
        e, I = self.e, self.I
        L = self.lab('hst'); saved = list(e.vm)
        I(f's_cmp_lg_u32 s3, {wave}'); I(f's_cbranch_scc1 {L}')
        I('s_waitcnt lgkmcnt(0)'); I('s_and_b32 s100, s100, 0xfffffffe')
        I('v_mov_b32 v250, s100'); I('s_mov_b64 exec, 1'); I(f'global_store_dword v251, v250, s[{sreg}:{sreg+1}] {pol}'); self.exec_all()
        e.label(L, flush=False); e.vm = saved
    def hu_set(self, ws, sidx, wave=0):
        e, I = self.e, self.I
        L = self.lab('hset')
        saved = list(e.vm)
        I(f's_cmp_lg_u32 s3, {wave}'); e.branch('s_cbranch_scc1', L, flush=False)
        I('s_memrealtime s[100:101]')
        self.base(98, P_WS, [(sidx, 128)], ws)
        I('s_waitcnt lgkmcnt(0)'); I('s_and_b32 s100, s100, 0xfffffffe')
        I('v_mov_b32 v251, 0'); I('v_mov_b32 v250, s100'); I('s_mov_b64 exec, 1'); I('global_store_dword v251, v250, s[98:99] sc1'); self.exec_all()
        e.label(L, flush=False); e.vm = saved

    def pub_lds(self, lout, vaddr_g, sbase, rd=64, lanes=32, pol='sc1'):
        e, I = self.e, self.I
        L = self.lab('pub')
        e.barrier()
        I('s_cmp_lg_u32 s3, 0'); e.branch('s_cbranch_scc1', L, flush=False)
        I('s_mov_b32 exec_hi, 0' if lanes == 32 else 's_mov_b64 exec, 0xffff')
        I(f'ds_read_b128 {vr(rd,4)}, v253'); I('s_waitcnt lgkmcnt(0)')
        I(f'global_store_dwordx4 v{vaddr_g}, {vr(rd,4)}, s[{sbase}:{sbase+1}] {pol}'); self.exec_all()
        e.label(L, flush=False); e.lg = ['SMEM']
    def go_arrive(self, late=False):
        e, I = self.e, self.I
        L = self.lab('ga'); saved = list(e.vm)
        I('s_cmp_lg_u32 s3, 7'); e.branch('s_cbranch_scc1', L)
        I('s_cmp_eq_u64 s[38:39], 0'); e.branch('s_cbranch_scc1' if late else 's_cbranch_scc0', L)
        self.base(98, P_WS, [(4, 128)], WS_GOC)
        I('v_mov_b32 v248, 0'); I('v_mov_b32 v249, 1'); I('s_mov_b64 exec, 1')
        I(f'global_atomic_add v247, v248, v249, s[98:99] sc0 sc1'); self.exec_all()
        if late: I('s_waitcnt vmcnt(0)')
        e.label(L); e.vm = saved
    def go_finish(self):
        e, I = self.e, self.I
        L = self.lab('gf'); saved = list(e.vm)
        I('s_cmp_lg_u32 s3, 7'); e.branch('s_cbranch_scc1', L, flush=False)
        I('v_readfirstlane_b32 s6, v247'); I('s_memrealtime s[100:101]'); I('s_cmp_lg_u32 s6, 14'); I('s_waitcnt lgkmcnt(0)'); I(f's_cbranch_scc1 {L}')
        self.base(98, P_WS, [(4, 128)], WS_HU2)
        I('s_and_b32 s100, s100, 0xfffffffe')
        I('v_mov_b32 v251, 0'); I('v_mov_b32 v250, s100'); I('s_mov_b64 exec, 1'); I('global_store_dword v251, v250, s[98:99] sc1'); self.exec_all()
        e.label(L, flush=False); e.vm = saved
    def go_wait(self, dticks, mask=7, nobar=False):
        e, I = self.e, self.I
        L, LW = self.lab('gws'), self.lab('gww')
        I('s_cmp_lg_u32 s3, 0'); e.branch('s_cbranch_scc1', L)
        self.base(98, P_WS, [], WS_HU2)
        I(f'v_and_b32 v15, {mask}, v1'); I('v_lshlrev_b32 v15, 7, v15')
        GE = self.cfg.get('go_early', 0)
        if GE:
            Dg = self.lab('goe')
            I('v_cmp_eq_u32 vcc, -1, v14'); I(f's_cbranch_vccz {Dg}')
        self.poll('go', ['global_load_dword v14, v15, s[98:99] sc1'], [14], 0, loop_sleep=self.cfg.get('go_loop', 2))
        if GE: e.label(Dg, flush=False)
        I(f'v_mov_b32 v13, {dticks}')
        e.label(LW)
        I('s_memrealtime s[100:101]'); I('s_waitcnt lgkmcnt(0)')
        I('v_sub_u32 v15, s100, v14'); I('v_cmp_lt_u32 vcc, v15, v13'); I(f's_cbranch_vccnz {LW}')
        e.label(L)
        if not nobar: e.barrier()

    def x1_side(self, issue_only):
        e, I, cfg = self.e, self.I, self.cfg
        if cfg.get('g2', 0) >= 2:
            I('v_and_b32 v244, 7, v2'); I('v_lshlrev_b32 v244, 5, v244'); I('v_lshl_add_u32 v244, v3, 3, v244'); I('v_lshrrev_b32 v245, 1, v244')
            I('v_lshrrev_b32 v246, 3, v2'); I('v_lshl_add_u32 v245, v246, 10, v245'); I('v_mul_u32_u24 v246, 12288, v246'); I('v_add_u32 v244, v244, v246')
            self.base(56, P_X, [(3, 128)])
            I('global_load_dword v16, v245, s[56:57]')
            self.base(56, P_WS, [(3, 256)], WS_MODQ + 4096)
        else:
            if cfg.get('g2', 0): I('v_lshlrev_b32 v244, 5, v2'); I('v_lshl_add_u32 v244, v3, 3, v244')
            else: I('v_lshlrev_b32 v244, 4, v4'); I('v_lshl_add_u32 v244, v5, 3, v244')
            I('v_lshrrev_b32 v245, 1, v244')
            self.base(56, P_X, [(60, 1024), (55, 256)])
            I('global_load_dword v16, v245, s[56:57]')
            self.base(56, P_WS, [(60, 12288), (55, 512)], WS_MODQ + 4096)
        I('v_add_u32 v245, 4096, v244'); I('v_add_u32 v246, 24576, v244'); I('v_add_u32 v247, 28672, v244')
        self.mr_loads = ['global_load_dwordx2 v[18:19], v244, s[56:57] sc1', 'global_load_dwordx2 v[20:21], v244, s[56:57] offset:2048 sc1', 'global_load_dwordx2 v[22:23], v245, s[56:57] sc1',
                         'global_load_dwordx2 v[26:27], v246, s[56:57] sc1', 'global_load_dwordx2 v[28:29], v246, s[56:57] offset:2048 sc1', 'global_load_dwordx2 v[30:31], v247, s[56:57] sc1']
        if issue_only:
            for ld in self.mr_loads: I(ld)
        else:
            self.poll('mr', self.mr_loads, [18, 19, 20, 21, 22, 23, 26, 27, 28, 29, 30, 31], 0)
    def stage_x1(self):
        e, I, cfg = self.e, self.I, self.cfg
        self.stamp(7)
        if cfg.get('gside', 0):
            Dm = self.lab('mrok')
            e.wait_vm()
            r_ = self.maxtree([18, 19, 20, 21, 22, 23, 26, 27, 28, 29, 30, 31], 8)
            I(f'v_cmp_eq_u32 vcc, -1, v{r_}'); I(f's_cbranch_vccz {Dm}')
            self.poll('mr', self.mr_loads, [18, 19, 20, 21, 22, 23, 26, 27, 28, 29, 30, 31], 0)
            e.label(Dm, flush=False)
        else:
            self.x1_side(False)
        for k in range(6): I(f'v_add_f32 v{18+k}, v{18+k}, v{26+k}')
        I('v_add_f32 v22, 1.0, v22'); I('v_add_f32 v23, 1.0, v23')
        I('v_and_b32 v17, 0xffff0000, v16'); I('v_lshlrev_b32 v16, 16, v16')
        if cfg.get('g2', 0) == 2: return self.stage_g3()
        if cfg.get('g2', 0): return self.stage_g2()
        I('v_lshlrev_b32 v9, 14, v5'); I('v_lshl_add_u32 v9, v4, 4, v9')
        for k in range(1, 4): I(f'v_add_u32 v{9+k}, {k*4096}, v9')
        self.base(44, P_WS, [(60, 2048), (55, 512)], WS_H5)
        I('v_lshrrev_b32 v13, 3, v4'); I('v_lshlrev_b32 v13, 6, v13'); I('v_and_b32 v26, 3, v4'); I('v_lshl_add_u32 v13, v26, 4, v13')
        I('v_bfe_u32 v26, v4, 2, 1'); I('v_lshl_add_u32 v13, v26, 3, v13'); I('v_lshl_add_u32 v13, v5, 2, v13')
        self.sval('s6', [(3, 256), (60, 64)], L_H2V); I('v_add_u32 v13, s6, v13')
        I('v_lshlrev_b32 v26, 4, v4'); I('v_lshl_add_u32 v26, v5, 3, v26'); self.sval('s6', [(3, 512)], L_X1); I('v_add_u32 v26, s6, v26')
        I('v_and_b32 v27, 1, v2'); I('v_mul_u32_u24 v27, 1088, v27'); I('v_lshl_add_u32 v27, v3, 4, v27'); I(f'v_add_u32 v27, {L_H2V}, v27')
        self.sval('s6', [(3, 8)], L_XST); I('v_mov_b32 v24, s6'); self.sval('s6', [(60, 32)], L_XST); I('v_mov_b32 v25, s6')
        I('v_mul_u32_u24 v28, 192, v2'); I('v_lshl_add_u32 v28, v3, 4, v28')
        I('s_bfe_u32 s58, s3, 0x10001')
        self.sval('s6', [(60, 64), (62, 32), (58, 8)], L_GRED); I('v_add_u32 v28, s6, v28')
        I('v_and_b32 v29, 1, v2'); I('v_mul_u32_u24 v29, 192, v29'); I('v_lshl_add_u32 v29, v3, 4, v29'); I(f'v_add_u32 v29, {L_GRED}, v29')
        if cfg.get('publds', 1):
            I('v_lshlrev_b32 v30, 8, v2'); I('v_lshl_add_u32 v30, v3, 4, v30'); self.sval('s6', [(3, 512)], L_X1); I('v_add_u32 v30, s6, v30'); I('v_add_u32 v31, s6, v6')
            I('v_lshlrev_b32 v26, 11, v3'); I('v_lshl_add_u32 v26, v2, 4, v26')
        else:
            I('v_lshlrev_b32 v30, 11, v2'); I('v_lshl_add_u32 v30, v3, 4, v30')
        self.base(46, P_WS, [(43, 4096), (3, 256)], WS_H7)
        I('s_lshl_b32 s97, s4, 3'); I('s_add_u32 s97, s97, s5'); I('s_sub_u32 s97, s97, 8')
        if cfg.get('hu5m', 0) == 3: self.hu_wait_w(WS_HU5, [], 64, cfg['t_h5'])
        elif cfg.get('hu5m', 0) == 1: self.hu_wait_multi(WS_HU5, [], 63, 7, cfg['t_h5'])
        elif cfg.get('hu5m', 0) == 2: self.hu_wait_multi(WS_HU5, [(41, 128)], 7, 10, cfg['t_h5'])
        else: self.hu_wait(WS_HU5, 97, cfg['t_h5'])
        self.stamp(8)
        self.poll('h5', [f'global_load_dwordx4 {vr(64+4*k,4)}, v{9+k}, s[44:45] sc1' for k in range(4)], range(64, 80), 0, loop_sleep=cfg.get('h5_loop', 4))
        self.stamp(11)
        for k in range(4): I(f'v_add_f32 v{64+k}, v{64+k}, v{68+k}')
        for k in range(4): I(f'v_add_f32 v{72+k}, v{72+k}, v{76+k}')
        for k in range(4): I(f'v_add_f32 v{64+k}, v{64+k}, v{72+k}')
        I('v_permlane32_swap_b32 v64, v66'); I('v_permlane32_swap_b32 v65, v67')
        I('v_add_f32 v64, v64, v66'); I('v_add_f32 v65, v65, v67')
        I('v_fma_f32 v64, v18, v64, v16'); I('v_fma_f32 v65, v19, v65, v17')
        I('v_readfirstlane_b32 s56, v64')
        I('v_subrev_f32 v66, s56, v64'); I('v_subrev_f32 v67, s56, v65')
        I('v_add_f32 v68, v66, v67'); I('v_mul_f32 v69, v66, v66'); I('v_fmac_f32 v69, v67, v67')
        self.ror_reduce([68, 69], [8, 4, 2, 1])
        for w in (16, 32):
            I('v_mov_b32 v70, v68'); I('v_mov_b32 v71, v69'); I(f'v_permlane{w}_swap_b32 v68, v70'); I(f'v_permlane{w}_swap_b32 v69, v71'); I('v_add_f32 v68, v68, v70'); I('v_add_f32 v69, v69, v71')
        I(f'v_mul_f32 v70, {f32(1/128)}, v68'); I('v_fma_f32 v71, -v70, v68, v69'); I('v_add_f32 v70, s56, v70')
        I('ds_write_b64 v24, v[70:71]')
        e.barrier()
        I('ds_read_b128 v[68:71], v25'); I('ds_read_b128 v[72:75], v25 offset:16'); e.wait_lg()
        I('v_add_f32 v76, v68, v70'); I('v_add_f32 v77, v72, v74'); I('v_add_f32 v76, v76, v77'); I(f'v_mul_f32 v76, {f32(0.25)}, v76')
        I('v_add_f32 v77, v69, v71'); I('v_add_f32 v78, v73, v75'); I('v_add_f32 v77, v77, v78')
        for k in range(4): I(f'v_sub_f32 v{68+2*k}, v{68+2*k}, v76')
        I('v_mul_f32 v78, v68, v68')
        for k in range(1, 4): I(f'v_fmac_f32 v78, v{68+2*k}, v{68+2*k}')
        I(f'v_mov_b32 v79, {f32(1e-5)}'); I(f'v_fmac_f32 v79, {f32(1/512)}, v77'); I(f'v_fmac_f32 v79, {f32(128/512)}, v78'); I('v_rsq_f32 v79, v79')
        I('v_sub_f32 v64, v64, v76'); I('v_sub_f32 v65, v65, v76')
        I('v_mul_f32 v66, v79, v22'); I('v_mul_f32 v67, v79, v23')
        I('v_fma_f32 v64, v64, v66, v20'); I('v_fma_f32 v65, v65, v67, v21')
        I('v_cvt_pk_bf16_f32 v64, v64, v65'); I('ds_write_b32 v13, v64')
        e.barrier()
        for s in range(16): I(f'ds_read_b128 {vr(160+4*s,4)}, v27 offset:{s*64}', tag=f'h2{s}')
        for s in range(16):
            e.wait_lg(f'h2{s}')
            I(f'v_mfma_f32_16x16x32_bf16 {vr(72+4*(s&1),4)}, {vr(96+4*s,4)}, {vr(160+4*s,4)}, {"0" if s < 2 else vr(72+4*(s&1),4)}')
        c1 = -2*math.sqrt(2/math.pi)*math.log2(math.e)
        I(f's_mov_b32 s6, {f32(c1*0.044715)}'); I(f'v_mov_b32 v84, {f32(c1)}')
        for k in range(4): I(f'v_add_f32 v{72+k}, v{72+k}, v{76+k}')
        for k in range(4): I(f'v_mov_b32 v{76+k}, v{72+k}')
        for k in range(4): I(f'v_permlane32_swap_b32 v{72+k}, v{76+k}')
        for k in range(4): I(f'v_mul_f32 v{80+k}, v{72+k}, v{72+k}')
        for k in range(4): I(f'v_fma_f32 v{80+k}, v{80+k}, s6, v84')
        for k in range(4): I(f'v_mul_f32 v{80+k}, v{80+k}, v{72+k}')
        for k in range(4): I(f'v_exp_f32 v{80+k}, v{80+k}')
        for k in range(4): I(f'v_add_f32 v{80+k}, 1.0, v{80+k}')
        for k in range(4): I(f'v_rcp_f32 v{80+k}, v{80+k}')
        for k in range(4): I(f'v_mul_f32 v{72+k}, v{72+k}, v{76+k}')
        for k in range(4): I(f'v_mul_f32 v{72+k}, v{72+k}, v{80+k}')
        I('v_cvt_pk_bf16_f32 v72, v72, v73'); I('v_cvt_pk_bf16_f32 v73, v74, v75')
        I('s_mov_b32 exec_lo, 0x00030003'); I('s_mov_b32 exec_hi, 0')
        I('ds_write_b64 v28, v[72:73]'); self.exec_all()
        e.barrier()
        self.stamp(12)
        I('ds_read_b128 v[64:67], v29'); I('ds_read_b128 v[68:71], v29 offset:64'); e.wait_lg()
        for t in range(4): I(f'v_mfma_f32_16x16x32_bf16 {vr(72+4*t,4)}, {vr(32+8*t,4)}, v[64:67], 0')
        for t in range(4): I(f'v_mfma_f32_16x16x32_bf16 {vr(72+4*t,4)}, {vr(36+8*t,4)}, v[68:71], {vr(72+4*t,4)}')
        self.exec_mask(48)
        if cfg.get('publds', 1):
            for t in range(4): I(f'ds_write_b128 v30, {vr(72+4*t,4)} offset:{t*64}')
            I('s_mov_b32 exec_lo, -1'); I('s_mov_b32 exec_hi, 0'); e.wait_lg()
            I('ds_read_b128 v[64:67], v31'); e.wait_lg()
            I('global_store_dwordx4 v26, v[64:67], s[46:47] sc1')
        else:
            for t in range(4): I(f'global_store_dwordx4 v30, {vr(72+4*t,4)}, s[46:47] offset:{t*64} sc1')
        self.exec_all()
        self.stamp(13)
        e.branch('s_branch', 'L_FIN')

    def stage_g2(self):
        e, I, cfg = self.e, self.I, self.cfg
        L_PRE, L_ST2 = 64*K, 80*K
        I('v_lshrrev_b32 v13, 2, v2'); I('v_lshlrev_b32 v13, 6, v13'); I('v_and_b32 v26, 1, v2'); I('v_lshl_add_u32 v13, v26, 5, v13')
        I('v_lshrrev_b32 v26, 1, v3'); I('v_lshl_add_u32 v13, v26, 4, v13'); I('v_bfe_u32 v26, v2, 1, 1'); I('v_lshl_add_u32 v13, v26, 3, v13')
        I('v_and_b32 v26, 1, v3'); I('v_lshl_add_u32 v13, v26, 2, v13')
        self.sval('s6', [(55, 256), (60, 1088)], L_PRE); I('v_add_u32 v14, s6, v13')
        self.sval('s6', [(55, 256), (60, 1088)], L_H2V); I('v_add_u32 v13, s6, v13')
        for (src, row) in ((22, 0), (20, 4)):
            I(f'v_cvt_pk_bf16_f32 v64, v{src}, v{src+1}')
            I('v_lshlrev_b32 v65, 16, v64'); I('v_and_b32 v66, 0xffff0000, v64')
            I(f'v_sub_f32 v65, v{src}, v65'); I(f'v_sub_f32 v66, v{src+1}, v66')
            I('v_cvt_pk_bf16_f32 v65, v65, v66')
            I(f'ds_write_b32 v14, v64 offset:{row*1088}'); I(f'ds_write_b32 v14, v65 offset:{(row+2)*1088}')
        I('v_and_b32 v27, 7, v2'); I('v_mul_u32_u24 v27, 1088, v27'); I('v_lshl_add_u32 v27, v3, 4, v27'); I(f'v_add_u32 v27, {L_PRE}, v27')
        e.barrier()
        def matmul(extra=None):
            for s in range(16): I(f'ds_read_b128 {vr(160+4*s,4)}, v27 offset:{s*64}', tag=f'h2{s}')
            for s in range(16):
                e.wait_lg(f'h2{s}')
                I(f'v_mfma_f32_16x16x32_bf16 {vr(72+4*(s&1),4)}, {vr(96+4*s,4)}, {vr(160+4*s,4)}, {"0" if s < 2 else vr(72+4*(s&1),4)}')
                if extra: extra(s)
        matmul()
        for k in range(4): I(f'v_add_f32 v{72+k}, v{72+k}, v{76+k}')
        for k in range(4): I(f'v_add_f32_dpp v{88+k}, v{72+k}, v{72+k} row_shl:2 {DPPM}')
        for k in range(4): I(f'v_mov_b32_dpp v{92+k}, v{88+k} row_shl:4 {DPPM}')
        I('v_lshlrev_b32 v9, 11, v3'); I('v_lshl_add_u32 v9, v2, 4, v9'); I('v_add_u32 v10, 8192, v9')
        self.base(44, P_WS, [(60, 1024), (55, 256)], WS_H5)
        I('v_and_b32 v27, 1, v2'); I('v_lshlrev_b32 v25, 11, v27'); I('v_mul_u32_u24 v27, 1088, v27'); I('v_lshl_add_u32 v27, v3, 4, v27'); I(f'v_add_u32 v27, {L_H2V}, v27')
        self.sval('s6', [(3, 512)], L_ST2); I('v_add_u32 v24, s6, v7')
        I('v_lshrrev_b32 v26, 1, v1'); I('v_lshl_add_u32 v25, v26, 4, v25'); I(f'v_add_u32 v25, {L_ST2}, v25')
        I('v_mul_u32_u24 v28, 192, v2'); I('v_lshl_add_u32 v28, v3, 4, v28')
        I('s_bfe_u32 s58, s3, 0x10001')
        self.sval('s6', [(60, 64), (62, 32), (58, 8)], L_GRED); I('v_add_u32 v28, s6, v28')
        I('v_and_b32 v29, 1, v2'); I('v_mul_u32_u24 v29, 192, v29'); I('v_lshl_add_u32 v29, v3, 4, v29'); I(f'v_add_u32 v29, {L_GRED}, v29')
        I('v_lshlrev_b32 v30, 8, v2'); I('v_lshl_add_u32 v30, v3, 4, v30'); self.sval('s6', [(3, 512)], L_X1); I('v_add_u32 v30, s6, v30'); I('v_add_u32 v31, s6, v6')
        I('v_lshlrev_b32 v26, 11, v3'); I('v_lshl_add_u32 v26, v2, 4, v26')
        self.base(46, P_WS, [(43, 4096), (3, 256)], WS_H7)
        I('v_mov_b32 v11, 0x00003f80'); I('v_mov_b32 v12, 0x3f800000')
        c1 = -2*math.sqrt(2/math.pi)*math.log2(math.e)
        I(f's_mov_b32 s56, {f32(c1*0.044715)}'); I(f'v_mov_b32 v20, {f32(c1)}'); I(f'v_mov_b32 v21, {f32(1e-5)}')
        self.hu_wait_multi(WS_HU5, [(41, 128)], 7, 10, cfg['t_h5'])
        self.stamp(8)
        self.poll('h5', [f'global_load_dwordx4 {vr(64+4*k,4)}, v{9+k}, s[44:45] sc1' for k in range(2)], range(64, 72), 0, loop_sleep=cfg.get('h5_loop', 4))
        self.stamp(11)
        for k in range(8): I(f'v_dot2_f32_bf16 v{72+k}, v{64+(k>>1)}, v{11+(k&1)}, 0')
        for k in range(8): I(f'v_dot2_f32_bf16 v{72+k}, v{68+(k>>1)}, v{11+(k&1)}, v{72+k}')
        for k in range(4): I(f'v_permlane32_swap_b32 v{72+k}, v{76+k}')
        for k in range(4): I(f'v_add_f32 v{72+k}, v{72+k}, v{76+k}')
        for k in range(2): I(f'v_permlane16_swap_b32 v{72+k}, v{74+k}')
        for k in range(2): I(f'v_add_f32 v{72+k}, v{72+k}, v{74+k}')
        I('v_fma_f32 v64, v18, v72, v16'); I('v_fma_f32 v65, v19, v73, v17')
        I('v_mul_f32 v66, v64, v22'); I('v_mul_f32 v67, v65, v23')
        I('v_cvt_pk_bf16_f32 v66, v66, v67'); I('ds_write_b32 v13, v66')
        I('v_add_f32 v68, v64, v65'); I('v_mul_f32 v69, v64, v64'); I('v_fmac_f32 v69, v65, v65')
        I('ds_write_b64 v24, v[68:69]')
        e.barrier()
        for k in range(4): I(f'ds_read_b128 {vr(224+4*k,4)}, v25 offset:{k*512}', tag='st')
        steps = []
        steps.append(lambda: [I(f'v_add_f32 v{224+k}, v{224+k}, v{232+k}') for k in range(8)])
        steps.append(lambda: [I(f'v_add_f32 v{224+k}, v{224+k}, v{228+k}') for k in range(4)])
        steps.append(lambda: [I(f'v_add_f32 v{224+k}, v{224+k}, v{226+k}') for k in range(2)])
        for sft in (2, 4, 8): steps.append(lambda sft=sft: self.ror_reduce([224, 225], [sft]))
        for w in (16, 32):
            steps.append(lambda: [I('v_mov_b32 v226, v224'), I('v_mov_b32 v227, v225')])
            steps.append(lambda w=w: [I(f'v_permlane{w}_swap_b32 v224, v226'), I(f'v_permlane{w}_swap_b32 v225, v227')])
            steps.append(lambda: [I('v_add_f32 v224, v224, v226'), I('v_add_f32 v225, v225, v227')])
        steps.append(lambda: [I(f'v_mul_f32 v224, {f32(-1/512)}, v224'), I(f'v_fmac_f32 v21, {f32(1/512)}, v225')])
        steps.append(lambda: [I('v_fma_f32 v21, -v224, v224, v21')])
        steps.append(lambda: [I('v_rsq_f32 v225, v21')])
        matmul(lambda s: steps[s]() if s < len(steps) else None)
        for k in range(4): I(f'v_fma_f32 v{80+k}, v224, v{88+k}, v{72+k}')
        for k in range(4): I(f'v_add_f32 v{80+k}, v{80+k}, v{76+k}')
        for k in range(4): I(f'v_fma_f32 v{72+k}, v225, v{80+k}, v{92+k}')
        for k in range(4): I(f'v_mov_b32 v{76+k}, v{72+k}')
        for k in range(4): I(f'v_permlane32_swap_b32 v{72+k}, v{76+k}')
        for k in range(4): I(f'v_mul_f32 v{80+k}, v{72+k}, v{72+k}')
        for k in range(4): I(f'v_fma_f32 v{80+k}, v{80+k}, s56, v20')
        for k in range(4): I(f'v_mul_f32 v{80+k}, v{80+k}, v{72+k}')
        for k in range(4): I(f'v_exp_f32 v{80+k}, v{80+k}')
        for k in range(4): I(f'v_mul_f32 v{72+k}, v{72+k}, v{76+k}')
        for k in range(4): I(f'v_add_f32 v{80+k}, 1.0, v{80+k}')
        for k in range(4): I(f'v_rcp_f32 v{80+k}, v{80+k}')
        for k in range(4): I(f'v_mul_f32 v{72+k}, v{72+k}, v{80+k}')
        I('v_cvt_pk_bf16_f32 v72, v72, v73'); I('v_cvt_pk_bf16_f32 v73, v74, v75')
        I('s_mov_b32 exec_lo, 0x00030003'); I('s_mov_b32 exec_hi, 0')
        I('ds_write_b64 v28, v[72:73]'); self.exec_all()
        e.barrier()
        self.stamp(12)
        I('ds_read_b128 v[64:67], v29'); I('ds_read_b128 v[68:71], v29 offset:64'); e.wait_lg()
        for t in range(4): I(f'v_mfma_f32_16x16x32_bf16 {vr(72+4*t,4)}, {vr(32+8*t,4)}, v[64:67], 0')
        for t in range(4): I(f'v_mfma_f32_16x16x32_bf16 {vr(72+4*t,4)}, {vr(36+8*t,4)}, v[68:71], {vr(72+4*t,4)}')
        self.exec_mask(48)
        for t in range(4): I(f'ds_write_b128 v30, {vr(72+4*t,4)} offset:{t*64}')
        I('s_mov_b32 exec_lo, -1'); I('s_mov_b32 exec_hi, 0'); e.wait_lg()
        I('ds_read_b128 v[64:67], v31'); e.wait_lg()
        I('global_store_dwordx4 v26, v[64:67], s[46:47] sc1')
        self.exec_all()
        self.stamp(13)
        e.branch('s_branch', 'L_FIN')

    def stage_g3(self):
        e, I, cfg = self.e, self.I, self.cfg
        L_PV, L_RED, L_STW, L_RED2 = L_S, L_S + 10*K, L_S + 18*K, L_S + 22*K
        PIT = 144
        I('v_bfe_u32 v13, v2, 2, 1'); I('v_lshlrev_b32 v13, 6, v13'); I('v_and_b32 v26, 1, v2'); I('v_lshl_add_u32 v13, v26, 5, v13')
        I('v_lshrrev_b32 v26, 1, v3'); I('v_lshl_add_u32 v13, v26, 4, v13'); I('v_bfe_u32 v26, v2, 1, 1'); I('v_lshl_add_u32 v13, v26, 3, v13')
        I('v_and_b32 v26, 1, v3'); I('v_lshl_add_u32 v13, v26, 2, v13')
        I('v_lshrrev_b32 v26, 3, v2'); I(f'v_mul_u32_u24 v27, {PIT}, v26'); I('v_add_u32 v13, v13, v27')
        self.sval('s6', [(3, 1280)], L_PV); I('v_add_u32 v13, s6, v13')
        I('v_and_b32 v27, 7, v2'); I(f'v_mul_u32_u24 v27, {PIT}, v27'); I('v_lshl_add_u32 v27, v3, 4, v27'); I('v_add_u32 v27, s6, v27')
        self.sval('s6', [(3, 8)], L_STW); I('v_lshlrev_b32 v24, 6, v26'); I('v_add_u32 v24, s6, v24')
        I('v_and_b32 v26, 1, v3'); I('v_and_b32 v25, 7, v2'); I('v_lshlrev_b32 v25, 3, v25'); I('v_lshl_add_u32 v25, v26, 6, v25'); I(f'v_add_u32 v25, {L_STW}, v25')
        I('v_and_b32 v28, 1, v2'); I('v_lshlrev_b32 v28, 6, v28'); I('v_lshl_add_u32 v28, v3, 4, v28'); I('v_bfe_u32 v29, v2, 2, 1'); I(f'v_mul_u32_u24 v29, {L_RED2-L_RED}, v29'); I('v_add_u32 v28, v28, v29')
        self.sval('s6', [(3, 1024)], L_RED); I('v_add_u32 v30, s6, v28')
        self.sval('s6', [(3, 128)], L_RED); I('v_lshlrev_b32 v31, 2, v4'); I('v_add_u32 v31, s6, v31'); I(f'v_add_u32 v29, {L_RED2-L_RED}, v31')
        for (src, row) in ((22, 0), (20, 4)):
            I(f'v_cvt_pk_bf16_f32 v64, v{src}, v{src+1}')
            I('v_lshlrev_b32 v65, 16, v64'); I('v_and_b32 v66, 0xffff0000, v64')
            I(f'v_sub_f32 v65, v{src}, v65'); I(f'v_sub_f32 v66, v{src+1}, v66')
            I('v_cvt_pk_bf16_f32 v65, v65, v66')
            I(f'ds_write_b32 v13, v64 offset:{row*PIT}'); I(f'ds_write_b32 v13, v65 offset:{(row+2)*PIT}')
        def matmul(extra=None, pre=None):
            I('ds_read_b128 v[64:67], v27', tag='b0'); I('ds_read_b128 v[68:71], v27 offset:64', tag='b1')
            if pre: pre()
            n = 0
            for s2 in range(2):
                e.wait_lg(f'b{s2}')
                for t in range(8):
                    I(f'v_mfma_f32_16x16x32_bf16 {vr(160+4*t,4)}, {vr(96+8*t+4*s2,4)}, {vr(64+4*s2,4)}, {"0" if s2 == 0 else vr(160+4*t,4)}')
                    if extra: extra(n)
                    n += 1
        def gather(va, dst, tmp):
            for k in range(4): I(f'ds_read2st64_b32 {vr(tmp+2*k,2)}, v{va} offset0:{8*k} offset1:{8*k+4}')
        def sum8(dst, tmp, fill=None):
            for k in range(4): I(f'v_add_f32 v{tmp+k}, v{tmp+k}, v{tmp+4+k}')
            if fill: fill(0)
            for k in range(2): I(f'v_add_f32 v{tmp+k}, v{tmp+k}, v{tmp+2+k}')
            if fill: fill(1)
            I(f'v_add_f32 v{dst}, v{tmp}, v{tmp+1}')
            if fill: fill(2)
        matmul()
        for k in range(32): I(f'v_add_f32_dpp v{192+k}, v{160+k}, v{160+k} row_shl:2 {DPPM}')
        I('s_mov_b32 exec_lo, 0x00330033'); I('s_mov_b32 exec_hi, 0x00330033')
        for t in range(8): I(f'ds_write_b128 v30, {vr(192+4*t,4)} offset:{t*128}')
        self.exec_all()
        e.barrier()
        gather(31, 88, 72); gather(29, 89, 80); e.wait_lg()
        sum8(88, 72); sum8(89, 80)
        I('v_lshlrev_b32 v9, 11, v3'); I('v_lshrrev_b32 v10, 3, v2'); I('v_lshl_add_u32 v9, v10, 10, v9'); I('v_and_b32 v10, 7, v2'); I('v_lshl_add_u32 v9, v10, 4, v9'); I('v_add_u32 v10, 8192, v9')
        self.base(44, P_WS, [(3, 128)], WS_H5)
        I('v_and_b32 v27, 1, v2'); I(f'v_mul_u32_u24 v27, {PIT}, v27'); I('v_lshl_add_u32 v27, v3, 4, v27'); self.sval('s6', [(3, 1280)], L_PV); I('v_add_u32 v27, s6, v27')
        I('v_and_b32 v28, 1, v3'); I('v_mul_u32_u24 v28, 192, v28'); I('v_lshrrev_b32 v29, 2, v2'); I('v_lshl_add_u32 v28, v29, 4, v28'); I('v_and_b32 v29, 3, v2'); I('v_lshl_add_u32 v28, v29, 1, v28')
        I('s_bfe_u32 s58, s3, 0x10001')
        self.sval('s6', [(60, 64), (62, 32), (58, 8)], L_GRED); I('v_add_u32 v28, s6, v28')
        I('v_and_b32 v29, 1, v2'); I('v_mul_u32_u24 v29, 192, v29'); I('v_lshl_add_u32 v29, v3, 4, v29'); I(f'v_add_u32 v29, {L_GRED}, v29')
        I('v_lshlrev_b32 v90, 8, v2'); I('v_lshl_add_u32 v90, v3, 4, v90'); self.sval('s6', [(3, 512)], L_X1); I('v_add_u32 v90, s6, v90'); I('v_add_u32 v91, s6, v6')
        I('v_lshlrev_b32 v26, 11, v3'); I('v_lshl_add_u32 v26, v2, 4, v26')
        if cfg.get('cmp', 0):
            I('v_lshlrev_b32 v92, 6, v2'); I('v_lshl_add_u32 v92, v3, 4, v92'); self.sval('s6', [(3, 1024)], L_RED); I('v_add_u32 v92, s6, v92')
            I('v_and_b32 v90, 1, v2'); I('v_lshlrev_b32 v90, 8, v90'); I('v_lshrrev_b32 v93, 1, v2'); I('v_lshl_add_u32 v90, v93, 6, v90'); I('v_lshl_add_u32 v90, v3, 4, v90')
            self.sval('s6', [(3, 512)], L_X1); I('v_add_u32 v90, s6, v90')
        self.base(46, P_WS, [(43, 4096), (3, 256)], WS_H7)
        I('v_mov_b32 v11, 0x00003f80'); I('v_mov_b32 v12, 0x3f800000')
        c1 = -2*math.sqrt(2/math.pi)*math.log2(math.e)
        I(f's_mov_b32 s56, {f32(c1*0.044715)}'); I(f'v_mov_b32 v20, {f32(c1)}'); I(f'v_mov_b32 v21, {f32(1e-5)}')
        WARM = cfg.get('warm', 0)
        if cfg.get('gprio', 0):
            Lp = self.lab('gp'); I('s_cmp_lt_u32 s3, 4'); I(f's_cbranch_scc1 {Lp}'); I('s_setprio 2'); e.label(Lp, flush=False)
        LPS, LSK, LNS = self.lab('pass'), self.lab('skip'), self.lab('nost')
        if WARM:
            I('s_mov_b32 s59, 0'); e.branch('s_branch', LSK)
            e.label(LPS)
            I(f'v_mov_b32 v21, {f32(1e-5)}')
        self.hu_wait_multi(WS_HU5, [(41, 128)], 7, 10, cfg['t_h5'])
        self.stamp(8)
        self.poll('h5', [f'global_load_dwordx4 {vr(64+4*k,4)}, v{9+k}, s[44:45] sc1' for k in range(2)], range(64, 72), 0, loop_sleep=cfg.get('h5_loop', 4))
        self.stamp(11)
        if WARM: e.label(LSK, flush=False)
        for k in range(8): I(f'v_dot2_f32_bf16 v{72+k}, v{64+(k>>1)}, v{11+(k&1)}, 0')
        for k in range(8): I(f'v_dot2_f32_bf16 v{72+k}, v{68+(k>>1)}, v{11+(k&1)}, v{72+k}')
        for k in range(4): I(f'v_permlane32_swap_b32 v{72+k}, v{76+k}')
        for k in range(4): I(f'v_add_f32 v{72+k}, v{72+k}, v{76+k}')
        for k in range(2): I(f'v_permlane16_swap_b32 v{72+k}, v{74+k}')
        for k in range(2): I(f'v_add_f32 v{72+k}, v{72+k}, v{74+k}')
        I('v_fma_f32 v76, v18, v72, v16'); I('v_fma_f32 v77, v19, v73, v17')
        I('v_mul_f32 v78, v76, v22'); I('v_mul_f32 v79, v77, v23')
        if cfg.get('gfine'): I('s_memrealtime s[66:67]')
        I('v_cvt_pk_bf16_f32 v78, v78, v79'); e.lg = []; I('ds_write_b32 v13, v78')
        steps = []
        steps.append(lambda: [I('v_add_f32 v80, v76, v77'), I('v_mul_f32 v81, v76, v76')])
        steps.append(lambda: [I('v_fmac_f32 v81, v77, v77')])
        for qp in ('quad_perm:[1,0,3,2]', 'quad_perm:[2,3,0,1]', 'row_half_mirror'):
            steps.append(lambda qp=qp: [I(f'v_add_f32_dpp v{r}, v{r}, v{r} {qp} {DPPM}') for r in (80, 81)])
        for w in (16, 32):
            steps.append(lambda: [I('v_mov_b32 v82, v80'), I('v_mov_b32 v83, v81')])
            steps.append(lambda w=w: [I(f'v_permlane{w}_swap_b32 v80, v82'), I(f'v_permlane{w}_swap_b32 v81, v83')])
            steps.append(lambda: [I('v_add_f32 v80, v80, v82'), I('v_add_f32 v81, v81, v83')])
        steps.append(lambda: [I('s_mov_b64 exec, 0x101'), I('ds_write_b64 v24, v[80:81]'), self.exec_mask(48)])
        def ex(n):
            if n < len(steps): steps[n]()
            elif n >= 12: I(f'ds_write_b128 v30, {vr(160+4*(n-12),4)} offset:{(n-12)*128}')
        CMP = cfg.get('cmp', 0)
        def pick(dst, src, t, base=48):
            I(f's_lshl_b64 exec, s[{base}:{base+1}], {2*t}'); I(f'v_mov_b64 {vr(dst,2)}, {vr(src,2)}'); I(f'v_mov_b64 {vr(dst+2,2)}, {vr(src+2,2)}')
        if CMP:
            steps[-1] = lambda: [I('s_mov_b64 exec, 0x101'), I('ds_write_b64 v24, v[80:81]'), self.exec_all()]
            def ex3(n):
                if n < len(steps): steps[n]()
                elif n >= 13: pick(160, 160+4*(n-12), n-12)
            matmul(ex3)
            for t in range(4, 8): pick(160, 160+4*t, t)
            self.exec_all(); I('ds_write_b128 v92, v[160:163]')
        elif cfg.get('g3o', 0):
            NP = cfg.get('g3o')
            def pre():
                for st_ in steps[:NP]: st_()
            rest = steps[NP:]
            def ex2(n):
                if n < len(rest): rest[n]()
                elif n >= 12: I(f'ds_write_b128 v30, {vr(160+4*(n-12),4)} offset:{(n-12)*128}')
            matmul(ex2, pre)
        else: matmul(ex)
        if cfg.get('gfine'): I('s_memrealtime s[68:69]')
        if not CMP:
            for t in range(4, 8): I(f'ds_write_b128 v30, {vr(160+4*t,4)} offset:{t*128}')
        I('s_mov_b32 exec_lo, -1'); I('s_mov_b32 exec_hi, 0')
        e.barrier()
        if cfg.get('gfine'): I('s_memrealtime s[70:71]')
        if cfg.get('gfine'): I('s_waitcnt lgkmcnt(0)')
        I('ds_read_b64 v[80:81], v25', tag='st'); gather(31, 72, 72)
        e.wait_lg('st')
        for qp in ('quad_perm:[1,0,3,2]', 'quad_perm:[2,3,0,1]', 'row_half_mirror'):
            for r in (80, 81): I(f'v_add_f32_dpp v{r}, v{r}, v{r} {qp} {DPPM}')
        I(f'v_mul_f32 v80, {f32(-1/512)}, v80'); I(f'v_fmac_f32 v21, {f32(1/512)}, v81')
        I('v_fma_f32 v21, -v80, v80, v21'); I('v_rsq_f32 v81, v21')
        e.wait_lg()
        if cfg.get('gfine'): I('s_memrealtime s[72:73]')
        I('v_fmac_f32 v72, v80, v88')
        sum8(72, 72)
        I('v_fma_f32 v72, v81, v72, v89')
        I('v_mul_f32 v73, v72, v72'); I('v_fma_f32 v73, v73, s56, v20'); I('v_mul_f32 v73, v73, v72'); I('v_exp_f32 v73, v73')
        I(f'v_mul_f32_dpp v74, v72, v72 row_ror:8 {DPPM}')
        I('v_add_f32 v73, 1.0, v73'); I('v_rcp_f32 v73, v73'); I('v_mul_f32 v74, v74, v73')
        I('v_cvt_pk_bf16_f32 v74, v74, v74')
        if cfg.get('gfine'): I('s_memrealtime s[74:75]')
        I('s_mov_b32 exec_lo, 0x00ff00ff')
        I('ds_write_b16 v28, v74'); self.exec_all()
        e.barrier()
        self.stamp(12)
        I('ds_read_b128 v[64:67], v29'); I('ds_read_b128 v[68:71], v29 offset:64'); e.wait_lg()
        for t in range(4): I(f'v_mfma_f32_16x16x32_bf16 {vr(72+4*t,4)}, {vr(32+8*t,4)}, v[64:67], 0')
        for t in range(4): I(f'v_mfma_f32_16x16x32_bf16 {vr(72+4*t,4)}, {vr(36+8*t,4)}, v[68:71], {vr(72+4*t,4)}')
        if CMP:
            for t in range(1, 4): pick(72, 72+4*t, t)
            I('s_mov_b32 exec_lo, 0x00ff00ff'); I('s_mov_b32 exec_hi, 0x00ff00ff'); I('ds_write_b128 v90, v[72:75]')
        else:
            self.exec_mask(48)
            for t in range(4): I(f'ds_write_b128 v90, {vr(72+4*t,4)} offset:{t*64}')
        I('s_mov_b32 exec_lo, -1'); I('s_mov_b32 exec_hi, 0'); e.wait_lg()
        I('ds_read_b128 v[64:67], v91'); e.wait_lg()
        if WARM:
            I('s_xor_b32 s59, s59, 1'); self.exec_all(); I(f's_cbranch_scc1 {LPS}'); I('s_mov_b32 exec_hi, 0')
        I('global_store_dwordx4 v26, v[64:67], s[46:47] sc1')
        self.exec_all()
        self.stamp(13)
        e.branch('s_branch', 'L_FIN')

    def stage_g4(self):
        e, I, cfg = self.e, self.I, self.cfg
        PIT = 144
        e.vm = []
        self.base(44, P_WD, [(43, 64*1024), (3, 128)])
        I('v_lshlrev_b32 v12, 1, v3'); I('v_and_b32 v9, 7, v1'); I('v_xor_b32 v12, v12, v9'); I('v_lshlrev_b32 v12, 4, v12'); I('v_lshrrev_b32 v9, 3, v1'); I('v_lshl_add_u32 v12, v9, 10, v12')
        for q in range(1 if cfg.get('noload') else 8):
            I(f'global_load_dwordx4 {vr(160+4*q,4)}, v12, s[44:45] nt', tag='wd')
            if q < 7: I('v_add_u32 v12, 8192, v12')
        self.base(44, P_WG, [(3, 64*3584), (43, 128)])
        self.dma_128(44, 3584, 8, [(3, 8192)], L_WG, 'ga')
        ALL = cfg.get('g4all', 0)
        if ALL:
            self.base(44, P_WU, [(3, 64*3584), (43, 128)])
            self.dma_128(44, 3584, 8, [(3, 8192)], L_WU, 'up')
            e.wait_vm('wd')
            if ALL == 1: self.x1_side(True); e.vm[-1] = 'side'
        else:
            e.wait_vm('wd')
            self.x1_side(True); e.vm[-1] = 'side'
            self.base(44, P_WU, [(3, 64*3584), (43, 128)])
            self.dma_128(44, 3584, 8, [(3, 8192)], L_WU, 'up')
        self.sval('s6', [(3, 4096)], L_S); I('v_add_u32 v13, s6, v6')
        self.tr_base_128(12, [(3, 4096)], L_S)
        for s2 in range(2):
            for q in range(4): I(f'ds_write_b128 v13, {vr(160+16*s2+4*q,4)} offset:{q*1024}')
            for t in range(4):
                I(f'v_xor_b32 v{8+(t&1)}, {t<<5}, v12')
                I(f'ds_read_b64_tr_b16 {vr(32+8*t+4*s2,2)}, v{8+(t&1)}'); I(f'ds_read_b64_tr_b16 {vr(34+8*t+4*s2,2)}, v{8+(t&1)} offset:2048')
        I('v_bfe_u32 v13, v2, 2, 1'); I('v_lshlrev_b32 v13, 6, v13'); I('v_and_b32 v24, 1, v2'); I('v_lshl_add_u32 v13, v24, 5, v13')
        I('v_lshrrev_b32 v24, 1, v3'); I('v_lshl_add_u32 v13, v24, 4, v13'); I('v_bfe_u32 v24, v2, 1, 1'); I('v_lshl_add_u32 v13, v24, 3, v13')
        I('v_and_b32 v24, 1, v3'); I('v_lshl_add_u32 v13, v24, 2, v13')
        I('v_lshrrev_b32 v24, 3, v2'); I(f'v_mul_u32_u24 v25, {PIT}, v24'); I('v_add_u32 v13, v13, v25')
        self.sval('s6', [(3, 4096)], L_S); I('v_add_u32 v13, s6, v13')
        I('v_and_b32 v84, 3, v2'); I(f'v_mul_u32_u24 v84, {PIT}, v84'); I('v_lshl_add_u32 v84, v3, 4, v84'); I('v_add_u32 v84, s6, v84')
        I('v_and_b32 v85, 1, v2'); I(f'v_mul_u32_u24 v85, {PIT}, v85'); I('v_lshl_add_u32 v85, v3, 4, v85'); I('v_add_u32 v85, s6, v85')
        I('v_and_b32 v90, 1, v2'); I('v_lshlrev_b32 v90, 8, v90'); I('v_lshrrev_b32 v93, 1, v2'); I('v_lshl_add_u32 v90, v93, 6, v90'); I('v_lshl_add_u32 v90, v3, 4, v90')
        I('s_add_u32 s6, s6, 1024'); I('v_add_u32 v90, s6, v90'); I('v_add_u32 v91, s6, v6')
        I('s_lshl_b32 s6, s3, 13')
        I('v_lshlrev_b32 v24, 3, v24'); I('v_add_u32 v24, s6, v24')
        I('v_and_b32 v93, 1, v3'); I('v_and_b32 v25, 7, v2'); I('v_lshlrev_b32 v25, 13, v25'); I('v_lshl_add_u32 v25, v93, 3, v25')
        I('v_lshlrev_b32 v92, 6, v2'); I('v_lshl_add_u32 v92, v3, 4, v92'); I('v_add_u32 v92, s6, v92')
        I('v_and_b32 v94, 1, v2'); I('v_lshlrev_b32 v94, 6, v94'); I('v_bfe_u32 v95, v2, 1, 1'); I('v_lshl_add_u32 v94, v95, 10, v94')
        I('v_lshrrev_b32 v95, 2, v2'); I('v_lshl_add_u32 v94, v95, 7, v94'); I('v_lshl_add_u32 v94, v3, 4, v94'); I('v_add_u32 v94, s6, v94')
        I('v_lshrrev_b32 v95, 3, v2'); I('v_lshlrev_b32 v95, 9, v95'); I('v_lshl_add_u32 v95, v93, 6, v95'); I('v_and_b32 v93, 7, v2'); I('v_lshl_add_u32 v95, v93, 2, v95')
        self.sval('s6', [(61, 128), (62, 32)]); I('v_add_u32 v95, s6, v95'); I('v_add_u32 v93, 1024, v95')
        I('v_lshlrev_b32 v86, 11, v3'); I('v_lshrrev_b32 v10, 3, v2'); I('v_lshl_add_u32 v86, v10, 10, v86'); I('v_and_b32 v10, 7, v2'); I('v_lshl_add_u32 v86, v10, 4, v86'); I('v_add_u32 v87, 8192, v86')
        self.base(44, P_WS, [(3, 128)], WS_H5)
        self.base(46, P_WS, [(43, 4096), (3, 256)], WS_H7)
        self.tr_base_128(12, [(3, 8192)], L_WG)
        I('s_mov_b32 s58, 0x000f000f'); I('s_mov_b32 s59, 0x000f000f')
        def pick(dst, src, sh, base=48):
            I(f's_lshl_b64 exec, s[{base}:{base+1}], {sh}'); I(f'v_mov_b64 {vr(dst,2)}, {vr(src,2)}'); I(f'v_mov_b64 {vr(dst+2,2)}, {vr(src+2,2)}')
        def frags(h):
            for t in range(4):
                I(f'v_xor_b32 v{8+(t&1)}, {t<<5}, v12')
                for s2 in range(2):
                    r = 96 + 32*h + 8*t + 4*s2
                    I(f'ds_read_b64_tr_b16 {vr(r,2)}, v{8+(t&1)} offset:{s2*4096}'); I(f'ds_read_b64_tr_b16 {vr(r+2,2)}, v{8+(t&1)} offset:{s2*4096+2048}')
        def gather(va, tmp):
            for k in range(4): I(f'ds_read2st64_b32 {vr(tmp+2*k,2)}, v{va} offset0:{64*k} offset1:{64*k+32}')
        def sum8(dst, tmp):
            for k in range(4): I(f'v_add_f32 v{tmp+k}, v{tmp+k}, v{tmp+4+k}')
            for k in range(2): I(f'v_add_f32 v{tmp+k}, v{tmp+k}, v{tmp+2+k}')
            I(f'v_add_f32 v{dst}, v{tmp}, v{tmp+1}')
        if ALL:
            e.wait_vm('ga')
            if ALL == 2: self.x1_side(True); e.vm[-1] = 'side'
            frags(0); I(f'v_add_u32 v12, {L_WU}, v12'); e.wait_vm('up'); frags(1); e.wait_vm('side'); self.stamp(7)
        else:
            e.wait_vm('side')
            frags(0)
        Dm = self.lab('mrok'); saved = list(e.vm)
        r_ = self.maxtree([18, 19, 20, 21, 22, 23, 26, 27, 28, 29, 30, 31], 10)
        I(f'v_cmp_eq_u32 vcc, -1, v{r_}'); I(f's_cbranch_vccz {Dm}')
        self.poll('mr', self.mr_loads, [18, 19, 20, 21, 22, 23, 26, 27, 28, 29, 30, 31], 0, t=10)
        e.label(Dm, flush=False); e.vm = saved
        for k in range(6): I(f'v_add_f32 v{18+k}, v{18+k}, v{26+k}')
        I('v_add_f32 v22, 1.0, v22'); I('v_add_f32 v23, 1.0, v23')
        I('v_and_b32 v17, 0xffff0000, v16'); I('v_lshlrev_b32 v16, 16, v16')
        I('v_cvt_pk_bf16_f32 v64, v22, v23'); I('v_cvt_pk_bf16_f32 v65, v20, v21')
        I('ds_write_b32 v13, v64'); I(f'ds_write_b32 v13, v65 offset:{2*PIT}')
        I('ds_read_b128 v[64:67], v84'); I('ds_read_b128 v[68:71], v84 offset:64')
        I('v_and_b32 v28, 1, v3'); I('v_mul_u32_u24 v28, 192, v28'); I('v_lshrrev_b32 v29, 2, v2'); I('v_lshl_add_u32 v28, v29, 4, v28'); I('v_and_b32 v29, 3, v2'); I('v_lshl_add_u32 v28, v29, 1, v28')
        I('s_bfe_u32 s57, s3, 0x10001')
        self.sval('s6', [(60, 64), (62, 32), (57, 8)], 4096); I('v_add_u32 v28, s6, v28')
        I('v_and_b32 v29, 1, v2'); I('v_mul_u32_u24 v29, 192, v29'); I('v_lshl_add_u32 v29, v3, 4, v29'); I('v_add_u32 v29, 4096, v29')
        I('v_lshlrev_b32 v26, 11, v3'); I('v_lshl_add_u32 v26, v2, 4, v26')
        I('v_mov_b32 v30, 0x00003f80'); I('v_mov_b32 v31, 0x3f800000')
        c1 = -2*math.sqrt(2/math.pi)*math.log2(math.e)
        I(f's_mov_b32 s56, {f32(c1*0.044715)}'); I(f'v_mov_b32 v20, {f32(c1)}'); I(f'v_mov_b32 v21, {f32(1e-5)}')
        def cpass(h):
            e.wait_lg()
            for s2 in range(2):
                for t in range(4):
                    I(f'v_mfma_f32_16x16x32_bf16 {vr(160+4*t,4)}, {vr(96+32*h+8*t+4*s2,4)}, {vr(64+4*s2,4)}, {"0" if s2 == 0 else vr(160+4*t,4)}')
            for t in range(1, 4): pick(160, 160+4*t, 4*t, 58)
            self.exec_all(); I(f'ds_write_b128 v94, v[160:163] offset:{512*h}')
        cpass(0)
        if not ALL:
            I(f'v_add_u32 v12, {L_WU}, v12')
            e.wait_vm()
            self.stamp(7)
            frags(1)
        cpass(1)
        HE = cfg.get('hu_early', 0)
        if not HE:
            e.barrier()
            gather(95, 72); gather(93, 160); e.wait_lg()
            sum8(88, 72); sum8(89, 160)
        HU7 = cfg.get('t_h7b', 0)
        if HU7: self.hu_prep(WS_HU2 + 4096, 43, 38)
        if cfg.get('nohu5', 0): e.barrier()
        else: self.hu_wait_multi(WS_HU5, [(41, 128)], 7, 10, cfg['t_h5'])
        self.stamp(8)
        h5l = [f'global_load_dwordx4 {vr(64+4*k,4)}, v{86+k}, s[44:45] sc1' for k in range(2)]
        if HE:
            Dh = self.lab('h5k')
            for ld in h5l: I(ld.replace(' sc1', '') if cfg.get('h5plain', 0) else ld)
            gather(95, 72); gather(93, 160); e.wait_lg()
            sum8(88, 72); sum8(89, 160)
            I('v_add_u32 v95, 3072, v95'); I('v_add_u32 v92, 3072, v92')
            e.wait_vm()
            r_ = self.maxtree(range(64, 72), 8)
            I(f'v_cmp_eq_u32 vcc, -1, v{r_}'); I(f's_cbranch_vccz {Dh}')
        self.poll('h5', h5l, range(64, 72), 0, loop_sleep=cfg.get('h5_loop', 4))
        if HE: e.label(Dh, flush=False)
        self.stamp(11)
        if HU7: self.hu_clock()
        if cfg.get('nodot', 0):
            for k in range(4): I(f'v_lshlrev_b32 v{72+2*k}, 16, v{64+k}'); I(f'v_and_b32 v{73+2*k}, 0xffff0000, v{64+k}')
            for k in range(4): I(f'v_lshlrev_b32 v{64+k}, 16, v{68+k}'); I(f'v_and_b32 v{68+k}, 0xffff0000, v{68+k}')
            for k in range(4): I(f'v_add_f32 v{72+2*k}, v{72+2*k}, v{64+k}'); I(f'v_add_f32 v{73+2*k}, v{73+2*k}, v{68+k}')
        else:
            for k in range(8): I(f'v_dot2_f32_bf16 v{72+k}, v{64+(k>>1)}, v{30+(k&1)}, 0')
            for k in range(8): I(f'v_dot2_f32_bf16 v{72+k}, v{68+(k>>1)}, v{30+(k&1)}, v{72+k}')
        for k in range(4): I(f'v_permlane32_swap_b32 v{72+k}, v{76+k}')
        for k in range(4): I(f'v_add_f32 v{72+k}, v{72+k}, v{76+k}')
        if HU7: n0 = e.n; self.hu_store(38, wave=cfg.get('hu7_wave', 7)); e.n = n0 + 2
        for k in range(2): I(f'v_permlane16_swap_b32 v{72+k}, v{74+k}')
        for k in range(2): I(f'v_add_f32 v{72+k}, v{72+k}, v{74+k}')
        I('v_fma_f32 v76, v18, v72, v16'); I('v_fma_f32 v77, v19, v73, v17')
        I('v_mul_f32 v78, v76, v22'); I('v_mul_f32 v79, v77, v23')
        I('v_cvt_pk_bf16_f32 v78, v78, v79'); e.lg = []; I('ds_write_b32 v13, v78')
        steps = []
        steps.append(lambda: [I('v_add_f32 v80, v76, v77'), I('v_mul_f32 v81, v76, v76')])
        steps.append(lambda: [I('v_fmac_f32 v81, v77, v77')])
        for qp in ('quad_perm:[1,0,3,2]', 'quad_perm:[2,3,0,1]', 'row_half_mirror'):
            steps.append(lambda qp=qp: [I(f'v_add_f32_dpp v{r}, v{r}, v{r} {qp} {DPPM}') for r in (80, 81)])
        for w in (16, 32):
            steps.append(lambda: [I('v_mov_b32 v82, v80'), I('v_mov_b32 v83, v81')])
            steps.append(lambda w=w: [I(f'v_permlane{w}_swap_b32 v80, v82'), I(f'v_permlane{w}_swap_b32 v81, v83')])
            steps.append(lambda: [I('v_add_f32 v80, v80, v82'), I('v_add_f32 v81, v81, v83')])
        steps.append(lambda: [I('s_mov_b64 exec, 0x101'), I('ds_write_b64 v24, v[80:81] offset:2048'), self.exec_all()])
        I('ds_read_b128 v[64:67], v85', tag='b0'); I('ds_read_b128 v[68:71], v85 offset:64', tag='b1')
        NP = cfg.get('g3o', 0)
        for st_ in steps[:NP]: st_()
        steps = steps[NP:]
        n = 0
        for s2 in range(2):
            e.wait_lg(f'b{s2}')
            for t in range(8):
                I(f'v_mfma_f32_16x16x32_bf16 {vr(160+4*t,4)}, {vr(96+8*t+4*s2,4)}, {vr(64+4*s2,4)}, {"0" if s2 == 0 else vr(160+4*t,4)}')
                if n < len(steps): steps[n]()
                elif n >= 13: pick(160, 160+4*(n-12), 2*(n-12))
                n += 1
        for t in range(4, 8): pick(160, 160+4*t, 2*t)
        self.exec_all(); I('ds_write_b128 v92, v[160:163]')
        I('s_mov_b32 exec_hi, 0')
        e.barrier()
        I('ds_read_b64 v[80:81], v25 offset:2048', tag='st'); gather(95, 72)
        e.wait_lg('st')
        for qp in ('quad_perm:[1,0,3,2]', 'quad_perm:[2,3,0,1]', 'row_half_mirror'):
            for r in (80, 81): I(f'v_add_f32_dpp v{r}, v{r}, v{r} {qp} {DPPM}')
        I(f'v_mul_f32 v80, {f32(-1/512)}, v80'); I(f'v_fmac_f32 v21, {f32(1/512)}, v81')
        I('v_fma_f32 v21, -v80, v80, v21'); I('v_rsq_f32 v81, v21')
        e.wait_lg()
        I('v_fmac_f32 v72, v80, v88')
        sum8(72, 72)
        I('v_fma_f32 v72, v81, v72, v89')
        I('v_mul_f32 v73, v72, v72'); I('v_fma_f32 v73, v73, s56, v20'); I('v_mul_f32 v73, v73, v72'); I('v_exp_f32 v73, v73')
        I(f'v_mul_f32_dpp v74, v72, v72 row_ror:8 {DPPM}')
        I('v_add_f32 v73, 1.0, v73'); I('v_rcp_f32 v73, v73'); I('v_mul_f32 v74, v74, v73')
        I('v_cvt_pk_bf16_f32 v74, v74, v74')
        I('s_mov_b32 exec_lo, 0x00ff00ff')
        I('ds_write_b16 v28, v74'); self.exec_all()
        e.barrier()
        self.stamp(12)
        I('ds_read_b128 v[64:67], v29'); I('ds_read_b128 v[68:71], v29 offset:64'); e.wait_lg()
        for t in range(4): I(f'v_mfma_f32_16x16x32_bf16 {vr(72+4*t,4)}, {vr(32+8*t,4)}, v[64:67], 0')
        for t in range(4): I(f'v_mfma_f32_16x16x32_bf16 {vr(72+4*t,4)}, {vr(36+8*t,4)}, v[68:71], {vr(72+4*t,4)}')
        for t in range(1, 4): pick(72, 72+4*t, 2*t)
        I('s_mov_b32 exec_lo, 0x00ff00ff'); I('s_mov_b32 exec_hi, 0x00ff00ff'); I('ds_write_b128 v90, v[72:75]')
        I('s_mov_b32 exec_lo, -1'); I('s_mov_b32 exec_hi, 0')
        I('ds_read_b128 v[64:67], v91'); e.wait_lg()
        I('global_store_dwordx4 v26, v[64:67], s[46:47] sc1')
        self.exec_all()
        self.stamp(13)
        e.branch('s_branch', 'L_FIN')

    def stage_fin(self):
        e, I, cfg = self.e, self.I, self.cfg
        if cfg.get('gpf', 1):
            Lp = self.lab('gpf'); pol = '' if cfg.get('gpf', 1) == 2 else 'nt'
            I('s_cmp_ge_u32 s43, 28'); e.branch('s_cbranch_scc1', Lp)
            if cfg.get('gpf3', 0): I('s_cmp_lg_u32 s41, 3'); e.branch('s_cbranch_scc1', Lp)
            self.sleep(cfg.get('gpf_pre', 0))
            self.base(44, P_WU, [(3, 64*3584), (43, 128)])
            self.dma_128(44, 3584, 8, [(3, 8192)], 0, 'pf', pol=pol)
            if cfg.get('gpf_what', 0) == 0:
                self.base(44, P_WD, [(43, 64*1024), (3, 128)])
                self.dma_128(44, 1024, 8, [(3, 8192)], 64*K, 'pf', pol=pol)
            elif cfg.get('gpf_what', 0) == 2:
                self.base(44, P_WG, [(3, 64*3584), (43, 128)], 32*3584)
                self.dma_128(44, 3584, 4, [(3, 8192)], 64*K, 'pf', pol=pol)
            e.wait_vm()
            e.label(Lp); e.vm = []
        if cfg.get('uvpf', 0):
            self.sleep(cfg.get('uvpf_pre', 0))
            for qq in range(4):
                self.base(44, P_WUV, [(3, 16*8192), (43, 256)], qq*128*8192)
                self.dma_256(44, 8192, qq*32768, 'pf', '32', pol='' if cfg['uvpf'] == 2 else 'nt')
            e.wait_vm()
            self.stamp(7)
        I('s_cmp_lg_u32 s3, 0'); e.branch('s_cbranch_scc1', 'L_FIN')
        if cfg.get('pt', 0) & 1: I('v_mov_b32 v9, 0'); I(f'global_load_dword v250, v9, {sp(P_OUT)}')
        I('v_lshrrev_b32 v9, 3, v1'); I('v_bfe_u32 v10, v1, 2, 1'); I('v_and_b32 v11, 3, v1')
        I('v_lshlrev_b32 v12, 12, v9'); I('v_lshl_add_u32 v12, v10, 11, v12'); I('v_lshl_add_u32 v12, v11, 4, v12')
        for k in range(1, 3): I(f'v_add_u32 v{12+k}, {k*32768}, v12')
        I('v_and_b32 v15, 3, v9'); I('v_lshlrev_b32 v15, 12, v15'); I('v_lshl_add_u32 v15, v10, 11, v15'); I('v_lshl_add_u32 v15, v11, 4, v15'); I(f'v_add_u32 v15, {3*32768}, v15')
        I('v_and_b32 v16, 1, v9'); I('v_lshl_add_u32 v16, v16, 1, v10'); I('v_mul_u32_u24 v16, 12288, v16'); I('v_lshl_add_u32 v16, v11, 4, v16'); I(f'v_add_u32 v17, {1536*4}, v16')
        self.base(44, P_WS, [(43, 64)], WS_MODQ + 1024*4)
        I('v_lshlrev_b32 v18, 10, v10'); I('v_lshl_add_u32 v18, v11, 3, v18')
        self.base(46, P_X, [(43, 32)])
        I('global_load_dwordx2 v[20:21], v18, s[46:47]')
        I('s_lshl_b32 s97, s4, 3'); I('s_add_u32 s97, s97, s5'); I('s_sub_u32 s97, s97, 8')
        FM = cfg.get('fin_m', 0)
        if FM:
            self.base(98, P_WS, [(41, 128)], WS_HU5 + 512)
            I('v_and_b32 v19, 7, v1'); I('v_lshlrev_b32 v19, 10, v19')
            self.poll('hu', ['global_load_dword v56, v19, s[98:99] sc1'], [56], cfg.get('fin_pre', 20), loop_sleep=cfg.get('fin_loop', 8))
        else:
            self.base(98, P_WS, [(97, 128)], WS_HU5)
            I('v_mov_b32 v19, 0')
            self.poll('hu', ['global_load_dword v22, v19, s[98:99] sc1'], [22], cfg.get('fin_pre', 20), loop_sleep=4)
            I('v_readfirstlane_b32 s57, v22')
        self.stamp(8)
        self.poll('mg', ['global_load_dwordx4 v[24:27], v16, s[44:45] sc1', 'global_load_dwordx4 v[28:31], v17, s[44:45] sc1'], range(24, 32), 0)
        self.ror_reduce(range(24, 32), [8])
        I('v_and_b32 v23, 0xffff0000, v21'); I('v_lshlrev_b32 v22, 16, v21'); I('v_and_b32 v21, 0xffff0000, v20'); I('v_lshlrev_b32 v20, 16, v20')
        G2 = cfg.get('g2', 0)
        if G2:
            self.base(44, P_WS, [(43, 32)], WS_H5); I('v_lshrrev_b32 v59, 1, v12')
        else: self.base(44, P_WS, [(43, 64)], WS_H5)
        self.base(46, P_OUT, [(43, 32)])
        def wait_until(d):
            LW = self.lab('fw')
            if FM:
                I(f'v_mov_b32 v58, {d}'); e.label(LW)
                I('s_memrealtime s[100:101]'); I('s_waitcnt lgkmcnt(0)'); I('v_sub_u32 v57, s100, v56'); I('v_cmp_lt_u32 vcc, v57, v58'); I(f's_cbranch_vccnz {LW}')
                return
            e.label(LW)
            I('s_memrealtime s[100:101]'); I('s_waitcnt lgkmcnt(0)'); I('s_sub_u32 s6, s100, s57'); I(f's_cmp_lt_u32 s6, {d}'); I(f's_cbranch_scc1 {LW}')
        wait_until(cfg['t_h5'] + cfg.get('fin_h5', 30))
        if G2:
            self.poll('h5', ['global_load_dwordx2 v[34:35], v59, s[44:45] sc1'], [34, 35], 0, loop_sleep=8)
            I('v_lshlrev_b32 v32, 16, v34'); I('v_and_b32 v33, 0xffff0000, v34'); I('v_lshlrev_b32 v34, 16, v35'); I('v_and_b32 v35, 0xffff0000, v35')
        else: self.poll('h5', ['global_load_dwordx4 v[32:35], v12, s[44:45] sc1'], range(32, 36), 0, loop_sleep=8)
        self.stamp(11)
        def red8(b):
            self.ror_reduce(range(b, b+4), [8])
            for w in (16, 32):
                for k in range(4): I(f'v_mov_b32 v{60+k}, v{b+k}')
                for k in range(4): I(f'v_permlane{w}_swap_b32 v{b+k}, v{60+k}')
                for k in range(4): I(f'v_add_f32 v{b+k}, v{b+k}, v{60+k}')
        red8(32)
        for k in range(4): I(f'v_fma_f32 v{20+k}, v{24+k}, v{32+k}, v{20+k}')
        self.base(44, P_WS, [(43, 64)], WS_H7)
        I('v_cmp_gt_u32 vcc, 32, v1'); I('v_cndmask_b32 v19, 0, 1.0, vcc')
        if cfg.get('t_h7b', 0):
            self.base(98, P_WS, [], WS_HU2 + 4096)
            I('v_min_u32 v59, 27, v1'); I('v_lshlrev_b32 v59, 7, v59')
            wait_until(cfg.get('t_h7a', 150))
            self.poll('hu7', ['global_load_dword v56, v59, s[98:99] sc1'], [56], 0, loop_sleep=2)
            wait_until(cfg['t_h7b'])
        else: wait_until(cfg['t_h7'])
        self.poll('h7', [f'global_load_dwordx4 {vr(36+4*k,4)}, v{12+k}, s[44:45] sc1' for k in range(4)], range(36, 52), 0, loop_sleep=cfg.get('h7_loop', 4))
        self.stamp(12)
        for k in range(4): I(f'v_add_f32 v{36+k}, v{36+k}, v{40+k}')
        for k in range(4): I(f'v_fma_f32 v{44+k}, v{48+k}, v19, v{44+k}')
        for k in range(4): I(f'v_add_f32 v{36+k}, v{36+k}, v{44+k}')
        red8(36)
        for k in range(4): I(f'v_fma_f32 v{36+k}, v{28+k}, v{36+k}, v{20+k}')
        I('v_cvt_pk_bf16_f32 v36, v36, v37'); I('v_cvt_pk_bf16_f32 v37, v38, v39')
        if cfg.get('calib') == 2: self.sleep(cfg['calib_t'])
        I('s_mov_b64 exec, 0xff'); I(f'global_store_dwordx2 v18, v[36:37], s[46:47] {["", "sc1", "sc0 sc1", "nt"][cfg.get("outpol", 0)]}'); self.exec_all()
        self.stamp(13)
        e.branch('s_branch', 'L_FIN')

    def role_b(self):
        e, I, cfg = self.e, self.I, self.cfg
        I('s_mov_b32 s38, s2')
        I('s_lshr_b32 s39, s38, 6'); I('s_and_b32 s42, s38, 63')
        for k in range(4): I(f'v_mov_b32 v{16+k}, -1')
        I('s_lshl_b32 s6, s55, 4'); I('v_xor_b32 v20, s6, v6')
        for k in range(1, 4): I(f'v_xor_b32 v{20+k}, {k<<6}, v20')
        LNC = self.lab('nc')
        CB = 94 if not cfg.get('stamps') else 98
        ILV = cfg.get('ilv', 0)
        if ILV == 1:
            self.base(CB, P_CKV, [(39, 8388608), (42, 1024), (3, 4*65536)]); CHS = 32*65536
            for k in range(4): I(f'v_add_u32 v{244+k}, {k*64512}, v{20+k}')
        elif ILV == 2:
            self.ckv_base = lambda: self.base(CB, P_CKV, [(39, 8388608), (42, 4096), (3, 4*65536)])
            CHS = 32*65536
            if not cfg.get('lazy', 0): self.ckv_base()
        elif ILV == 3:
            self.base(CB, P_CKV, [(39, 8388608), (42, 32768), (3, 4096)]); CHS = 32*65536
        else:
            self.base(CB, P_CKV, [(39, 8388608), (42, 131072), (3, 4096)]); CHS = 32768
        VA = 244 if ILV == 1 else 20
        self.sval('s52', [(3, 4096)], L_CKV)
        WIN = cfg.get('ckv_win', 4)
        ckv_next = [0]
        def ckv_issue(upto):
            while ckv_next[0] < min(upto, 16):
                n = ckv_next[0]; ch, k = n >> 2, n & 3
                if k == 0 and ch: I(f's_add_u32 s{CB}, s{CB}, {CHS}'); I(f's_addc_u32 s{CB+1}, s{CB+1}, 0')
                I(f's_add_u32 m0, s52, {ch*32768}')
                I(f'global_load_lds_dwordx4 v{VA+k}, s[{CB}:{CB+1}] offset:{k*1024} nt', tag=f'ckv{n}')
                ckv_next[0] += 1
        if not cfg.get('p1a', 0):
            LCL = self.lab('cl')
            P1Q = cfg.get('p1q', 0)
            if P1Q == 2:
                I('s_lshl_b32 s43, s5, 2'); I('s_and_b32 s6, s4, 3'); I('s_add_u32 s43, s43, s6'); I('s_lshr_b32 s6, s4, 2'); I('s_lshl_b32 s6, s6, 6'); I('s_add_u32 s43, s43, s6')
            else: I('s_mov_b32 s43, s38')
            I('s_cmp_ge_u32 s43, 64'); e.branch('s_cbranch_scc1', LCL)
            if P1Q: I('s_lshr_b32 s56, s43, 4'); I('s_and_b32 s57, s43, 15')
            else: I('s_lshr_b32 s56, s5, 2'); I('s_bfe_u32 s6, s5, 0x10001'); I('s_lshl_b32 s6, s6, 3'); I('s_add_u32 s6, s6, s4'); I('s_lshl_b32 s6, s6, 1'); I('s_and_b32 s57, s5, 1'); I('s_add_u32 s57, s57, s6')
            def p1_after():
                if not cfg.get('p1_early', 0): return 0
                ckv_issue(cfg['p1_early']); return cfg['p1_early']
            def p1_mid():
                if cfg.get('p1bar', 0): I('s_barrier')
                I('s_mov_b32 s63, s52')
                ckv_issue(cfg['p1_first'])
            if P1Q: self.p1_tile(L_MT, L_RED1, after=p1_after, mid=p1_mid if cfg.get('p1_first', 0) else None)
            if cfg.get('p1_first', 0): I('s_mov_b32 s52, s63')
            if not P1Q: self.mod_tile(True, L_MT, L_SC, L_RED1, early=True, after=p1_after)
            self.stamp(12)
            ckv_issue(WIN)
            ckv_next[0] = 0
            e.branch('s_branch', 'L_CKVGO')
            e.sec('early')
            e.label(LCL); e.vm = []; e.lg = ['SMEM']
            if cfg.get('lazy', 0): self.kwait = True; self.ckv_base()
            if cfg.get('clA', 0): e.branch('s_branch', LNC)
            I('s_cmp_ge_u32 s43, 96'); e.branch('s_cbranch_scc1', LNC)
            I('s_sub_u32 s43, s43, 64')
            self.base(44, P_WS, [(43, 16384), (3, 2048)], WS_H2)
            for k in range(2 if not cfg.get('noclean') else 0): I(f'global_store_dwordx4 v6, v[16:19], s[44:45] offset:{k*1024} {POL[cfg.get("c0pol", 0)]}')
            self.base(44, P_WS, [(43, 2048), (3, 256)], WS_HQ2)
            I('s_mov_b64 exec, 0xffff'); I('global_store_dwordx4 v6, v[16:19], s[44:45] sc1'); self.exec_all()
            e.wait_vm(); e.barrier()
            L1 = self.lab('c1')
            I('s_cmp_lg_u32 s3, 0'); e.branch('s_cbranch_scc1', L1)
            I('v_mov_b32 v8, 0'); I('v_mov_b32 v9, 1'); I('s_mov_b64 exec, 1')
            I(f'global_atomic_add v10, v8, v9, {sp(P_DBG)} offset:192 sc0 sc1')
            I('s_waitcnt vmcnt(0)'); self.exec_all()
            I('v_readfirstlane_b32 s6, v10'); I('s_nop 3'); I('s_cmp_lg_u32 s6, 31'); e.branch('s_cbranch_scc1', L1)
            I('v_mov_b32 v9, 0x01010101'); I('s_mov_b64 exec, 1')
            I(f'global_store_dword v8, v9, {sp(P_DBG)} offset:128 sc1'); self.exec_all()
            e.label(L1); e.vm = ['x']
            self.stamp(1)
            self.sleep(cfg.get('bc_pre', 0))
            e.branch('s_branch', 'L_MODDONE')
            e.label(LNC)
        self.sleep(cfg.get('b_pre', 0))
        e.label('L_MODDONE'); e.vm = ['x']; e.lg = ['SMEM']
        self.stamp(2)
        ckv_issue(WIN)
        e.cont()
        e.label('L_CKVGO')
        I('s_mov_b32 s53, s52')
        Q2 = cfg.get('qk2', 0)
        if Q2:
            I('v_and_b32 v8, 3, v2'); I('v_xor_b32 v8, v8, v3'); I('v_lshlrev_b32 v8, 2, v8'); I('v_lshrrev_b32 v9, 2, v2'); I('v_or_b32 v8, v8, v9')
            I('v_lshlrev_b32 v8, 4, v8'); I('v_lshl_add_u32 v24, v2, 10, v8')
            I('s_lshl_b32 s6, s55, 15'); I('v_add_u32 v25, s6, v24')
            self.sval('s6', [(60, 16384)], L_QABS); I('v_add_u32 v24, s6, v24')
        else:
            I('v_and_b32 v8, 3, v4'); I('v_lshlrev_b32 v8, 2, v8'); I('v_bfe_u32 v9, v4, 2, 2'); I('v_or_b32 v8, v8, v9'); I('v_xor_b32 v8, v8, v5')
            I('v_lshlrev_b32 v8, 4, v8'); I('v_lshl_add_u32 v24, v4, 10, v8')
            I('s_lshl_b32 s6, s60, 9'); I('v_add_u32 v24, s6, v24')
            I('s_lshl_b32 s6, s55, 15'); I('v_add_u32 v25, s6, v24')
            I(f'v_add_u32 v24, {L_QABS}, v24')
        I('v_lshrrev_b32 v8, 2, v2'); I('v_lshl_add_u32 v9, v5, 2, v8'); I('v_lshl_or_b32 v8, v8, 2, v5')
        I('v_and_b32 v10, 1, v3'); I('v_lshlrev_b32 v10, 1, v10'); I('v_bfe_u32 v11, v2, 1, 1'); I('v_or_b32 v10, v10, v11')
        I('s_lshl_b32 s6, s62, 3'); I('v_or_b32 v10, s6, v10')
        I('v_xor_b32 v10, v10, v8'); I('v_lshlrev_b32 v10, 4, v10'); I('v_lshl_add_u32 v10, v9, 10, v10')
        I('v_and_b32 v11, 1, v2'); I('v_lshl_add_u32 v10, v11, 3, v10')
        I('s_lshl_b32 s6, s61, 8'); I('v_add_u32 v10, s6, v10')
        for u in range(2):
            for jh in range(2):
                r = 26 + 2*u + jh
                I(f'v_xor_b32 v{r}, {(u<<6)|(jh<<5)}, v10')
                if jh: I(f'v_add_u32 v{r}, 8192, v{r}')
        QA, PV = (32, 160) if Q2 else (32, 96)
        ACC, ML = (96, 246) if Q2 else (208, 200)
        SENT = cfg.get('h3sent', 1)
        S6 = SENT == 6
        S2 = SENT >= 2; S3 = SENT in (3, 4)
        if S2: SENT = 0
        CLK = cfg.get('t_h3f', 0)
        def do_clears():
            for k in range(4): I(f'v_mov_b32 v{240+k}, -1')
            I('v_lshrrev_b32 v14, 3, v1'); I('v_lshlrev_b32 v14, 10, v14'); I('v_and_b32 v13, 7, v1'); I('v_lshl_add_u32 v14, v13, 4, v14')
            self.base(46, P_WS, [(38, 32768), (3, 128)], WS_H3)
            for q in range(4):
                I(f'global_store_dwordx4 v14, v[240:243], s[46:47] {POL[cfg.get("clrpol", 0)]}', tag='clr')
                if q < 3: I('v_add_u32 v14, 8192, v14')
        def do_wuv():
            self.base(56, P_WUV, [(41, 128*8192), (3, 16*8192), (40, 256)])
            self.dma_256(56, 8192, L_WUV, 'wuv', '32', vt=12)
        self.base(44, P_WS, [(39, 32768), (3, 4096)], WS_H2)
        h2loads = [f'global_load_dwordx4 {vr(160+4*k,4)}, v6, s[44:45] offset:{k*1024} sc1' for k in range(4)]
        SPEC = cfg.get('t_spec', 0); H2D = cfg.get('h2dma', 0)
        TL = cfg.get('t_late', 0); L_GOF = 20*K
        for ch in range(4):
            if TL and ch == 3:
                LO, LW0, LCK, LGO, LZ, LRI = [self.lab(x) for x in ('tlo', 'tlw', 'tlc', 'tlg', 'tlz', 'tlr')]
                e.wait_vm('ep'); saved = list(e.vm)
                self.flagcheck_finish(1, 17)
                I('v_readfirstlane_b32 s63, v18'); I('s_memrealtime s[100:101]'); I(f'v_mov_b32 v16, {L_GOF}'); I('s_waitcnt lgkmcnt(0)')
                I('s_cmp_eq_u32 s63, 0'); I('s_cselect_b32 s63, s100, s63')
                I('s_cmp_lg_u32 s3, 0'); I(f's_cbranch_scc1 {LO}')
                self.base(46, P_WS, [], WS_HU2); I(f's_movk_i32 s43, {TL}')
                I('v_and_b32 v15, 7, v1'); I('v_lshlrev_b32 v15, 7, v15'); I(f'v_mov_b32 v13, {cfg["t_h2"]}')
                e.label(LRI, flush=False)
                I('global_load_dword v14, v15, s[46:47] sc1')
                e.label(LW0, flush=False)
                I('s_memrealtime s[100:101]'); I('s_getreg_b32 s7, hwreg(HW_REG_IB_STS, 0, 4)'); I('s_waitcnt lgkmcnt(0)')
                I('s_sub_u32 s6, s100, s63'); I('s_cmp_ge_u32 s6, s43'); I(f's_cbranch_scc1 {LGO}')
                I('s_cmp_lg_u32 s7, 0'); I(f's_cbranch_scc1 {LW0}')
                I('s_movk_i32 s43, 0x4000')
                I('v_cmp_eq_u32 vcc, -1, v14'); I(f's_cbranch_vccnz {LRI}')
                I('v_sub_u32 v19, s100, v14'); I('v_cmp_lt_u32 vcc, v19, v13'); I(f's_cbranch_vccnz {LW0}')
                e.label(LGO, flush=False)
                I('v_mov_b32 v19, 1'); I('ds_write_b32 v16, v19'); I(f's_branch {LZ}')
                e.label(LO, flush=False)
                I('ds_read_b32 v19, v16'); I('s_memrealtime s[100:101]'); I('s_waitcnt lgkmcnt(0)')
                I('v_cmp_ne_u32 vcc, 0, v19'); I(f's_cbranch_vccnz {LZ}')
                I('s_sub_u32 s6, s100, s63'); I('s_cmp_lt_u32 s6, 0x4100'); I(f's_cbranch_scc1 {LO}')
                e.label(LZ, flush=False)
                self.stamp(10)
                I(f's_mov_b32 s54, {SPIN}'); self.sval('s63', [(3, 4096)], L_QABS); I('s_mov_b32 m0, s63')
                for k in range(4): I(f'global_load_lds_dwordx4 v{20+k}, s[44:45] offset:{k*1024} sc1')
                I('s_waitcnt vmcnt(4)'); e.vm = []; e.lg = ['SMEM']
            if SPEC and ch == 3:
                LE, LJ, LS = self.lab('spe'), self.lab('spj'), self.lab('sps')
                e.wait_vm('ep')
                I('v_readfirstlane_b32 s6, v17'); I('v_readfirstlane_b32 s63, v18'); I('s_memrealtime s[100:101]'); I('s_mov_b32 s43, 0')
                I('s_cmp_lg_u32 s6, 0x01010101'); I(f's_cbranch_scc1 {LE}')
                I('s_cmp_eq_u32 s63, 0'); I(f's_cbranch_scc1 {LE}')
                if not cfg.get('spec_vm', 0):
                    I('s_waitcnt lgkmcnt(0)'); I('s_sub_u32 s6, s100, s63'); I(f's_cmp_lt_u32 s6, {SPEC - cfg.get("t_lead", 75)}'); I(f's_cbranch_scc1 {LE}')
                e.label(LS, flush=False)
                if cfg.get('spec_vm', 0) == 1:
                    I('s_getreg_b32 s6, hwreg(HW_REG_IB_STS, 0, 4)'); I('s_cmp_eq_u32 s6, 0'); I(f's_cbranch_scc1 {LE}')
                I('s_memrealtime s[100:101]'); I('s_waitcnt lgkmcnt(0)'); I('s_sub_u32 s6, s100, s63'); I(f's_cmp_lt_u32 s6, {SPEC}'); I(f's_cbranch_scc1 {LS}')
                for ld in h2loads: I(ld)
                I('s_mov_b32 s43, 1'); I('s_waitcnt vmcnt(4)'); I(f's_branch {LJ}')
                e.label(LE, flush=False)
                I('s_waitcnt vmcnt(0)')
                e.label(LJ, flush=False); e.vm = []; e.lg = ['SMEM']
            for k in range(4):
                if S2 and not S3 and not S6 and 4*ch+k == cfg.get('clr_k', 0): do_clears()
                e.wait_vm(f'ckv{4*ch+k}'); ckv_issue(4*ch + k + 1 + (WIN if 4*ch+k < cfg.get('ckv_sw', 99) else cfg.get('ckv_win2', 6)))
            if cfg.get('chst'): self.stamp([7, 11, 14, 1][ch])
            if cfg.get('go_early', 0) and ch == 2:
                I('v_and_b32 v15, 7, v1'); I('v_lshlrev_b32 v15, 7, v15'); I(f'v_add_u32 v15, {WS_HU2}, v15'); I('v_mov_b32 v14, -1')
                I('s_cmp_eq_u32 s3, 0'); I('s_cselect_b64 exec, -1, 0')
                I(f'global_load_dword v14, v15, {sp(P_WS)} sc1'); self.exec_all(); e.vm.pop()
            if (cfg.get('pt', 0) & 2) and ch == cfg.get('pt_ch', 0):
                Lp = self.lab('pt'); saved = list(e.vm)
                I('s_cmp_lg_u32 s3, 5'); e.branch('s_cbranch_scc1', Lp, flush=False)
                I('v_lshlrev_b32 v8, 16, v1'); I(f'v_add_u32 v8, {WS_H3}, v8'); I(f'global_load_dword v250, v8, {sp(P_WS)} sc1')
                e.label(Lp, flush=False); e.vm = saved
            if ch == (1 if (SPEC or TL) else 2):
                if cfg.get('flag1', 0):
                    I('v_mov_b32 v17, 0x01010101'); I('s_cmp_eq_u32 s3, 0'); I('s_cselect_b64 exec, -1, 0')
                self.flagcheck_issue(1, 17)
                if cfg.get('flag1', 0): self.exec_all(); e.vm.pop()
            if (SPEC or TL) and ch == 1: I(f'global_load_dword v18, v8, {sp(P_DBG)} offset:-128 sc1', tag='ep')
            if (cfg.get('rot', 0) & 2) and ch == 2: I(f'global_load_dword v18, v8, {sp(P_DBG)} offset:-128 sc1', tag='ep')
            e.barrier()
            if TL and ch == 1: I(f'v_mov_b32 v16, {L_GOF}'); I('v_mov_b32 v19, 0'); I('ds_write_b32 v16, v19')
            def chfrags(ch=ch):
                L = self.lab('qa')
                I(f's_cmp_lg_u32 s55, {ch}'); e.branch('s_cbranch_scc1', L)
                if Q2:
                    for j in range(4):
                        I(f'v_xor_b32 v{8+(j&1)}, {j<<4}, v25')
                        for kq in range(4):
                            for kt in range(2): I(f'ds_read_b128 {vr(QA+8*(4*kq+j)+4*kt,4)}, v{8+(j&1)} offset:{kq*256+kt*16384}')
                else:
                    for k7 in range(8):
                        I(f'v_xor_b32 v{8+(k7&1)}, {k7<<5}, v25')
                        I(f'ds_read_b128 {vr(QA+4*k7,4)}, v{8+(k7&1)}'); I(f'ds_read_b128 {vr(QA+4*(k7+8),4)}, v{8+(k7&1)} offset:256')
                e.label(L)
                for ks in (2*ch, 2*ch+1):
                    for u in range(2):
                        for jh in range(2):
                            if Q2: I(f'ds_read_b64_tr_b16 {vr(PV+32*u+4*ks+2*jh,2)}, v{26+2*u+(ks&1)} offset:{(ch&1)*32768+jh*16384}')
                            else: I(f'ds_read_b64_tr_b16 {vr(PV+32*u+4*ks+2*jh,2)}, v{26+2*u+jh} offset:{(ks&3)*16384}')
            if not (ch == 3 and cfg.get('late3', 0) and not TL): chfrags()
            if ch == 1:
                for r in range(26, 30): I(f'v_add_u32 v{r}, 65536, v{r}')
        self.stamp(3)
        if SPEC:
            LB, LC, LP, DP = self.lab('spb'), self.lab('spc'), self.lab('h2'), self.lab('h2d')
            I('s_cmp_eq_u32 s43, 1'); e.branch('s_cbranch_scc1', LB)
            e.vm = []; self.flagcheck_finish(1, 17)
            if cfg.get('spec_vm', 0) != 2: self.go_wait(cfg['t_h2'], nobar=True)
            e.label(LB)
            if cfg.get('spec_vm', 0) != 2: e.barrier()
            self.stamp(10)
            I(f's_mov_b32 s54, {SPIN}')
            I('s_cmp_eq_u32 s43, 1'); e.branch('s_cbranch_scc1', LC)
            e.label(LP)
            for ld in h2loads: I(ld)
            e.label(LC, flush=False)
            e.wait_vm()
            r_ = self.maxtree(range(160, 176), 8)
            I(f'v_cmp_eq_u32 vcc, -1, v{r_}'); I(f's_cbranch_vccz {DP}')
            if cfg.get('fine'): self.stamp(7)
            I(f's_sleep {cfg.get("h2_loop", 8)}'); I('s_sub_u32 s54, s54, 1'); I(f's_cbranch_scc0 {LP}')
            e.label(DP, flush=False)
        else:
            if not TL:
                e.vm = ['flag']; self.flagcheck_finish(1, 17)
                if cfg.get('rot', 0) & 2:
                    Lt, Dt = self.lab('tg'), self.lab('tgd')
                    e.label(Lt, flush=False)
                    I('v_cmp_ne_u32 vcc, 0, v18'); I(f's_cbranch_vccnz {Dt}')
                    I('v_mov_b32 v8, 0'); I(f'global_load_dword v18, v8, {sp(P_DBG)} sc1'); I('s_waitcnt vmcnt(0)'); I('s_sub_u32 s54, s54, 1'); I(f's_cbranch_scc0 {Lt}')
                    e.label(Dt, flush=False); e.vm = []
                    I('v_readfirstlane_b32 s97, v18'); I('s_nop 3'); I('s_bfe_u32 s97, s97, 0x50001'); I('s_lshl_b32 s97, s97, 22')
                if cfg.get('wuv_pre', 1): do_wuv()
                if SENT and cfg.get('clr_at', 1) == 0: do_clears()
                self.go_wait(cfg['t_h2'])
                self.stamp(10)
            if S6 and cfg.get('clr_at', 1) == 3:
                Dh2 = self.lab('h2ok')
                e.vm = []
                for ld in h2loads: I(ld, tag='h2')
                do_clears()
                e.wait_vm('h2')
                r_ = self.maxtree(range(160, 176), 8)
                I(f'v_cmp_eq_u32 vcc, -1, v{r_}'); I(f's_cbranch_vccz {Dh2}')
                self.poll('h2', h2loads, range(160, 176), 0, loop_sleep=cfg.get('h2_loop', 8))
                e.label(Dh2, flush=False); e.vm = ['clr']*4
            elif H2D:
                if TL: e.branch('s_branch', 'L_H2W')
                if not TL: I(f's_mov_b32 s54, {SPIN}'); self.sval('s63', [(3, 4096)], L_QABS)
                if cfg.get('late3', 0) and not TL:
                    I('s_mov_b32 m0, s63')
                    for k in range(4): I(f'global_load_lds_dwordx4 v{20+k}, s[44:45] offset:{k*1024} {"" if cfg.get("h2plain", 0) else "sc1"}')
                    chfrags()
                    e.branch('s_branch', 'L_H2W')
                e.label('L_H2R')
                I('s_mov_b32 m0, s63')
                for k in range(4): I(f'global_load_lds_dwordx4 v{20+k}, s[44:45] offset:{k*1024} sc1')
                e.label('L_H2W', flush=False)
                if Q2:
                    I('v_lshlrev_b32 v15, 4, v2'); I('s_lshl_b32 s6, s60, 8'); I('v_add_u32 v15, s6, v15'); I('s_lshl_b32 s6, s55, 2'); I('v_add_u32 v30, s6, v15'); I('v_xor_b32 v31, 256, v15')
                    I('v_mov_b32 v249, 0x7f800000')
                    I('v_lshrrev_b32 v252, 1, v3'); I('v_lshlrev_b32 v252, 10, v252'); I('v_and_b32 v13, 1, v3'); I('v_lshl_add_u32 v252, v13, 9, v252'); I('v_add_u32 v252, v252, v15'); I('s_lshl_b32 s6, s55, 11'); I('v_add_u32 v252, s6, v252')
                    e.wait_lg()
                    for j, ar in enumerate([8, 14, 10, 11]): I(f'v_xor_b32 v{ar}, {j<<4}, v24')
                    if cfg.get('h2chk', 0): I('v_add_u32 v13, s63, v6')
                e.wait_vm()
                if cfg.get('h2chk', 0):
                    Dk = self.lab('h2c')
                    for k in range(4): I(f'ds_read_b128 {vr(224+4*k,4)}, v13 offset:{k*1024}', tag=f'c{k}')
                    for k in range(4):
                        e.wait_lg(f'c{k}'); q = 224 + 4*k
                        if k == 0: I(f'v_max3_u32 v248, v{q}, v{q+1}, v{q+2}'); I(f'v_max_u32 v248, v248, v{q+3}')
                        else: I(f'v_max3_u32 v248, v248, v{q}, v{q+1}'); I(f'v_max3_u32 v248, v248, v{q+2}, v{q+3}')
                    I('v_cmp_eq_u32 vcc, -1, v248'); I(f's_cbranch_vccz {Dk}')
                    I(f's_sleep {cfg.get("h2_loop", 8)}'); I('s_sub_u32 s54, s54, 1'); I('s_cbranch_scc0 L_H2R')
                    e.label(Dk, flush=False)
            else:
                self.poll('h2', h2loads, range(160, 176), 0, loop_sleep=cfg.get('h2_loop', 8))
        self.stamp(4)
        if CLK:
            Lf = self.lab('h3c')
            I('s_cmp_lg_u32 s3, 7'); e.branch('s_cbranch_scc1', Lf, flush=False)
            I('s_memrealtime s[100:101]')
            self.base(58, P_WS, [(38, 16)], WS_FL2)
            I('v_lshlrev_b32 v16, 11, v1'); I('s_waitcnt lgkmcnt(0)'); I('s_and_b32 s100, s100, 0xfffffffe'); I('v_mov_b32 v17, s100')
            I('s_mov_b64 exec, 0xff'); I('global_store_dword v16, v17, s[58:59] sc1'); self.exec_all()
            e.label(Lf, flush=False); e.vm = []
        if S2:
            Lf = self.lab('h3f')
            I('s_cmp_lg_u32 s3, 7'); e.branch('s_cbranch_scc1', Lf, flush=False)
            I('s_memrealtime s[100:101]')
            self.base(58, P_WS, [(38, 16)], WS_FL)
            saved = list(e.vm)
            I('v_lshlrev_b32 v16, 11, v1'); I('s_waitcnt lgkmcnt(0)'); I('s_and_b32 s100, s100, 0xfffffffe'); I('v_mov_b32 v17, s100')
            I('s_mov_b64 exec, 0xff'); I('global_store_dword v16, v17, s[58:59] sc1'); self.exec_all()
            e.label(Lf, flush=False); e.vm = saved
        if not H2D:
            self.sval('s6', [(3, 4096)], L_QABS)
            for k in range(4):
                I(f'v_add_u32 v{8+k}, s6, v{20+k}')
                I(f'ds_write_b128 v{8+k}, {vr(160+4*k,4)} offset:{k*1024}')
        e.barrier()
        if cfg.get('fine'): self.stamp(11); e.wait_lg()
        if Q2:
            assert H2D
            CHK = cfg.get('h2chk', 0)
            QR = [224, 228, 232, 236, 16]
            AR = [8, 14, 10, 11]
            def qb(ks): return QR[ks % 5]
            def qrd(ks): I(f'ds_read_b128 {vr(qb(ks),4)}, v{AR[ks&3]} offset:{(ks>>2)*256}', tag=f'qb{ks}')
            for j in range(5): qrd(j)
            for ks in range(16):
                e.wait_lg(f'qb{ks}')
                for kt in range(2):
                    I(f'v_mfma_f32_16x16x32_bf16 {vr(240+4*kt,4)}, {vr(QA+8*ks+4*kt,4)}, {vr(qb(ks),4)}, {"0" if ks == 0 else vr(240+4*kt,4)}')
                q = qb(ks)
                if CHK: pass
                elif ks == 0: I(f'v_max3_u32 v248, v{q}, v{q+1}, v{q+2}'); I(f'v_max_u32 v248, v248, v{q+3}')
                else: I(f'v_max3_u32 v248, v248, v{q}, v{q+1}'); I(f'v_max3_u32 v248, v248, v{q+2}, v{q+3}')
                if ks + 5 < 16: qrd(ks + 5)
                if ks == cfg.get('wuv_at', 7): do_wuv()
            if not CHK: I('v_cmp_eq_u32 vcc, -1, v248')
            I('v_max3_f32 v224, v240, v241, v242'); I('v_max3_f32 v225, v244, v245, v246'); I('v_max3_f32 v224, v224, v243, v247'); I('v_max_f32 v224, v224, v225')
            if not CHK: I('v_cndmask_b32 v224, v224, v249, vcc')
            self.cross(16, 224, 225, 'max'); self.cross(32, 224, 225, 'max')
            I(f'ds_write_b32 v30, v224 offset:{L_MAX}')
            def wuv_half(lo):
                Lw = self.lab('wv')
                I('s_cmp_ge_u32 s3, 4' if lo else 's_cmp_lt_u32 s3, 4'); e.branch('s_cbranch_scc1', Lw)
                do_wuv()
                if lo: I(f's_add_u32 s56, s56, {64*8192}'); I('s_addc_u32 s57, s57, 0')
                else: I(f's_sub_u32 s56, s56, {64*8192}'); I('s_subb_u32 s57, s57, 0')
                self.dma_256(56, 8192, L_WUV + (4*4096 if lo else -4*4096), 'wuv', '32', vt=12)
                e.label(Lw)
            if cfg.get('wuv_at') == 99: wuv_half(True)
            if cfg.get('fine'): self.stamp(14)
            e.barrier()
            if cfg.get('fine'): self.stamp(2)
            if CHK:
                I(f'ds_read_b128 v[228:231], v15 offset:{L_MAX}'); e.wait_lg()
                I('v_max3_f32 v224, v228, v229, v230'); I('v_max_f32 v224, v224, v231')
                for k in range(8): I(f'v_sub_f32 v{240+k}, v{240+k}, v224')
            else:
                I(f'ds_read_b128 v[228:231], v15 offset:{L_MAX}'); I(f'ds_read_b128 v[232:235], v31 offset:{L_MAX}')
                e.wait_lg()
                I('v_max3_f32 v224, v228, v229, v230'); I('v_max3_f32 v225, v232, v233, v234'); I('v_max_f32 v224, v224, v231'); I('v_max3_f32 v225, v225, v235, v224')
                for k in range(8): I(f'v_sub_f32 v{240+k}, v{240+k}, v224')
                Dk = self.lab('h2k')
                I('v_cmp_eq_u32 vcc, v249, v225'); I(f's_cbranch_vccz {Dk}')
                n0 = e.n
                I(f's_sleep {cfg.get("h2_loop", 8)}'); I('s_sub_u32 s54, s54, 1'); I('s_cbranch_scc0 L_H2R')
                e.label(Dk, flush=False); e.n = n0
            for k in range(8): I(f'v_exp_f32 v{240+k}, v{240+k}')
            for k in range(4): I(f'v_cvt_pk_bf16_f32 v{228+k}, v{240+2*k}, v{241+2*k}')
            I(f'ds_write_b128 v252, v[228:231] offset:{L_P}')
            LS = cfg.get('latesum', 0)
            sums = [lambda: [I(f'v_add_f32 v{240+k}, v{240+k}, v{244+k}') for k in range(4)],
                    lambda: [I('v_add_f32 v240, v240, v241'), I('v_add_f32 v242, v242, v243')],
                    lambda: [I('v_add_f32 v240, v240, v242')],
                    lambda: self.cross(16, 240, 241), lambda: self.cross(32, 240, 241),
                    lambda: I(f'ds_write_b32 v30, v240 offset:{L_SUM}')]
            if not LS:
                for f_ in sums: f_()
        if not Q2:
            def qb(ks): return 160 + 4*ks if ks < 8 else 208 + 4*(ks-8)
            for k7 in range(8):
                I(f'v_xor_b32 v{8+(k7&3)}, {k7<<5}, v24')
                I(f'ds_read_b128 {vr(qb(k7),4)}, v{8+(k7&3)}', tag=f'qb{k7}'); I(f'ds_read_b128 {vr(qb(k7+8),4)}, v{8+(k7&3)} offset:256', tag=f'qb{k7+8}')
            order = []
            for k7 in range(8): order += [k7, k7+8]
            for n, ks in enumerate(order):
                e.wait_lg(f'qb{ks}')
                I(f'v_mfma_f32_32x32x16_bf16 v[192:207], {vr(QA+4*ks,4)}, {vr(qb(ks),4)}, {"0" if n == 0 else "v[192:207]"}')
                if H2D:
                    q = qb(ks)
                    if n == 0: I(f'v_max3_u32 v248, v{q}, v{q+1}, v{q+2}'); I(f'v_max_u32 v248, v248, v{q+3}')
                    else: I(f'v_max3_u32 v248, v248, v{q}, v{q+1}'); I(f'v_max3_u32 v248, v248, v{q+2}, v{q+3}')
                if n == cfg.get('wuv_at', 7) and not cfg.get('wuv_pre', 1): do_wuv()
                if n == cfg.get('clr_n', 2) and (SENT or S6) and cfg.get('clr_at', 1) == 1: do_clears()
            I('s_lshl_b32 s6, s3, 11'); I('v_add_u32 v8, s6, v6'); I('s_xor_b32 s6, s6, 8192'); I('v_add_u32 v9, s6, v6')
            LA, LB = self.lab('x0'), self.lab('x1')
            I('s_cmp_eq_u32 s60, 0'); e.branch('s_cbranch_scc1', LA)
            I(f'ds_write_b128 v8, v[192:195] offset:{L_XCH}'); I(f'ds_write_b128 v8, v[196:199] offset:{L_XCH+1024}')
            for k in range(8): I(f'v_mov_b32 v{240+k}, v{200+k}')
            e.branch('s_branch', LB)
            e.label(LA)
            I(f'ds_write_b128 v8, v[200:203] offset:{L_XCH}'); I(f'ds_write_b128 v8, v[204:207] offset:{L_XCH+1024}')
            for k in range(8): I(f'v_mov_b32 v{240+k}, v{192+k}')
            if cfg.get('wuv_at', 7) == 99:
                do_wuv()
                I(f's_add_u32 s56, s56, {64*8192}'); I('s_addc_u32 s57, s57, 0')
                self.dma_256(56, 8192, L_WUV + 4*4096, 'wuv', '32', vt=12)
                I('s_lshl_b32 s6, s3, 11'); I('s_xor_b32 s6, s6, 8192'); I('v_add_u32 v9, s6, v6')
            e.label(LB)
            if cfg.get('fine'): self.stamp(14)
            e.barrier()
            if cfg.get('fine'): self.stamp(1)
            I(f'ds_read_b128 v[192:195], v9 offset:{L_XCH}'); I(f'ds_read_b128 v[196:199], v9 offset:{L_XCH+1024}')
            I('v_lshlrev_b32 v10, 5, v4'); I('s_lshl_b32 s6, s3, 2'); I('v_add_u32 v11, s6, v10')
            if H2D: I('v_cmp_eq_u32 vcc, -1, v248'); I('v_mov_b32 v249, 0x7f800000')
            e.wait_lg()
            for k in range(8): I(f'v_add_f32 v{192+k}, v{192+k}, v{240+k}')
            I('v_max3_f32 v200, v192, v193, v194'); I('v_max3_f32 v201, v195, v196, v197'); I('v_max3_f32 v200, v200, v198, v199'); I('v_max_f32 v200, v200, v201')
            if H2D: I('v_cndmask_b32 v200, v200, v249, vcc')
            self.cross(32, 200, 201, 'max')
            I(f'ds_write_b32 v11, v200 offset:{L_MAX}')
            e.barrier()
            if cfg.get('fine'): self.stamp(2)
            I(f'ds_read_b128 v[240:243], v10 offset:{L_MAX}'); I(f'ds_read_b128 v[244:247], v10 offset:{L_MAX+16}')
            I('s_lshl_b32 s6, s55, 1'); I('s_add_u32 s6, s6, s60'); I('s_lshl_b32 s6, s6, 10'); I('v_add_u32 v12, s6, v6')
            e.wait_lg()
            I('v_max3_f32 v200, v240, v241, v242'); I('v_max3_f32 v204, v244, v245, v246'); I('v_max3_f32 v200, v200, v243, v247'); I('v_max_f32 v200, v200, v204')
            if H2D:
                Dk = self.lab('h2k')
                I('v_cmp_eq_u32 vcc, v249, v200'); I(f's_cbranch_vccz {Dk}')
                n0 = e.n
                I(f's_sleep {cfg.get("h2_loop", 8)}'); I('s_sub_u32 s54, s54, 1'); I('s_cbranch_scc0 L_H2R')
                e.label(Dk, flush=False); e.n = n0
            for k in range(8): I(f'v_sub_f32 v{192+k}, v{192+k}, v200')
            for k in range(8): I(f'v_exp_f32 v{192+k}, v{192+k}')
            for k in range(4): I(f'v_cvt_pk_bf16_f32 v{204+k}, v{192+2*k}, v{193+2*k}')
            I(f'ds_write_b128 v12, v[204:207] offset:{L_P}')
            for k in range(4): I(f'v_add_f32 v{192+k}, v{192+k}, v{196+k}')
            I('v_add_f32 v192, v192, v193'); I('v_add_f32 v194, v194, v195'); I('v_add_f32 v192, v192, v194')
            self.cross(32, 192, 193)
            I(f'ds_write_b32 v11, v192 offset:{L_SUM}')
        e.wait_vm('clr')
        e.barrier()
        self.stamp(5); e.wait_lg()
        for ks in range(8): I(f'ds_read_b128 {vr(32+4*ks,4)}, v6 offset:{L_P+ks*1024}', tag=f'p{ks}')
        if CLK:
            self.base(58, P_WS, [(4, 2048), (3, 256)], WS_FL2)
            I('v_lshlrev_b32 v16, 4, v2')
            I('global_load_dword v248, v16, s[58:59] sc1', tag='fl')
        if S2:
            if S3:
                self.base(58, P_WS, [(4, 2048)], WS_FL)
                I('v_lshlrev_b32 v16, 4, v2'); I('s_lshl_b32 s6, s3, 8'); I('v_add_u32 v16, s6, v16')
                I('s_mov_b64 exec, 0xffff'); I(f'v_add_u32 v16, {WS_FL2-WS_FL}, v16')
                I('s_lshl_b32 s6, s38, 4'); I(f's_add_u32 s6, s6, {WS_FL2-WS_FL}')
                I('s_mov_b32 exec_lo, 0'); I('s_mov_b32 exec_hi, -1'); I('v_mov_b32 v16, s6'); self.exec_all()
            elif S6:
                self.base(58, P_WS, [(4, 2048), (60, 1024)], WS_FL)
                I('v_mov_b32 v16, v6')
            else:
                self.base(58, P_WS, [(4, 2048), (3, 256)], WS_FL)
                I('v_lshlrev_b32 v16, 4, v2')
            I('global_load_dword v17, v16, s[58:59] sc1', tag='fl')
        L = self.lab('st')
        saved_lg = list(e.lg); saved_vm = list(e.vm)
        LS = Q2 and cfg.get('latesum', 0)
        def w7stats():
            I('v_lshlrev_b32 v8, 4, v4')
            I(f'ds_read_b128 v[224:227], v8 offset:{L_SUM}'); I(f'ds_read_b128 v[228:231], v8 offset:{L_MAX}')
            I('s_waitcnt lgkmcnt(0)')
            I('v_add_f32 v224, v224, v225'); I('v_add_f32 v226, v226, v227'); I('v_max3_f32 v228, v228, v229, v230'); I(f'v_add_f32 v{ML+1}, v224, v226'); I(f'v_max_f32 v{ML}, v228, v231')
        if not LS: I('s_cmp_lg_u32 s3, 7'); e.branch('s_cbranch_scc1', L)
        if LS: pass
        elif Q2: w7stats()
        else:
            I(f'ds_read_b128 v[64:67], v10 offset:{L_SUM}'); I(f'ds_read_b128 v[68:71], v10 offset:{L_SUM+16}')
            I('v_lshlrev_b32 v8, 9, v4')
            self.base(44, P_WS, [(39, 16384), (42, 8)], WS_ST)
            I('s_waitcnt lgkmcnt(0)')
            for k in range(4): I(f'v_add_f32 v{64+k}, v{64+k}, v{68+k}')
            I('v_add_f32 v64, v64, v65'); I('v_add_f32 v66, v66, v67'); I('v_add_f32 v201, v64, v66')
        REC = cfg.get('h3rec', 0)
        if not REC:
            I('s_mov_b32 exec_hi, 0')
            I('global_store_dwordx2 v8, v[200:201], s[44:45] sc1')
            self.exec_all()
        e.label(L); e.lg = saved_lg; e.vm = saved_vm
        if cfg.get('pv_prio'):
            L = self.lab('pr')
            I('s_cmp_ge_u32 s3, 4'); e.branch('s_cbranch_scc1', L); I('s_setprio 2'); e.label(L)
        if Q2 and cfg.get('wuv_at') == 98: wuv_half(False)
        for ks in range(8):
            e.wait_lg(f'p{ks}')
            for u in range(2):
                I(f'v_mfma_f32_32x32x16_bf16 {vr(ACC+16*u,16)}, {vr(32+4*ks,4)}, {vr(PV+32*u+4*ks,4)}, {"0" if ks == 0 else vr(ACC+16*u,16)}')
                if LS and 0 <= 2*ks + u - 10 < len(sums): sums[2*ks + u - 10]()
        I('v_lshlrev_b32 v8, 12, v5'); I('v_lshl_add_u32 v8, v4, 2, v8')
        for q in range(1, 4): I(f'v_add_u32 v{8+q}, {q*8192}, v8')
        self.base(44, P_WS, [(38, 32768), (3, 128)] + self.h3t, self.h3)
        if not S2:
            self.base(58, P_WS, [(38, 16)], WS_FL)
            I('v_lshlrev_b32 v16, 11, v1'); I('v_mov_b32 v17, 0')
        w7l = ['global_load_dwordx2 v[56:57], v7, s[56:57] sc1', 'global_load_dwordx2 v[58:59], v18, s[56:57] sc1']
        if SENT:
            self.base(56, P_WS, [(40, 512)], WS_ST); I('v_add_u32 v18, 16384, v7')
        if S3:
            Lo, Do = self.lab('own'), self.lab('ownd')
            I(f's_mov_b32 s54, {SPIN}'); I('s_waitcnt vmcnt(1)')
            I('s_cmp_eq_u32 s3, 7'); I(f's_cbranch_scc1 {Lo}'); I('s_waitcnt vmcnt(0)')
            e.label(Lo, flush=False)
            I('v_cmp_eq_u32 vcc, -1, v17'); I('s_nop 3'); I('s_cmp_eq_u32 vcc_hi, 0'); I(f's_cbranch_scc1 {Do}')
            I('s_sleep 4'); I('global_load_dword v17, v16, s[58:59] sc1'); I('s_waitcnt vmcnt(0)')
            I('s_sub_u32 s54, s54, 1'); I(f's_cbranch_scc0 {Lo}')
            e.label(Do, flush=False); e.vm = []
        for r in range(16):
            I(f'v_cvt_pk_bf16_f32 v{64+r}, v{ACC+r}, v{ACC+16+r}')
            if r == 0 and SENT:
                Lw = self.lab('w7'); saved = list(e.vm)
                I('s_cmp_lg_u32 s3, 7'); e.branch('s_cbranch_scc1', Lw, flush=False)
                for ld in w7l: I(ld)
                e.label(Lw, flush=False); e.vm = saved
            I(f'global_store_dword v{8+(r>>2)}, v{64+r}, s[44:45] offset:{(r&3)*1024} {POL[cfg.get("h3pol", 0)]}', tag='h3')
        if SENT:
            Lw, Dw = self.lab('w7b'), self.lab('w7ok'); saved = list(e.vm)
            I('s_cmp_lg_u32 s3, 7'); e.branch('s_cbranch_scc1', Lw, flush=False)
            I('s_waitcnt vmcnt(16)')
            r_ = self.maxtree([56, 57, 58, 59], 13)
            I(f'v_cmp_eq_u32 vcc, -1, v{r_}'); I(f's_cbranch_vccz {Dw}')
            self.poll('st', w7l, [56, 57, 58, 59], 0, t=13)
            e.label(Dw, flush=False)
            I(f'v_add_u32 v13, {L_EST2}, v7'); I('ds_write_b64 v13, v[56:57]'); I('ds_write_b64 v13, v[58:59] offset:512')
            e.label(Lw); e.vm = saved
        if cfg.get('pv_prio'): I('s_setprio 0')
        self.stamp(6)
        if cfg.get('wuv_at') == 97: do_wuv()
        self.tr_base_256(18, L_WUV)
        I('v_lshlrev_b32 v19, 3, v3'); I('s_lshl_b32 s6, s55, 7'); I('v_add_u32 v19, s6, v19')
        self.base(56, P_WS, [(60, 16384), (40, 512)], WS_ST)
        I('v_lshlrev_b32 v9, 15, v3'); I('v_lshl_add_u32 v9, v2, 4, v9')
        for k in range(1, 4): I(f'v_add_u32 v{9+k}, {k*4*32768}, v9')
        self.base(44, P_WS, [(3, 16*32768), (40, 1024), (41, 256)] + self.h3t, self.h3)
        I('v_lshlrev_b32 v13, 4, v2'); I('v_lshl_add_u32 v13, v3, 2, v13'); self.sval('s6', [(3, 272)], L_EROW); I('v_add_u32 v13, s6, v13')
        I('v_and_b32 v14, 7, v2'); I('v_mul_u32_u24 v14, 272, v14'); I('v_lshl_add_u32 v14, v3, 4, v14'); I(f'v_add_u32 v14, {L_EROW}, v14')
        I('v_lshlrev_b32 v15, 6, v2'); I('v_lshl_add_u32 v15, v3, 4, v15')
        self.sval('s6', [(61, 64), (62, 8)], L_OUT); I('v_add_u32 v15, s6, v15')
        self.base(46, P_WS, [(40, 2048), (41, 512)], WS_H4)
        if cfg.get('hsplit', 0): self.hu_prep(WS_HU4, 38, 98)
        stl = ['global_load_dwordx2 v[56:57], v7, s[56:57] sc1'] + [f'global_load_dword v{48+k}, v19, s[56:57] offset:{32*k} sc1' for k in range(4)]
        if SENT:
            for s_ in range(4):
                ro = 64*(s_ >> 1) + 16*(s_ & 1)
                I(f'ds_read_b64_tr_b16 {vr(96+4*s_,2)}, v18 offset:{ro*256}'); I(f'ds_read_b64_tr_b16 {vr(98+4*s_,2)}, v18 offset:{(ro+32)*256}')
            e.barrier()
            if cfg.get('fine'): self.stamp(12)
            self.sval('s6', [(60, 512)], L_EST2); I('v_add_u32 v16, s6, v7'); I('v_add_u32 v17, s6, v19')
            I('ds_read_b64 v[56:57], v16')
            for k in range(4): I(f'ds_read_b32 v{48+k}, v17 offset:{32*k}')
            h3l = [f'global_load_dwordx4 {vr(64+4*k,4)}, v{9+k}, s[44:45] sc1' for k in range(4)]
            self.sleep(cfg['d_h3s'])
            e.vm = []
            for ld in h3l: I(ld, tag='h3')
            e.wait_lg()
        elif S6:
            I('s_waitcnt vmcnt(16)'); e.barrier()
            for s_ in range(4):
                ro = 64*(s_ >> 1) + 16*(s_ & 1)
                I(f'ds_read_b64_tr_b16 {vr(96+4*s_,2)}, v18 offset:{ro*256}'); I(f'ds_read_b64_tr_b16 {vr(98+4*s_,2)}, v18 offset:{(ro+32)*256}')
            def until(d):
                LW = self.lab('h3w')
                I(f'v_mov_b32 v60, {d}')
                e.label(LW)
                I('s_memrealtime s[100:101]'); I('s_waitcnt lgkmcnt(0)')
                I('v_sub_u32 v61, s100, v17'); I('v_cmp_lt_u32 vcc, v61, v60'); I(f's_cbranch_vccnz {LW}')
            until(cfg.get('t_st', 230))
            if cfg.get('fine'): self.stamp(12)
            self.poll('st', stl, [56, 57, 48, 49, 50, 51], 0, loop_sleep=cfg.get('h3_loop', 2))
            if cfg.get('fine'): self.stamp(7)
        elif S2:
            I('s_waitcnt vmcnt(16)'); e.barrier()
            for s_ in range(4):
                ro = 64*(s_ >> 1) + 16*(s_ & 1)
                I(f'ds_read_b64_tr_b16 {vr(96+4*s_,2)}, v18 offset:{ro*256}'); I(f'ds_read_b64_tr_b16 {vr(98+4*s_,2)}, v18 offset:{(ro+32)*256}')
            Df, LW, LR, DR = self.lab('flok'), self.lab('h3w'), self.lab('h3r'), self.lab('h3d')
            I('v_cmp_eq_u32 vcc, -1, v17'); I(f's_cbranch_vccz {Df}')
            self.poll('h3f', ['global_load_dword v17, v16, s[58:59] sc1'], [17], 0, loop_sleep=4)
            e.label(Df, flush=False)
            if cfg.get('fine'): self.stamp(12)
            I(f'v_mov_b32 v60, {cfg.get("t_h3", 300)}')
            e.label(LW)
            I('s_memrealtime s[100:101]'); I('s_waitcnt lgkmcnt(0)')
            I('v_sub_u32 v61, s100, v17'); I('v_cmp_lt_u32 vcc, v61, v60'); I(f's_cbranch_vccnz {LW}')
            if cfg.get('fine'): self.stamp(13)
            I(f's_mov_b32 s54, {SPIN}')
            if cfg.get('hu4_early', 0): self.hu_set(WS_HU4, 38)
            e.label(LR); e.vm = []
            for ld in stl: I(ld, tag='st')
            for k in range(4): I(f'global_load_dwordx4 {vr(64+4*k,4)}, v{9+k}, s[44:45] {POL[cfg.get("h3lpol", 0)]}', tag='h3')
            e.wait_vm('st')
            self.maxtree([56, 57, 48, 49, 50, 51], 60)
        elif REC:
            self.base(58, P_WS, [(38, 256)], WS_ST)
            self.base(56, P_WS, [(3, 4096), (40, 8)], WS_ST)
            I('v_add_u32 v16, v2, v3'); I('v_and_b32 v16, 15, v16'); I('v_lshlrev_b32 v16, 8, v16')
            self.sval('s6', [(3, 8)], L_EST); I('v_mov_b32 v17, s6'); I('v_and_b32 v19, 7, v2'); I('v_lshlrev_b32 v19, 3, v19'); I(f'v_add_u32 v19, {L_EST}, v19')
            if LS:
                e.barrier()
                Lw = self.lab('w7s')
                I('s_cmp_lg_u32 s3, 7'); e.branch('s_cbranch_scc1', Lw); w7stats(); e.label(Lw); e.lg = []
            e.wait_vm('h3'); e.barrier()
            Lf = self.lab('h3f')
            I('s_cmp_lg_u32 s3, 7'); e.branch('s_cbranch_scc1', Lf)
            I('s_mov_b32 exec_hi, 0'); I(f'global_store_dwordx2 v7, {vr(ML,2)}, s[58:59] sc1'); self.exec_all()
            e.label(Lf); e.vm = ['x']
            if cfg.get('fine'): self.stamp(12)
            if cfg.get('wuv_at') == 97:
                Lz = self.lab('wz')
                I('s_waitcnt vmcnt(1)'); I('s_cmp_eq_u32 s3, 7'); I(f's_cbranch_scc1 {Lz}'); I('s_waitcnt vmcnt(0)'); e.label(Lz, flush=False); I('s_barrier')
            for s_ in range(4):
                ro = 64*(s_ >> 1) + 16*(s_ & 1)
                I(f'ds_read_b64_tr_b16 {vr(96+4*s_,2)}, v18 offset:{ro*256}'); I(f'ds_read_b64_tr_b16 {vr(98+4*s_,2)}, v18 offset:{(ro+32)*256}')
            if cfg.get('h3fine', 0):
                Lp, Dp = self.lab('hf'), self.lab('hfd')
                I(f's_mov_b32 s54, {SPIN}'); I('v_mov_b32 v60, 0')
                self.sleep(cfg['d_h3'])
                I('global_load_dwordx2 v[56:57], v16, s[56:57] sc1')
                e.label(Lp)
                I('s_waitcnt vmcnt(0)')
                I('v_max_u32 v62, v56, v57')
                I('v_cmp_eq_u32 s[52:53], -1, v62')
                for k in range(4): I(f'v_mov_b32_dpp v{48+k}, v62 row_newbcast:{4*k} {DPPM}')
                I('s_cmp_eq_u64 s[52:53], 0'); I(f's_cbranch_scc1 {Dp}')
                I('global_load_dwordx2 v[56:57], v16, s[56:57] sc1')
                e.label(Dp, flush=False)
                for k in range(4):
                    I(f'v_and_b32 v61, {1<<k}, v60'); I(f'v_cmp_ne_u32 vcc, -1, v{48+k}'); I('v_cmp_eq_u32 s[6:7], 0, v61'); I('s_nop 1' if k else 's_nop 1')
                    I('s_and_b64 exec, vcc, s[6:7]')
                    I(f'global_load_dwordx4 {vr(64+4*k,4)}, v{9+k}, s[44:45] sc1'); I(f'v_or_b32 v60, {1<<k}, v60'); self.exec_all()
                Lq = self.lab('hfq')
                I('s_cmp_eq_u64 s[52:53], 0'); I(f's_cbranch_scc1 {Lq}')
                I('s_sub_u32 s54, s54, 1'); I(f's_cbranch_scc0 {Lp}')
                e.label(Lq, flush=False)
                if cfg.get('fine'): self.stamp(13)
            else:
                self.poll('h3f', ['global_load_dwordx2 v[56:57], v16, s[56:57] sc1'], [56, 57], cfg['d_h3'], loop_sleep=cfg.get('h3_loop', 2))
                if cfg.get('h3bar', 0): I('s_barrier')
                if cfg.get('fine'): self.stamp(13)
                for k in range(4): I(f'global_load_dwordx4 {vr(64+4*k,4)}, v{9+k}, s[44:45] sc1')
            I('v_mov_b32 v58, v56')
            self.ror_reduce([58], [8, 4, 2, 1], 'max')
            I('v_sub_f32 v56, v56, v58'); I('v_exp_f32 v56, v56')
            I('v_mul_f32 v59, v56, v57')
            for k in range(4): I(f'v_mov_b32_dpp v{48+k}, v56 row_newbcast:{4*k} {DPPM}')
            self.ror_reduce([59], [8, 4, 2, 1])
            I('ds_write_b64 v17, v[58:59]')
        else:
            if cfg.get('hu4_early', 0) == 2:
                I(f'v_mov_b32 v249, {L_EST}'); I('v_mov_b32 v250, 0'); I('ds_write_b32 v249, v250')
            e.wait_vm(); e.barrier()
            Lf = self.lab('h3f')
            I('s_cmp_lg_u32 s3, 0'); e.branch('s_cbranch_scc1', Lf)
            TV = cfg.get('t_d', 0)
            if TV:
                I('s_memrealtime s[100:101]'); I('s_waitcnt lgkmcnt(0)'); I('s_add_u32 s100, s100, 1'); I('s_and_b32 s100, s100, 0xfffffffe'); I('v_mov_b32 v17, s100')
            I('s_mov_b64 exec, 0xff'); I('global_store_dword v16, v17, s[58:59] sc1'); self.exec_all()
            e.label(Lf); e.vm = ['x']
            if cfg.get('fine'): self.stamp(12)
            for s_ in range(4):
                ro = 64*(s_ >> 1) + 16*(s_ & 1)
                I(f'ds_read_b64_tr_b16 {vr(96+4*s_,2)}, v18 offset:{ro*256}'); I(f'ds_read_b64_tr_b16 {vr(98+4*s_,2)}, v18 offset:{(ro+32)*256}')
            self.base(58, P_WS, [(4, 2048), (3, 256)], WS_FL)
            I('v_lshlrev_b32 v16, 4, v2')
            if TV:
                LW = self.lab('h3v')
                I(f'v_mov_b32 v60, {TV}')
                e.label(LW)
                I('s_memrealtime s[100:101]'); I('s_waitcnt lgkmcnt(0)')
                I('v_sub_u32 v61, s100, v248'); I('v_cmp_lt_u32 vcc, v61, v60'); I(f's_cbranch_vccnz {LW}')
                I(f's_sub_u32 s63, s100, {cfg.get("t_m", 6)}')
                if cfg.get('fine'): self.stamp(7)
                for k in range(4): I(f'global_load_dwordx4 {vr(64+4*k,4)}, v{9+k}, s[44:45] sc1')
            if CLK:
                LW = self.lab('h3w')
                I(f'v_mov_b32 v60, {CLK}')
                e.label(LW)
                I('s_memrealtime s[100:101]'); I('s_waitcnt lgkmcnt(0)')
                I('v_sub_u32 v61, s100, v248'); I('v_cmp_lt_u32 vcc, v61, v60'); I(f's_cbranch_vccnz {LW}')
            self.poll('h3f', ['global_load_dword v17, v16, s[58:59] sc1', 'global_load_dwordx2 v[56:57], v7, s[56:57] sc1'] +
                      [f'global_load_dword v{48+k}, v19, s[56:57] offset:{32*k} sc1' for k in range(4)], [17, 56, 57, 48, 49, 50, 51], 0 if CLK else cfg['d_h3'], loop_sleep=cfg.get('h3_loop', 2))
            if cfg.get('fine'): self.stamp(13)
            if TV:
                Lv = self.lab('h3ok')
                I('v_sub_u32 v61, s63, v17'); I('v_cmp_gt_i32 vcc, 0, v61'); I(f's_cbranch_vccz {Lv}')
            for k in range(4): I(f'global_load_dwordx4 {vr(64+4*k,4)}, v{9+k}, s[44:45] {POL[cfg.get("h3lpol", 0)]}')
            if TV: e.label(Lv, flush=False)
            if cfg.get('hu4_early', 0) == 2:
                Lh = self.lab('hl')
                I('v_mov_b32 v251, 1'); I('s_mov_b64 exec, 1'); I('ds_add_rtn_u32 v250, v249, v251'); self.exec_all()
                I('s_memrealtime s[100:101]')
                self.base(98, P_WS, [(38, 128)], WS_HU4)
                I('s_waitcnt lgkmcnt(0)'); e.lg = []
                I('v_readfirstlane_b32 s6, v250'); I('s_and_b32 s100, s100, 0xfffffffe'); I('v_mov_b32 v251, 0'); I('v_mov_b32 v250, s100')
                I('s_cmp_lg_u32 s6, 7'); I(f's_cbranch_scc1 {Lh}')
                I('s_mov_b64 exec, 1'); I('global_store_dword v251, v250, s[98:99] sc1'); self.exec_all()
                e.label(Lh, flush=False)
            elif cfg.get('hu4_early', 0): (self.hu_set_w if cfg.get('hu4m', 0) == 2 else self.hu_set)(WS_HU4, 38)
        if not REC:
            I('v_mov_b32 v58, v56')
            self.ror_reduce([58], [8, 4, 2, 1], 'max'); self.cross(16, 58, 59, 'max'); self.cross(32, 58, 59, 'max')
            I('v_sub_f32 v56, v56, v58'); I('v_exp_f32 v56, v56')
            for k in range(4): I(f'v_sub_f32 v{48+k}, v{48+k}, v58')
            I('v_mul_f32 v56, v56, v57')
            for k in range(4): I(f'v_exp_f32 v{48+k}, v{48+k}')
            self.ror_reduce([56], [8, 4, 2, 1]); self.cross(16, 56, 59); self.cross(32, 56, 59)
            I('v_rcp_f32 v56, v56')
            for k in range(4): I(f'v_mul_f32 v{48+k}, v{48+k}, v56')
        if S6:
            until(cfg.get('t_h3', 290))
            if cfg.get('fine'): self.stamp(13)
            self.poll('h3', [f'global_load_dwordx4 {vr(64+4*k,4)}, v{9+k}, s[44:45] sc1' for k in range(4)], range(64, 80), 0, loop_sleep=cfg.get('h3_loop', 2))
        e.wait_vm()
        if SENT:
            Dh = self.lab('h3o')
            r_ = self.maxtree(range(64, 80), 8)
            I(f'v_cmp_eq_u32 vcc, -1, v{r_}'); I(f's_cbranch_vccz {Dh}')
            self.poll('h3', h3l, range(64, 80), 2, loop_sleep=4)
            e.label(Dh, flush=False)
        if S2 and not S6:
            r_ = self.maxtree([60] + list(range(64, 80)), 8)
            I(f'v_cmp_eq_u32 vcc, -1, v{r_}'); I(f's_cbranch_vccz {DR}')
            if cfg.get('fine'): self.stamp(7)
            I(f's_sleep {cfg.get("h3_loop", 2)}'); I('s_sub_u32 s54, s54, 1'); I(f's_cbranch_scc0 {LR}')
            e.label(DR, flush=False)
        HS = cfg.get('hsplit', 0)
        if HS: self.hu_clock()
        elif not cfg.get('hu4_early', 0): (self.hu_set_w if cfg.get('hu4m', 0) == 2 else self.hu_set)(WS_HU4, 38)
        self.stamp(8)
        for q in range(4):
            if HS and q == 1: n0 = e.n; self.hu_store(98, pol='' if cfg.get('loc', 0) & 2 else 'sc1'); e.n = n0 + 2
            for k in range(4):
                I(f'v_lshlrev_b32 v{88+2*k}, 16, v{64+4*q+k}'); I(f'v_and_b32 v{89+2*k}, 0xffff0000, v{64+4*q+k}')
            if cfg.get('pk', 0):
                wq = 48 + (q & ~1); sel = f'op_sel:[{q&1},0,0] op_sel_hi:[{q&1},1,1]'
                for k in range(4):
                    if q == 0: I(f'v_pk_mul_f32 {vr(80+2*k,2)}, {vr(wq,2)}, {vr(88+2*k,2)} op_sel:[0,0] op_sel_hi:[0,1]')
                    else: I(f'v_pk_fma_f32 {vr(80+2*k,2)}, {vr(wq,2)}, {vr(88+2*k,2)}, {vr(80+2*k,2)} {sel}')
                continue
            for k in range(8):
                if q == 0: I(f'v_mul_f32 v{80+k}, v48, v{88+k}')
                else: I(f'v_fmac_f32 v{80+k}, v{48+q}, v{88+k}')
        for k in range(4): I(f'v_permlane32_swap_b32 v{80+2*k}, v{81+2*k}')
        for k in range(4): I(f'v_add_f32 v{88+k}, v{80+2*k}, v{81+2*k}')
        I('v_permlane16_swap_b32 v88, v90'); I('v_permlane16_swap_b32 v89, v91')
        I('v_add_f32 v88, v88, v90'); I('v_add_f32 v89, v89, v91')
        I('v_cvt_pk_bf16_f32 v88, v88, v89'); I('ds_write_b32 v13, v88')
        e.barrier()
        if REC: I('ds_read_b64 v[56:57], v19', tag='mz')
        for s in range(4): I(f'ds_read_b128 {vr(64+4*s,4)}, v14 offset:{s*64}', tag=f'er{s}')
        fs = [lambda: [I(f'v_max_f32_dpp v58, v56, v56 quad_perm:[1,0,3,2] {DPPM}')],
              lambda: [I(f'v_max_f32_dpp v58, v58, v58 quad_perm:[2,3,0,1] {DPPM}'), I('v_sub_f32 v56, v56, v58'), I('v_exp_f32 v56, v56')],
              lambda: [I('v_mul_f32 v57, v56, v57'), I(f'v_add_f32_dpp v57, v57, v57 quad_perm:[1,0,3,2] {DPPM}')],
              lambda: [I(f'v_add_f32_dpp v57, v57, v57 quad_perm:[2,3,0,1] {DPPM}'), I('v_rcp_f32 v57, v57'), I('v_mul_f32 v56, v56, v57')]]
        for s in range(4):
            e.wait_lg(f'er{s}')
            I(f'v_mfma_f32_16x16x32_bf16 v[80:83], {vr(96+4*s,4)}, {vr(64+4*s,4)}, {"0" if s == 0 else "v[80:83]"}')
            if REC: fs[s]()
        if REC:
            for k in range(4): I(f'v_mul_f32 v{80+k}, v{80+k}, v56')
        for qp in ('[1,0,3,2]', '[2,3,0,1]'):
            for k in range(4): I(f'v_add_f32_dpp v{80+k}, v{80+k}, v{80+k} quad_perm:{qp} {DPPM}')
        I('v_cvt_pk_bf16_f32 v80, v80, v81'); I('v_cvt_pk_bf16_f32 v81, v82, v83')
        if cfg.get('publds', 1):
            self.exec_mask(50); I('ds_write_b64 v15, v[80:81]'); self.exec_all()
            self.pub_lds(L_OUT, 6, 46, pol='' if cfg.get('loc', 0) & 1 else 'sc1')
        else:
            self.exec_mask(50); I('global_store_dwordx2 v15, v[80:81], s[46:47] sc1'); self.exec_all()
        self.stamp(9)
        if cfg.get('loc', 0) & 3:
            Lf = self.lab('h4a')
            I('s_cmp_lg_u32 s3, 0'); I(f's_cbranch_scc1 {Lf}'); self.sleep(cfg.get('loc_d', 40))
            I('s_mov_b32 exec_hi, 0'); I('global_store_dwordx4 v6, v[64:67], s[46:47] sc1')
            I('s_mov_b64 exec, 1'); I('global_store_dword v251, v250, s[98:99] sc1'); self.exec_all()
            e.label(Lf, flush=False)

def generate(cfg, path):
    g = Gen(cfg); g.build()
    body = g.e.text()
    hdr = open('cdna_kernels/' + NAME + '.s.ref').read().split('; @launch')[0]
    s = hdr + f'; @launch grid=(256,1,1) block=(512,1,1) lds={LDS_BYTES}\n'
    s += f'''.amdgcn_target "amdgcn-amd-amdhsa--gfx950"
.text
.globl {NAME}_kernel
.p2align 8
.type {NAME}_kernel,@function
{NAME}_kernel:
{body}.section .rodata,"a"
.p2align 6
.amdhsa_kernel {NAME}_kernel
  .amdhsa_next_free_vgpr 256
  .amdhsa_next_free_sgpr 102
  .amdhsa_accum_offset 256
  .amdhsa_group_segment_fixed_size 0
  .amdhsa_kernarg_size 120
  .amdhsa_user_sgpr_count 2
  .amdhsa_user_sgpr_kernarg_segment_ptr 1
  .amdhsa_system_sgpr_workgroup_id_x 1
.end_amdhsa_kernel
'''
    import subprocess, re, os
    kb = 40
    for it in range(2):
        open(path, 'w').write(s.replace('CODE_KB', str(kb)))
        subprocess.check_call(['clang', '-x', 'assembler', '-target', 'amdgcn-amd-amdhsa', '-mcpu=gfx950', '-c', path, '-o', path + '.o'])
        h = subprocess.check_output(['llvm-objdump', '-h', path + '.o']).decode()
        size = int(re.search(r'\.text\s+([0-9a-f]+)', h).group(1), 16)
        kb = size >> 10
        os.remove(path + '.o')
    g.size = size
    return g

DEFAULT = dict(stamps=0, d_h3s=16, pv_prio=1, gseq=0, wuv_pre=0, a_pre=0, wuk_late=2, ckv_win=4, f_pre=25, f_pre3=0, t_h1=262, lazy=1, h1_loop=1, h3_loop=1, p1q=1, gside=1, hu4m=1, hu5m=2, fin_m=1, fin_h5=98, h5_loop=1, hm_loop=1, d_h3=16, h4dma=1, hsplit=1, g_pre=30, gpf=0, g_pre3=0, t_h5=40, t_h7=231, g2=3, ilv=2, h3sent=0, t_h4=56, loc=7, h4_loop=1, d_hq=3, hq_loop=1, t_h2=60, h2chk=1, b_pre=35, bc_pre=10, cmp=7, h2dma=1, g4all=2, pk=1, h3rec=1, qk2=1, wuv_at=3, late3=1, latesum=1, hu_early=3)
if __name__ == '__main__':
    cfg = dict(DEFAULT)
    out = 'cdna_kernels/' + NAME + '.s'
    for a in sys.argv[1:]:
        k, v = a.split('=')
        if k == 'out': out = v
        else: cfg[k] = int(v)
    g = generate(cfg, out)
    print('early', len(g.e.secs['early']), 'instrs', len(g.e.lines), 'nops', g.e.nops, 'maxv', g.e.maxv, 'size', g.size)
```
